```python
import torch

def _softmax(x, axis=-1):
    return torch.softmax(x, dim=axis)
def _gelu(x):
    return torch.nn.functional.gelu(x, approximate="tanh")
def _silu(x):
    return torch.nn.functional.silu(x)
def _sigmoid(x):
    return torch.sigmoid(x)
def _layernorm(x, axis=-1, eps=1e-5):
    m = x.mean(dim=axis, keepdim=True)
    v = x.var(dim=axis, keepdim=True, unbiased=False)
    return (x - m) / torch.sqrt(v + eps)
def _scatter_add(tgt, idx, src, axis=0):
    return tgt.clone().index_add_(axis, idx, src)
def _segment_sum(src, seg, n):
    out = torch.zeros((n,) + src.shape[1:], dtype=src.dtype)
    return out.index_add_(0, seg, src)
def _pad(x, pw):
    flat = tuple(v for pair in reversed(pw) for v in pair)
    return torch.nn.functional.pad(x, flat)

kernel_name = 'standalone__paged_block_table_kv_pagedattention__sampling'

def setup_inputs():

    _w = (lambda a: (lambda t: t.to(torch.bfloat16) if t.is_floating_point() else t)(torch.as_tensor(a)))
    B, Hq, Hkv, Sq, Skv, D = 8, 32, 8, 8, 2048, 128
    bs = 16
    nbps = max(1, Skv // bs)
    num_phys = B * nbps + 4
    bt = torch.randperm(num_phys)[: B * nbps].reshape(B, nbps).to(torch.int64)
    cl = (nbps * bs - (torch.arange(1, B + 1, dtype=torch.int64) * 2654435761) % max(1, nbps * bs // 2)).to(torch.int64)
    return {
        "q": _w((lambda *s: torch.randn(*s, dtype=torch.bfloat16) * 0.8)(B, Hq, Sq, D)),
        "k_cache": _w((lambda *s: torch.randn(*s, dtype=torch.bfloat16) * 0.8)(num_phys, bs, Hkv, D)),
        "v_cache": _w((lambda *s: torch.randn(*s, dtype=torch.bfloat16) * 0.05)(num_phys, bs, Hkv, D)),
        "block_table": _w(bt),
        "context_lens": _w(cl),
    }

def reference(q, k_cache, v_cache, block_table, context_lens):
    B, Hq, Sq, D = q.shape
    bs = k_cache.shape[1]
    Hkv = k_cache.shape[2]
    nbps = block_table.shape[1]
    Skv = nbps * bs
    bt = block_table.reshape(-1)
    k = (lambda x, *d: x.permute(*d))(k_cache[bt].reshape(B, Skv, Hkv, D), 0, 2, 1, 3)
    v = (lambda x, *d: x.permute(*d))(v_cache[bt].reshape(B, Skv, Hkv, D), 0, 2, 1, 3)
    g = Hq // Hkv
    qg = q.reshape(B, Hkv, g, Sq, D)
    scores = torch.einsum("bhgqd,bhkd->bhgqk", qg, k) * (D ** -0.5)
    pos = torch.arange(Skv)
    msk = pos[None, :] < context_lens[:, None]
    scores = torch.where(msk[:, None, None, None, :], scores, -1e9)
    p = _softmax(scores, axis=-1)
    out = torch.einsum("bhgqk,bhkd->bhgqd", p, v)
    return out.reshape(B, Hq, Sq, D)
```

```python
import argparse, sys
ap = argparse.ArgumentParser()
ap.add_argument("--ts", type=int, default=0, help="timestamps")
ap.add_argument("--nt", type=str, default="nt")
ap.add_argument("--st", type=str, default="sc1", help="partial store flags")
ap.add_argument("--ld", type=str, default="sc1", help="partial load flags")
ap.add_argument("--map", type=int, default=0)
ap.add_argument("--pf", type=int, default=1, help="prefetch bt / code")
ap.add_argument("--sleep", type=int, default=0)
a = ap.parse_args()

KN = "standalone__paged_block_table_kv_pagedattention__sampling_kernel"
out = []
def A(s): out.append("    " + s)
def L(s): out.append(s + ":")
def C(s): out.append("    ; " + s)
NT = (" " + a.nt) if a.nt else ""
ST = (" " + a.st) if a.st else ""
LD = (" " + a.ld) if a.ld else ""

KV_BYTES = 1028*16*8*128*2
REC = 18432
TS_OFF = 8 << 20

sW   = 20
sH   = 21
sSlot= 22
sB   = 23
sN   = 24
sStart = 25
sI   = 26
sCl  = 27
sCnt = 28
sLim = 29
sT0, sT1, sT2, sT3 = 30, 31, 32, 33
sUni = 34
sC   = 35
sSelLo, sSelHi = 36, 37
sLdsW = 38
sP = list(range(40, 48))
sE = 40
sSO = 48
srdK = 56; srdV = 60; srdQ = 64; srdX = 68
srdO = 72; srdD = 76; srdW = 80
sM0_, sM1_, sM2_, sM3_ = 84, 86, 88, 90
sTS = 92
vLane = 1
vG = 2; vN = 3
vKoff = 4
vVoff = 8
vLds = 10
vTok = 14
vNEG = 18
vTmp = 19
vM = 28
vT = 32
vMc = 44
vX = 46
vS = 64
vV = 128
def S(i, qt, r=0): return vS + i*8 + qt*4 + r
def V(i, u, k=0): return vV + i*16 + u*4 + k
aQ = 0
aK = 32
aO = 64
aL = 128
aOne = 136
NAGPR = 140
def vr(b, n=4): return f"v[{b}:{b+n-1}]"
def ar(b, n=4): return f"a[{b}:{b+n-1}]"
def sr(b, n=4): return f"s[{b}:{b+n-1}]"

ts_slots = []
def TS(name):
    if not a.ts: return
    idx = len(ts_slots)
    ts_slots.append(name)
    A("s_memrealtime s[100:101]")
    A("s_waitcnt lgkmcnt(0)")
    A(f"v_writelane_b32 v63, s100, {idx}")

L(KN)
A("s_cmp_ge_u32 s2, 256")
A("s_cbranch_scc1 L_end")
A("s_load_dwordx16 s[4:19], s[0:1], 0")
if a.ts:
    A("v_mov_b32 v63, 0")
TS("start")
A(f"v_and_b32 v{vLane}, 63, v0")
A(f"v_lshrrev_b32 v{vTmp}, 6, v0")
A(f"v_lshrrev_b32 v{vG}, 4, v{vLane}")
A(f"v_readfirstlane_b32 s{sW}, v{vTmp}")
A(f"v_and_b32 v{vN}, 15, v{vLane}")
if a.map == 0:
    A(f"s_and_b32 s{sH}, s2, 7")
    A(f"s_lshr_b32 s{sSlot}, s2, 3")
else:
    A(f"s_and_b32 s{sSlot}, s2, 31")
    A(f"s_lshr_b32 s{sH}, s2, 5")
vMt = 20
A(f"v_add_u32 v{vTmp}, 1, v{vLane}")
A(f"v_cvt_f32_u32 v{vTmp}, v{vTmp}")
A(f"v_rcp_f32 v{vTmp}, v{vTmp}")
A(f"v_lshlrev_b32 v{vTmp+2}, 2, v{vLane}")
A(f"v_mul_f32 v{vTmp}, 0x47800000, v{vTmp}")
A(f"v_cvt_u32_f32 v{vTmp}, v{vTmp}")
A(f"v_add_u32 v{vMt}, 1, v{vTmp}")
for j in range(4):
    A(f"v_add_u32 v{vTmp+3}, {4*j}, v{vG}")
    A(f"v_xor_b32 v{vTmp+4}, v{vTmp+3}, v{vN}")
    A(f"v_lshlrev_b32 v{vTmp+3}, 11, v{vTmp+3}")
    A(f"v_lshl_add_u32 v{vKoff+j}, v{vTmp+4}, 4, v{vTmp+3}")
    if j: A(f"v_subrev_u32 v{vKoff+j}, {1024*j}, v{vKoff+j}")
A("s_waitcnt lgkmcnt(0)")
A(f"s_mov_b32 s{srdX}, s12"); A(f"s_mov_b32 s{srdX+1}, s13"); A(f"s_mov_b32 s{srdX+2}, 32"); A(f"s_mov_b32 s{srdX+3}, 0x20000")
A(f"buffer_load_dword v{vTmp+3}, v{vTmp+2}, {sr(srdX)}, 0 offen")
srdBT = 84
A(f"s_mov_b32 s{srdBT}, s10"); A(f"s_mov_b32 s{srdBT+1}, s11"); A(f"s_mov_b32 s{srdBT+2}, 4096"); A(f"s_mov_b32 s{srdBT+3}, 0x20000")
if a.pf:
    A(f"v_lshlrev_b32 v{vTmp+5}, 6, v{vLane}")
    A(f"buffer_load_dword v{vTmp+6}, v{vTmp+5}, {sr(srdBT)}, 0 offen")
A(f"v_lshlrev_b32 v{vVoff}, 13, v{vG}")
A(f"v_lshl_add_u32 v{vVoff}, v{vN}, 4, v{vVoff}")
A(f"v_add_u32 v{vVoff+1}, 4096, v{vVoff}")
A(f"s_lshl_b32 s{sLdsW}, s{sW}, 15")
A(f"v_lshlrev_b32 v{vTmp+4}, 8, v{vN}")
A(f"v_add_u32 v{vTmp+4}, s{sLdsW}, v{vTmp+4}")
for s in range(4):
    A(f"v_add_u32 v{vTmp+5}, {4*s}, v{vG}")
    A(f"v_xor_b32 v{vTmp+5}, v{vTmp+5}, v{vN}")
    A(f"v_lshl_add_u32 v{vLds+s}, v{vTmp+5}, 4, v{vTmp+4}")
for r in range(4):
    A(f"v_lshl_add_u32 v{vTok+r}, v{vG}, 2, {r}")
A(f"v_mov_b32 v{vNEG}, 0xf149f2ca")
A(f"s_mov_b32 s{sC}, 0x3e0293ee")
A(f"s_mov_b32 s{sSelLo}, 0x05040100")
A(f"s_mov_b32 s{sSelHi}, 0x07060302")
A(f"s_lshl_b32 s{sT0}, s{sH}, 8")
A(f"s_add_u32 s{srdK}, s6, s{sT0}"); A(f"s_addc_u32 s{srdK+1}, s7, 0"); A(f"s_sub_u32 s{srdK+2}, {KV_BYTES}, s{sT0}"); A(f"s_mov_b32 s{srdK+3}, 0x20000")
A(f"s_add_u32 s{srdV}, s8, s{sT0}"); A(f"s_addc_u32 s{srdV+1}, s9, 0"); A(f"s_sub_u32 s{srdV+2}, {KV_BYTES}, s{sT0}"); A(f"s_mov_b32 s{srdV+3}, 0x20000")
TS("karg")
A("s_waitcnt vmcnt(%d)" % (1 if a.pf else 0))
vCl = vTmp+3
vP1 = vTmp+4
A(f"v_add_u32 v{vP1}, -1, v{vCl}")
A(f"v_min_u32 v{vP1}, 0x7ff, v{vP1}")
A(f"v_mov_b32 v{vTmp+5}, v{vP1}")
A(f"v_lshrrev_b32 v{vP1}, 4, v{vP1}")
A("s_nop 0")
for b in range(8):
    A(f"v_readlane_b32 s{sP[b]}, v{vP1}, {b}")
vAcc = vTmp+6
vAcc = vTmp+7
vTt = vTmp+8
A(f"v_mul_u32_u24 v{vAcc}, s{sP[0]}, v{vMt}")
A(f"v_lshrrev_b32 v{vAcc}, 16, v{vAcc}")
for b in range(1, 8):
    A(f"v_mul_u32_u24 v{vTt}, s{sP[b]}, v{vMt}")
    A(f"v_add_u32_sdwa v{vAcc}, v{vAcc}, v{vTt} dst_sel:DWORD dst_unused:UNUSED_PAD src0_sel:DWORD src1_sel:WORD_1")
A(f"v_cmp_ge_u32 vcc, 24, v{vAcc}")
A("s_nop 1")
A(f"s_ff1_i32_b64 s{sT0}, vcc")
A("s_nop 0")
A(f"v_readlane_b32 s{sT1}, v{vMt}, s{sT0}")
A("s_nop 1")
vNb = vAcc; vInc = vTt
A(f"v_mul_u32_u24 v{vNb}, s{sT1}, v{vP1}")
A(f"v_lshrrev_b32 v{vNb}, 16, v{vNb}")
A(f"v_add_u32 v{vNb}, 1, v{vNb}")
A(f"v_mov_b32 v{vInc}, v{vNb}")
A("s_nop 1")
A(f"v_add_u32_dpp v{vInc}, v{vInc}, v{vInc} row_shr:1 row_mask:0xf bank_mask:0xf bound_ctrl:0")
A("s_nop 1")
A(f"v_add_u32_dpp v{vInc}, v{vInc}, v{vInc} row_shr:2 row_mask:0xf bank_mask:0xf bound_ctrl:0")
A("s_nop 1")
A(f"v_add_u32_dpp v{vInc}, v{vInc}, v{vInc} row_shr:4 row_mask:0xf bank_mask:0xf bound_ctrl:0")
A(f"v_cmp_lt_u32 vcc, s{sSlot}, v{vInc}")
A("s_nop 1")
A("s_and_b32 vcc_lo, vcc_lo, 0xff")
A("s_cbranch_scc0 L_end")
A(f"s_ff1_i32_b32 s{sB}, vcc_lo")
A("s_nop 0")
A(f"v_readlane_b32 s{sN}, v{vNb}, s{sB}")
A(f"v_readlane_b32 s{sStart}, v{vInc}, s{sB}")
A(f"v_readlane_b32 s{sT2}, v{vP1}, s{sB}")
A(f"v_readlane_b32 s{sCl}, v{vTmp+5}, s{sB}")
A(f"v_readlane_b32 s{sUni}, v{vCl}, s{sB}")
A(f"s_sub_u32 s{sStart}, s{sStart}, s{sN}")
A(f"s_sub_u32 s{sI}, s{sSlot}, s{sStart}")
A(f"s_sub_u32 s{sT0}, s{sN}, 1")
A(f"v_readlane_b32 s{sT1}, v{vMt}, s{sT0}")
A(f"s_add_u32 s{sT2}, s{sT2}, 1")
A(f"s_add_u32 s{sCl}, s{sCl}, 1")
A(f"s_mul_i32 s{sT1}, s{sT1}, s{sT2}")
A(f"s_mul_i32 s{sT3}, s{sT1}, s{sI}")
A(f"s_add_u32 s{sT1}, s{sT1}, s{sT3}")
A(f"s_lshr_b32 s{sT3}, s{sT3}, 16")
A(f"s_lshr_b32 s{sT1}, s{sT1}, 16")
A(f"s_cmp_eq_u32 s{sI}, s{sT0}")
A(f"s_cselect_b32 s{sT1}, s{sT2}, s{sT1}")
A(f"s_sub_u32 s{sT1}, s{sT1}, s{sT3}")
A(f"s_lshr_b32 s{sT0}, s{sT1}, 2")
A(f"s_and_b32 s{sT1}, s{sT1}, 3")
A(f"s_mul_i32 s{sT2}, s{sW}, s{sT0}")
A(f"s_add_u32 s{sT3}, s{sT3}, s{sT2}")
A(f"s_min_u32 s{sT2}, s{sW}, s{sT1}")
A(f"s_add_u32 s{sT3}, s{sT3}, s{sT2}")
A(f"s_cmp_lt_u32 s{sW}, s{sT1}")
A(f"s_addc_u32 s{sCnt}, s{sT0}, 0")
A(f"s_lshl_b32 s{sT0}, s{sB}, 7")
A(f"s_add_u32 s{sT0}, s{sT0}, s{sT3}")
A(f"s_lshl_b32 s{sT0}, s{sT0}, 2")
A(f"s_buffer_load_dwordx8 s[{sE}:{sE+7}], {sr(srdBT)}, s{sT0}")
A(f"s_lshl_b32 s{sT3}, s{sT3}, 4")
A(f"s_sub_i32 s{sLim}, s{sCl}, s{sT3}")
A(f"s_lshl_b32 s{sT2}, s{sCnt}, 4")
A(f"s_min_i32 s{sLim}, s{sLim}, s{sT2}")
A(f"s_lshl_b32 s{sT0}, s{sB}, 16")
A(f"s_lshl_b32 s{sT1}, s{sH}, 13")
A(f"s_add_u32 s{sT0}, s{sT0}, s{sT1}")
A(f"s_add_u32 s{srdQ}, s4, s{sT0}"); A(f"s_addc_u32 s{srdQ+1}, s5, 0"); A(f"s_mov_b32 s{srdQ+2}, 8192"); A(f"s_mov_b32 s{srdQ+3}, 0x20000")
A(f"s_add_u32 s{srdO}, s14, s{sT0}"); A(f"s_addc_u32 s{srdO+1}, s15, 0"); A(f"s_mov_b32 s{srdO+2}, 8192"); A(f"s_mov_b32 s{srdO+3}, 0x20000")
vQo = vTmp+2
A(f"v_lshlrev_b32 v{vQo}, 8, v{vN}")
A(f"v_lshl_add_u32 v{vQo}, v{vG}, 4, v{vQo}")
A(f"v_add_u32 v{vQo+1}, 4096, v{vQo}")
for qt in range(2):
    for s in range(4):
        A(f"buffer_load_dwordx4 {ar(aQ+(qt*4+s)*4)}, v{vQo+qt}, {sr(srdQ)}, 0 offen offset:{s*64}")
TS("alloc")
A("s_waitcnt lgkmcnt(0)")
for i in range(7, -1, -1):
    A(f"s_lshl_b32 s{sSO+i}, s{sE+i}, 15")
    A(f"s_cmp_gt_u32 s{sCnt}, {i}")
    A(f"s_cselect_b32 s{sSO+i}, s{sSO+i}, 0x80000000")
    A(f"s_add_u32 m0, s{sLdsW}, {i*4096}")
    A("s_nop 0")
    for j in range(4):
        A(f"buffer_load_dwordx4 v{vKoff+j}, {sr(srdK)}, s{sSO+i} offen offset:{j*1024}{NT} lds")
TS("kissued")
for r in range(4):
    A(f"v_mov_b32 v{vTmp}, 0x3f803f80") if r == 0 else None
    A(f"v_accvgpr_write_b32 a{aOne+r}, v{vTmp}")
A(f"s_mov_b32 s{srdD}, s16"); A(f"s_mov_b32 s{srdD+1}, s17"); A(f"s_mov_b32 s{srdD+2}, 256"); A(f"s_mov_b32 s{srdD+3}, 0x20000")
A(f"s_mov_b32 s{srdW}, s18"); A(f"s_mov_b32 s{srdW+1}, s19"); A(f"s_mov_b32 s{srdW+2}, 0x10000000"); A(f"s_mov_b32 s{srdW+3}, 0x20000")

for t in range(8):
    i = 7 - t
    kb = aK + (t & 1)*16
    A("s_waitcnt vmcnt(28)")
    if t == 0:
        A(f"s_cmp_gt_i32 s{sUni}, 0")
        A("s_cbranch_scc1 L_qok")
        A(f"v_mov_b32 v{vTmp}, 0")
        for r in range(32): A(f"v_accvgpr_write_b32 a{aQ+r}, v{vTmp}")
        L("L_qok")
    for s in range(4):
        A(f"ds_read_b128 {ar(kb+4*s)}, v{vLds+s} offset:{i*4096}")
    A(f"s_sub_i32 s{sT0}, s{sLim}, {16*i}")
    for r in range(4):
        A(f"v_cmp_gt_i32 s[{sM0_+2*r}:{sM0_+2*r+1}], s{sT0}, v{vTok+r}")
    for r in range(4):
        A(f"v_cndmask_b32 v{vM+r}, v{vNEG}, 0, s[{sM0_+2*r}:{sM0_+2*r+1}]")
    A("s_nop 0")
    for s in range(4):
        A(f"s_waitcnt lgkmcnt({3-s})")
        for qt in range(2):
            c = vr(vM) if s == 0 else vr(S(i,qt))
            A(f"v_mfma_f32_16x16x32_bf16 {vr(S(i,qt))}, {ar(kb+4*s)}, {ar(aQ+(qt*4+s)*4)}, {c}")
    for u in range(4):
        A(f"buffer_load_dwordx4 {vr(V(t,u))}, v{vVoff+(u>>1)}, {sr(srdV)}, s{sSO+t} offen offset:{(u&1)*2048}{NT}")
    if t in (0, 3, 7): TS(f"k{t}")
for qt in range(2):
    regs = [S(i,qt,r) for i in range(7,-1,-1) for r in range(4)]
    m = vMc+qt
    A(f"v_max3_f32 v{m}, v{regs[0]}, v{regs[1]}, v{regs[2]}")
    k = 3
    while k + 1 < len(regs):
        A(f"v_max3_f32 v{m}, v{m}, v{regs[k]}, v{regs[k+1]}")
        k += 2
    if k < len(regs):
        A(f"v_max_f32 v{m}, v{m}, v{regs[k]}")
for qt in range(2):
    A(f"v_mov_b32 v{vX+qt}, v{vMc+qt}")
A("s_nop 1")
for qt in range(2):
    A(f"v_permlane16_swap_b32 v{vMc+qt}, v{vX+qt}")
for qt in range(2):
    A(f"v_max_f32 v{vMc+qt}, v{vMc+qt}, v{vX+qt}")
for qt in range(2):
    A(f"v_mov_b32 v{vX+qt}, v{vMc+qt}")
A("s_nop 1")
for qt in range(2):
    A(f"v_permlane32_swap_b32 v{vMc+qt}, v{vX+qt}")
for qt in range(2):
    A(f"v_max_f32 v{vMc+qt}, v{vMc+qt}, v{vX+qt}")
for qt in range(2):
    A(f"v_mul_f32 v{vMc+qt}, s{sC}, v{vMc+qt}")
for p in range(4):
    for qt in range(2):
        for i in (2*p, 2*p+1):
            for r in range(4):
                A(f"v_fma_f32 v{S(i,qt,r)}, v{S(i,qt,r)}, s{sC}, -v{vMc+qt}")
            for r in range(4):
                A(f"v_exp_f32 v{S(i,qt,r)}, v{S(i,qt,r)}")
        d = S(2*p,qt)
        A(f"v_cvt_pk_bf16_f32 v{d}, v{S(2*p,qt,0)}, v{S(2*p,qt,1)}")
        A(f"v_cvt_pk_bf16_f32 v{d+1}, v{S(2*p,qt,2)}, v{S(2*p,qt,3)}")
        A(f"v_cvt_pk_bf16_f32 v{d+2}, v{S(2*p+1,qt,0)}, v{S(2*p+1,qt,1)}")
        A(f"v_cvt_pk_bf16_f32 v{d+3}, v{S(2*p+1,qt,2)}, v{S(2*p+1,qt,3)}")
TS("softmax")
def perms(p, e, T):
    k = e >> 1
    sel = sSelHi if (e & 1) else sSelLo
    for x in range(4):
        pg = 2*p + (x >> 1); u0 = (x & 1)*2
        A(f"v_perm_b32 v{T+x}, v{V(pg,u0+1,k)}, v{V(pg,u0,k)}, s{sel}")
for p in range(4):
    A(f"s_waitcnt vmcnt({24-8*p})")
    perms(p, 0, vT)
    for e in range(8):
        T = vT + 4*(e % 3)
        if e < 7:
            perms(p, e+1, vT + 4*((e+1) % 3))
        else:
            for qt in range(2):
                c = "0" if p == 0 else ar(aL+qt*4)
                A(f"v_mfma_f32_16x16x32_bf16 {ar(aL+qt*4)}, {ar(aOne)}, {vr(S(2*p,qt))}, {c}")
        for qt in range(2):
            o = aO + (e*2+qt)*4
            c = "0" if p == 0 else ar(o)
            A(f"v_mfma_f32_16x16x32_bf16 {ar(o)}, {vr(T)}, {vr(S(2*p,qt))}, {c}")
    if p < 3:
        A(f"s_cmp_le_u32 s{sCnt}, {2*(p+1)}")
        A("s_cbranch_scc1 L_pvdone")
L("L_pvdone")
TS("pv")
vA0 = vTmp
A(f"v_lshlrev_b32 v{vA0}, 4, v{vLane}")
A(f"v_add_u32 v{vA0+1}, s{sLdsW}, v{vA0}")
A(f"v_lshlrev_b32 v{vA0+2}, 3, v{vLane}")
A(f"v_add_u32 v{vA0+3}, s{sLdsW}, v{vA0+2}")
A("s_nop 4")
for qt in range(2):
    A(f"v_accvgpr_read_b32 v{vX+2*qt+1}, a{aL+qt*4}")
    A(f"v_mov_b32 v{vX+2*qt}, v{vMc+qt}")
for qt in range(2):
    A(f"ds_write_b64 v{vA0+3}, v[{vX+2*qt}:{vX+2*qt+1}] offset:{16384+qt*512}")
for wd in range(4):
    qt = wd >> 1; rp = wd & 1
    for e in range(8):
        o = aO + (e*2+qt)*4 + 2*rp
        A(f"ds_write_b64 v{vA0+1}, a[{o}:{o+1}] offset:{wd*4096 + (e>>1)*1024 + (e&1)*8}")
A(f"s_lshl_b32 s{sT0}, s{sW}, 12")
A(f"v_add_u32 v{vA0+4}, s{sT0}, v{vA0}")
A(f"v_add_u32 v{vA0+5}, 0x10000, v{vA0+4}")
A(f"s_lshr_b32 s{sT1}, s{sW}, 1")
A(f"s_lshl_b32 s{sT1}, s{sT1}, 9")
A(f"s_add_u32 s{sT1}, s{sT1}, 16384")
A(f"v_add_u32 v{vA0+6}, s{sT1}, v{vA0+2}")
A(f"v_add_u32 v{vA0+7}, 0x10000, v{vA0+6}")
A("s_waitcnt lgkmcnt(0)")
A("s_barrier")
TS("bar1")
vML = 48
vXs = 128
def rdX(s_):
    for k in range(4):
        A(f"ds_read_b128 {vr(vXs+s_*16+k*4)}, v{vA0+4+(s_>>1)} offset:{(s_&1)*32768 + k*1024}")
for s in range(4):
    A(f"ds_read_b64 v[{vML+2*s}:{vML+2*s+1}], v{vA0+6+(s>>1)} offset:{(s&1)*32768}")
rdX(0); rdX(1)
A("s_waitcnt lgkmcnt(8)")
rdX(2)
vMs = 56; vAl = 58
A(f"v_max3_f32 v{vMs}, v{vML}, v{vML+2}, v{vML+4}")
A(f"v_max_f32 v{vMs}, v{vMs}, v{vML+6}")
for s in range(4):
    A(f"v_sub_f32 v{vAl+s}, v{vML+2*s}, v{vMs}")
for s in range(4):
    A(f"v_exp_f32 v{vAl+s}, v{vAl+s}")
A("s_waitcnt lgkmcnt(8)")
rdX(3)
A(f"v_mul_f32 v{vMs+1}, v{vAl}, v{vML+1}")
for s in range(1,4):
    A(f"v_fma_f32 v{vMs+1}, v{vAl+s}, v{vML+2*s+1}, v{vMs+1}")
vR = 64
for s in range(4):
    if s > 0: A(f"s_waitcnt lgkmcnt({12-4*s})")
    for k in range(4):
        for c in range(4):
            e = 2*k + (c >> 1); rq = c & 1
            dst = vR + 8*rq + e
            src = vXs + s*16 + k*4 + c
            if s == 0:
                A(f"v_mul_f32 v{dst}, v{vAl}, v{src}")
            else:
                A(f"v_fma_f32 v{dst}, v{vAl+s}, v{src}, v{dst}")
A(f"s_lshl_b32 s{sT0}, s{sH}, 5")
A(f"s_add_u32 s{sT0}, s{sT0}, s{sSlot}")
A(f"s_mul_i32 s{sT1}, s{sT0}, {REC}")
A(f"s_lshl_b32 s{sT2}, s{sW}, 12")
A(f"s_add_u32 s{sT2}, s{sT2}, s{sT1}")
for j in range(4):
    A(f"buffer_store_dwordx4 {vr(vR+4*j)}, v{vA0}, {sr(srdW)}, s{sT2} offen offset:{j*1024}{ST}")
A(f"s_lshl_b32 s{sT2}, s{sW}, 9")
A(f"s_add_u32 s{sT2}, s{sT2}, s{sT1}")
A(f"s_add_u32 s{sT2}, s{sT2}, 16384")
A(f"buffer_store_dwordx2 v[{vMs}:{vMs+1}], v{vA0+2}, {sr(srdW)}, s{sT2} offen{ST}")
TS("stored")
A("s_waitcnt vmcnt(0)")
A("s_barrier")
TS("bar2")
A(f"s_cmp_lg_u32 s{sW}, 0")
A("s_cbranch_scc1 L_noflag")
A(f"v_mov_b32 v{vX}, 1")
A(f"v_mov_b32 v{vX+1}, s{sT0}")
A(f"v_cmp_eq_u32 vcc, 0, v{vLane}")
A(f"s_and_saveexec_b64 s[{sM0_}:{sM0_+1}], vcc")
A(f"buffer_store_byte v{vX}, v{vX+1}, {sr(srdD)}, 0 offen sc1")
A(f"s_mov_b64 exec, s[{sM0_}:{sM0_+1}]")
L("L_noflag")
sHu = 39
A(f"s_lshl_b32 s{sHu}, s{sI}, 2")
A(f"s_add_u32 s{sHu}, s{sHu}, s{sW}")
A(f"s_cmp_ge_u32 s{sHu}, 16")
A("s_cbranch_scc1 L_fin")
A(f"s_lshl_b32 s{sT0}, s{sH}, 5")
A(f"s_add_u32 s{sT0}, s{sT0}, s{sStart}")
A(f"v_add_u32 v{vX}, s{sT0}, v{vLane}")
A(f"s_bfm_b64 s[{sM1_}:{sM1_+1}], s{sN}, 0")
A(f"s_mov_b64 exec, s[{sM1_}:{sM1_+1}]")
A(f"s_mov_b32 s{sM3_}, 0x40000")
L("L_poll")
A(f"s_sub_u32 s{sM3_}, s{sM3_}, 1")
A("s_cbranch_scc1 L_pollok")
A(f"buffer_load_ubyte v{vX+1}, v{vX}, {sr(srdD)}, 0 offen sc1")
A("s_waitcnt vmcnt(0)")
A(f"v_cmp_ne_u32 vcc, 0, v{vX+1}")
A("s_nop 1")
A(f"s_cmp_eq_u64 vcc, s[{sM1_}:{sM1_+1}]")
A("s_cbranch_scc1 L_pollok")
if a.sleep: A(f"s_sleep {a.sleep}")
A("s_branch L_poll")
L("L_pollok")
A("s_mov_b64 exec, -1")
TS("polled")
A(f"s_mul_i32 s{sT0}, s{sT0}, {REC}")
L("L_hu")
A(f"s_lshr_b32 s{sT1}, s{sHu}, 2")
A(f"s_and_b32 s{sT2}, s{sHu}, 3")
A(f"s_lshl_b32 s{sT3}, s{sT1}, 12")
A(f"s_lshl_b32 s{sM2_}, s{sT2}, 10")
A(f"s_add_u32 s{sT3}, s{sT3}, s{sM2_}")
A(f"s_add_u32 s{sT3}, s{sT3}, s{sT0}")
A(f"s_lshl_b32 s{sM2_}, s{sT1}, 9")
A(f"s_add_u32 s{sM2_}, s{sM2_}, s{sT0}")
A(f"s_add_u32 s{sM2_}, s{sM2_}, 16384")
A(f"v_mov_b32 v{vMs}, v{vNEG}")
A(f"v_mov_b32 v{vMs+1}, 0")
for c in range(4): A(f"v_mov_b32 v{vR+c}, 0")
A(f"s_mov_b32 s{sM3_}, 0")
L("L_chunk")
CH = 8
vOs = 128
vMLs = 160
for s in range(CH):
    A(f"s_add_u32 s{sM3_+1}, s{sM3_}, {s}")
    A(f"s_cmp_lt_u32 s{sM3_+1}, s{sN}")
    A(f"s_cselect_b32 s{sM2_+1}, s{sT3}, 0x80000000")
    A(f"s_cselect_b32 s{sM3_+1}, s{sM2_}, 0x80000000")
    A(f"buffer_load_dwordx4 {vr(vOs+4*s)}, v{vA0}, {sr(srdW)}, s{sM2_+1} offen{LD}")
    A(f"buffer_load_dwordx2 v[{vMLs+2*s}:{vMLs+2*s+1}], v{vA0+2}, {sr(srdW)}, s{sM3_+1} offen{LD}")
    A(f"s_add_u32 s{sT3}, s{sT3}, {REC}")
    A(f"s_add_u32 s{sM2_}, s{sM2_}, {REC}")
A("s_waitcnt vmcnt(0)")
TS("pload")
for s in range(CH):
    A(f"v_cmp_eq_f32 s[{sM0_+2*(s&1)}:{sM0_+2*(s&1)+1}], 0, v{vMLs+2*s+1}")
    if s & 1:
        A("s_nop 0")
        A(f"v_cndmask_b32 v{vMLs+2*(s-1)}, v{vMLs+2*(s-1)}, v{vNEG}, s[{sM0_}:{sM0_+1}]")
        A(f"v_cndmask_b32 v{vMLs+2*s}, v{vMLs+2*s}, v{vNEG}, s[{sM0_+2}:{sM0_+3}]")
vMn = 58
A(f"v_max3_f32 v{vMn}, v{vMs}, v{vMLs}, v{vMLs+2}")
for s in range(2, CH, 2):
    A(f"v_max3_f32 v{vMn}, v{vMn}, v{vMLs+2*s}, v{vMLs+2*s+2}")
A(f"v_sub_f32 v{vMn+1}, v{vMs}, v{vMn}")
A(f"v_exp_f32 v{vMn+1}, v{vMn+1}")
for s in range(CH):
    A(f"v_sub_f32 v{vMLs+2*s}, v{vMLs+2*s}, v{vMn}")
A(f"v_mul_f32 v{vMs+1}, v{vMs+1}, v{vMn+1}")
for c in range(4): A(f"v_mul_f32 v{vR+c}, v{vR+c}, v{vMn+1}")
for s in range(CH):
    A(f"v_exp_f32 v{vMLs+2*s}, v{vMLs+2*s}")
A(f"v_mov_b32 v{vMs}, v{vMn}")
for s in range(CH):
    A(f"v_fma_f32 v{vMs+1}, v{vMLs+2*s}, v{vMLs+2*s+1}, v{vMs+1}")
    for c in range(4):
        A(f"v_fma_f32 v{vR+c}, v{vMLs+2*s}, v{vOs+4*s+c}, v{vR+c}")
A(f"s_add_u32 s{sM3_}, s{sM3_}, {CH}")
A(f"s_cmp_lt_u32 s{sM3_}, s{sN}")
A("s_cbranch_scc1 L_chunk")
A(f"v_rcp_f32 v{vMs+1}, v{vMs+1}")
A("s_nop 0")
for c in range(4): A(f"v_mul_f32 v{vR+c}, v{vR+c}, v{vMs+1}")
A(f"v_cvt_pk_bf16_f32 v{vR}, v{vR}, v{vR+1}")
A(f"v_cvt_pk_bf16_f32 v{vR+1}, v{vR+2}, v{vR+3}")
A(f"s_lshr_b32 s{sM2_}, s{sT1}, 1")
A(f"s_lshl_b32 s{sM2_}, s{sM2_}, 12")
A(f"s_and_b32 s{sT1}, s{sT1}, 1")
A(f"s_lshl_b32 s{sT1}, s{sT1}, 5")
A(f"s_lshl_b32 s{sT2}, s{sT2}, 3")
A(f"s_add_u32 s{sM2_}, s{sM2_}, s{sT1}")
A(f"s_add_u32 s{sM2_}, s{sM2_}, s{sT2}")
A(f"v_lshlrev_b32 v{vX}, 8, v{vN}")
A(f"v_lshl_add_u32 v{vX}, v{vG}, 6, v{vX}")
A(f"buffer_store_dwordx2 v[{vR}:{vR+1}], v{vX}, {sr(srdO)}, s{sM2_} offen")
A(f"s_lshl_b32 s{sT1}, s{sN}, 2")
A(f"s_add_u32 s{sHu}, s{sHu}, s{sT1}")
A(f"s_cmp_lt_u32 s{sHu}, 16")
A("s_cbranch_scc0 L_fin")
A(f"s_lshl_b32 s{sT0}, s{sH}, 5")
A(f"s_add_u32 s{sT0}, s{sT0}, s{sStart}")
A(f"s_mul_i32 s{sT0}, s{sT0}, {REC}")
A("s_branch L_hu")
L("L_fin")
if a.ts:
    TS("end")
    A("s_waitcnt vmcnt(0)")
    A(f"s_lshl_b32 s{sT0}, s2, 2")
    A(f"s_add_u32 s{sT0}, s{sT0}, s{sW}")
    A(f"s_lshl_b32 s{sT0}, s{sT0}, 7")
    A(f"s_add_u32 s{sT0}, s{sT0}, {TS_OFF}")
    A(f"v_lshlrev_b32 v{vX}, 2, v{vLane}")
    A(f"v_cmp_gt_u32 vcc, 32, v{vLane}")
    A(f"s_and_saveexec_b64 s[{sM0_}:{sM0_+1}], vcc")
    A(f"buffer_store_dword v63, v{vX}, {sr(srdW)}, s{sT0} offen")
L("L_end")
A("s_endpgm")

hdr = open("standalone__paged_block_table_kv_pagedattention__sampling.s.ref").read().split("\n")
comments = [l for l in hdr if l.startswith(";") and "@launch" not in l and not l.startswith("; Override") and not l.startswith("; grid=")]
txt = "\n".join(comments) + "\n"
txt += f"; @launch grid=(256,1,1) block=(256,1,1) lds=131072\n"
txt += f""".amdgcn_target "amdgcn-amd-amdhsa--gfx950"
.text
.globl {KN}
.p2align 8
.type {KN},@function
"""
txt += "\n".join(out) + "\n"
txt += f""".section .rodata,"a"
.p2align 6
.amdhsa_kernel {KN}
  .amdhsa_next_free_vgpr {256+NAGPR}
  .amdhsa_next_free_sgpr 102
  .amdhsa_accum_offset 256
  .amdhsa_group_segment_fixed_size 0
  .amdhsa_kernarg_size 64
  .amdhsa_user_sgpr_count 2
  .amdhsa_user_sgpr_kernarg_segment_ptr 1
  .amdhsa_system_sgpr_workgroup_id_x 1
.end_amdhsa_kernel
"""
print(txt)
if a.ts:
    sys.stderr.write("TS: " + ",".join(ts_slots) + "\n")
```

```python
import argparse, sys
ap = argparse.ArgumentParser()
ap.add_argument("--ts", type=int, default=0, help="timestamps")
ap.add_argument("--nt", type=str, default="nt")
ap.add_argument("--st", type=str, default="sc1", help="partial store flags")
ap.add_argument("--ld", type=str, default="sc1", help="partial load flags")
ap.add_argument("--map", type=int, default=0)
ap.add_argument("--pf", type=int, default=1, help="prefetch bt / code")
ap.add_argument("--sleep", type=int, default=0)
ap.add_argument("--cpf", type=int, default=0, help="code prefetch KB")
a = ap.parse_args()

KN = "standalone__paged_block_table_kv_pagedattention__sampling_kernel"
out = []
def A(s): out.append("    " + s)
def L(s): out.append(s + ":")
def C(s): out.append("    ; " + s)
NT = (" " + a.nt) if a.nt else ""
ST = (" " + a.st) if a.st else ""
LD = (" " + a.ld) if a.ld else ""

KV_BYTES = 1028*16*8*128*2
REC = 18432
FLAG_OFF = 6 << 20
TS_OFF = 8 << 20

sW   = 20
sH   = 21
sSlot= 22
sB   = 23
sN   = 24
sStart = 25
sI   = 26
sCl  = 27
sCnt = 28
sLim = 29
sT0, sT1, sT2, sT3 = 30, 31, 32, 33
sUni = 34
sC   = 35
sSelLo, sSelHi = 36, 37
sLdsW = 38
sP = list(range(40, 48))
sE = 40
sSO = 48
srdK = 56; srdV = 60; srdQ = 64; srdX = 68
srdO = 72; srdD = 76; srdW = 80
sM0_, sM1_, sM2_, sM3_ = 84, 86, 88, 90
sGrp = 92
sNonce = 96
sTS = 92
vLane = 1
vG = 2; vN = 3
vKoff = 4
vVoff = 8
vLds = 10
vTok = 14
vNEG = 18
vTmp = 19
vM = 28
vT = 32
vMc = 44
vNon = 60
vX = 46
vS = 64
vV = 128
def S(i, qt, r=0): return vS + i*8 + qt*4 + r
def V(i, u, k=0): return vV + i*16 + u*4 + k
aQ = 0
aK = 32
aO = 64
aL = 128
aOne = 136
NAGPR = 140
def vr(b, n=4): return f"v[{b}:{b+n-1}]"
def ar(b, n=4): return f"a[{b}:{b+n-1}]"
def sr(b, n=4): return f"s[{b}:{b+n-1}]"

ts_slots = []
def TS(name):
    if not a.ts: return
    idx = len(ts_slots)
    ts_slots.append(name)
    A("s_memrealtime s[100:101]")
    A("s_waitcnt lgkmcnt(0)")
    A(f"v_writelane_b32 v63, s100, {idx}")

L(KN)
A("s_cmp_ge_u32 s2, 256")
A("s_cbranch_scc1 L_end")
A("s_load_dwordx16 s[4:19], s[0:1], 0")
if a.cpf:
    A("s_getpc_b64 s[98:99]")
    A("v_lshlrev_b32 v62, 7, v0")
    A(f"v_cmp_gt_u32 vcc, {a.cpf*1024}, v62")
    A("s_and_saveexec_b64 s[94:95], vcc")
    A("s_cbranch_execz L_nocpf")
    A("global_load_dword v61, v62, s[98:99]")
    L("L_nocpf")
    A("s_mov_b64 exec, s[94:95]")
if a.ts:
    A("v_mov_b32 v63, 0")
TS("start")
A(f"v_and_b32 v{vLane}, 63, v0")
A(f"v_lshrrev_b32 v{vTmp}, 6, v0")
A(f"v_lshrrev_b32 v{vG}, 4, v{vLane}")
A(f"v_readfirstlane_b32 s{sW}, v{vTmp}")
A(f"v_and_b32 v{vN}, 15, v{vLane}")
if a.map == 0:
    A(f"s_and_b32 s{sH}, s2, 7")
    A(f"s_lshr_b32 s{sSlot}, s2, 3")
else:
    A(f"s_and_b32 s{sSlot}, s2, 31")
    A(f"s_lshr_b32 s{sH}, s2, 5")
vMt = 20
A(f"v_add_u32 v{vTmp}, 1, v{vLane}")
A(f"v_cvt_f32_u32 v{vTmp}, v{vTmp}")
A(f"v_rcp_f32 v{vTmp}, v{vTmp}")
A(f"v_lshlrev_b32 v{vTmp+2}, 2, v{vLane}")
A(f"v_mul_f32 v{vTmp}, 0x47800000, v{vTmp}")
A(f"v_cvt_u32_f32 v{vTmp}, v{vTmp}")
A(f"v_add_u32 v{vMt}, 1, v{vTmp}")
for j in range(4):
    A(f"v_add_u32 v{vTmp+3}, {4*j}, v{vG}")
    A(f"v_xor_b32 v{vTmp+4}, v{vTmp+3}, v{vN}")
    A(f"v_lshlrev_b32 v{vTmp+3}, 11, v{vTmp+3}")
    A(f"v_lshl_add_u32 v{vKoff+j}, v{vTmp+4}, 4, v{vTmp+3}")
    if j: A(f"v_subrev_u32 v{vKoff+j}, {1024*j}, v{vKoff+j}")
A("s_waitcnt lgkmcnt(0)")
A(f"s_mov_b32 s{srdX}, s12"); A(f"s_mov_b32 s{srdX+1}, s13"); A(f"s_mov_b32 s{srdX+2}, 32"); A(f"s_mov_b32 s{srdX+3}, 0x20000")
A(f"buffer_load_dword v{vTmp+3}, v{vTmp+2}, {sr(srdX)}, 0 offen")
srdBT = 84
A(f"s_mov_b32 s{srdBT}, s10"); A(f"s_mov_b32 s{srdBT+1}, s11"); A(f"s_mov_b32 s{srdBT+2}, 4096"); A(f"s_mov_b32 s{srdBT+3}, 0x20000")
if a.pf:
    A(f"v_lshlrev_b32 v{vTmp+5}, 6, v{vLane}")
    A(f"buffer_load_dword v{vTmp+6}, v{vTmp+5}, {sr(srdBT)}, 0 offen")
A(f"v_lshlrev_b32 v{vVoff}, 13, v{vG}")
A(f"v_lshl_add_u32 v{vVoff}, v{vN}, 4, v{vVoff}")
A(f"v_add_u32 v{vVoff+1}, 4096, v{vVoff}")
A(f"s_lshl_b32 s{sLdsW}, s{sW}, 15")
A(f"v_lshlrev_b32 v{vTmp+4}, 8, v{vN}")
A(f"v_add_u32 v{vTmp+4}, s{sLdsW}, v{vTmp+4}")
for s in range(4):
    A(f"v_add_u32 v{vTmp+5}, {4*s}, v{vG}")
    A(f"v_xor_b32 v{vTmp+5}, v{vTmp+5}, v{vN}")
    A(f"v_lshl_add_u32 v{vLds+s}, v{vTmp+5}, 4, v{vTmp+4}")
for r in range(4):
    A(f"v_lshl_add_u32 v{vTok+r}, v{vG}, 2, {r}")
A(f"v_mov_b32 v{vNEG}, 0xf149f2ca")
A(f"s_mov_b32 s{sC}, 0x3e0293ee")
A(f"s_mov_b32 s{sSelLo}, 0x05040100")
A(f"s_mov_b32 s{sSelHi}, 0x07060302")
A(f"s_lshl_b32 s{sT0}, s{sH}, 8")
A(f"s_add_u32 s{srdK}, s6, s{sT0}"); A(f"s_addc_u32 s{srdK+1}, s7, 0"); A(f"s_sub_u32 s{srdK+2}, {KV_BYTES}, s{sT0}"); A(f"s_mov_b32 s{srdK+3}, 0x20000")
A(f"s_add_u32 s{srdV}, s8, s{sT0}"); A(f"s_addc_u32 s{srdV+1}, s9, 0"); A(f"s_sub_u32 s{srdV+2}, {KV_BYTES}, s{sT0}"); A(f"s_mov_b32 s{srdV+3}, 0x20000")
TS("karg")
A("s_waitcnt vmcnt(%d)" % (1 if a.pf else 0))
vCl = vTmp+3
vP1 = vTmp+4
A(f"v_add_u32 v{vP1}, -1, v{vCl}")
A(f"v_min_u32 v{vP1}, 0x7ff, v{vP1}")
A(f"v_mov_b32 v{vTmp+5}, v{vP1}")
A(f"v_lshrrev_b32 v{vP1}, 4, v{vP1}")
A("s_nop 0")
for b in range(8):
    A(f"v_readlane_b32 s{sP[b]}, v{vP1}, {b}")
vAcc = vTmp+6
vAcc = vTmp+7
vTt = vTmp+8
A(f"v_mul_u32_u24 v{vAcc}, s{sP[0]}, v{vMt}")
A(f"v_lshrrev_b32 v{vAcc}, 16, v{vAcc}")
for b in range(1, 8):
    A(f"v_mul_u32_u24 v{vTt}, s{sP[b]}, v{vMt}")
    A(f"v_add_u32_sdwa v{vAcc}, v{vAcc}, v{vTt} dst_sel:DWORD dst_unused:UNUSED_PAD src0_sel:DWORD src1_sel:WORD_1")
A(f"v_cmp_ge_u32 vcc, 24, v{vAcc}")
A("s_nop 1")
A(f"s_ff1_i32_b64 s{sT0}, vcc")
A("s_nop 0")
A(f"v_readlane_b32 s{sT1}, v{vMt}, s{sT0}")
A("s_nop 1")
vNb = vAcc; vInc = vTt
A(f"v_mul_u32_u24 v{vNb}, s{sT1}, v{vP1}")
A(f"v_lshrrev_b32 v{vNb}, 16, v{vNb}")
A(f"v_add_u32 v{vNb}, 1, v{vNb}")
A(f"v_mov_b32 v{vInc}, v{vNb}")
A("s_nop 1")
A(f"v_add_u32_dpp v{vInc}, v{vInc}, v{vInc} row_shr:1 row_mask:0xf bank_mask:0xf bound_ctrl:0")
A("s_nop 1")
A(f"v_add_u32_dpp v{vInc}, v{vInc}, v{vInc} row_shr:2 row_mask:0xf bank_mask:0xf bound_ctrl:0")
A("s_nop 1")
A(f"v_add_u32_dpp v{vInc}, v{vInc}, v{vInc} row_shr:4 row_mask:0xf bank_mask:0xf bound_ctrl:0")
A(f"v_cmp_lt_u32 vcc, s{sSlot}, v{vInc}")
A("s_nop 1")
A("s_and_b32 vcc_lo, vcc_lo, 0xff")
A("s_cbranch_scc0 L_end")
A(f"s_ff1_i32_b32 s{sB}, vcc_lo")
A("s_nop 0")
A(f"v_readlane_b32 s{sN}, v{vNb}, s{sB}")
A(f"v_readlane_b32 s{sStart}, v{vInc}, s{sB}")
A(f"v_readlane_b32 s{sT2}, v{vP1}, s{sB}")
A(f"v_readlane_b32 s{sCl}, v{vTmp+5}, s{sB}")
A(f"v_readlane_b32 s{sUni}, v{vCl}, s{sB}")
A(f"s_sub_u32 s{sStart}, s{sStart}, s{sN}")
A(f"s_sub_u32 s{sI}, s{sSlot}, s{sStart}")
A(f"s_sub_u32 s{sT0}, s{sN}, 1")
A(f"v_readlane_b32 s{sT1}, v{vMt}, s{sT0}")
A(f"s_add_u32 s{sT2}, s{sT2}, 1")
A(f"s_add_u32 s{sCl}, s{sCl}, 1")
A(f"s_mul_i32 s{sT1}, s{sT1}, s{sT2}")
A(f"s_mul_i32 s{sT3}, s{sT1}, s{sI}")
A(f"s_add_u32 s{sT1}, s{sT1}, s{sT3}")
A(f"s_lshr_b32 s{sT3}, s{sT3}, 16")
A(f"s_lshr_b32 s{sT1}, s{sT1}, 16")
A(f"s_cmp_eq_u32 s{sI}, s{sT0}")
A(f"s_cselect_b32 s{sT1}, s{sT2}, s{sT1}")
A(f"s_sub_u32 s{sT1}, s{sT1}, s{sT3}")
A(f"s_lshr_b32 s{sT0}, s{sT1}, 2")
A(f"s_and_b32 s{sT1}, s{sT1}, 3")
A(f"s_mul_i32 s{sT2}, s{sW}, s{sT0}")
A(f"s_add_u32 s{sT3}, s{sT3}, s{sT2}")
A(f"s_min_u32 s{sT2}, s{sW}, s{sT1}")
A(f"s_add_u32 s{sT3}, s{sT3}, s{sT2}")
A(f"s_cmp_lt_u32 s{sW}, s{sT1}")
A(f"s_addc_u32 s{sCnt}, s{sT0}, 0")
A(f"s_lshl_b32 s{sT0}, s{sB}, 7")
A(f"s_add_u32 s{sT0}, s{sT0}, s{sT3}")
A(f"s_lshl_b32 s{sT0}, s{sT0}, 2")
A(f"s_buffer_load_dwordx8 s[{sE}:{sE+7}], {sr(srdBT)}, s{sT0}")
A(f"s_lshl_b32 s{sT3}, s{sT3}, 4")
A(f"s_sub_i32 s{sLim}, s{sCl}, s{sT3}")
A(f"s_lshl_b32 s{sT2}, s{sCnt}, 4")
A(f"s_min_i32 s{sLim}, s{sLim}, s{sT2}")
A(f"s_lshl_b32 s{sT0}, s{sB}, 16")
A(f"s_lshl_b32 s{sT1}, s{sH}, 13")
A(f"s_add_u32 s{sT0}, s{sT0}, s{sT1}")
A(f"s_add_u32 s{srdQ}, s4, s{sT0}"); A(f"s_addc_u32 s{srdQ+1}, s5, 0"); A(f"s_mov_b32 s{srdQ+2}, 8192"); A(f"s_mov_b32 s{srdQ+3}, 0x20000")
A(f"s_add_u32 s{srdO}, s14, s{sT0}"); A(f"s_addc_u32 s{srdO+1}, s15, 0"); A(f"s_mov_b32 s{srdO+2}, 8192"); A(f"s_mov_b32 s{srdO+3}, 0x20000")
vQo = vTmp+2
A(f"v_lshlrev_b32 v{vQo}, 8, v{vN}")
A(f"v_lshl_add_u32 v{vQo}, v{vG}, 4, v{vQo}")
A(f"v_add_u32 v{vQo+1}, 4096, v{vQo}")
for qt in range(2):
    for s in range(4):
        A(f"buffer_load_dwordx4 {ar(aQ+(qt*4+s)*4)}, v{vQo+qt}, {sr(srdQ)}, 0 offen offset:{s*64}")
TS("alloc")
A("s_waitcnt lgkmcnt(0)")
for i in range(7, -1, -1):
    A(f"s_lshl_b32 s{sSO+i}, s{sE+i}, 15")
    A(f"s_cmp_gt_u32 s{sCnt}, {i}")
    A(f"s_cselect_b32 s{sSO+i}, s{sSO+i}, 0x80000000")
    A(f"s_add_u32 m0, s{sLdsW}, {i*4096}")
    A("s_nop 0")
    for j in range(4):
        A(f"buffer_load_dwordx4 v{vKoff+j}, {sr(srdK)}, s{sSO+i} offen offset:{j*1024}{NT} lds")
TS("kissued")
A("s_memrealtime s[96:97]")
A(f"s_lshl_b32 s{sGrp}, s{sB}, 3")
A(f"s_add_u32 s{sGrp}, s{sGrp}, s{sH}")
A(f"s_lshl_b32 s{sT0}, s{sGrp}, 2")
A(f"s_cmp_eq_u32 s{sW}, 0")
A(f"s_cselect_b32 s{sT0}, s{sT0}, 0x1000")
A(f"s_mov_b32 s{srdD}, s16"); A(f"s_mov_b32 s{srdD+1}, s17"); A(f"s_mov_b32 s{srdD+2}, 256"); A(f"s_mov_b32 s{srdD+3}, 0x20000")
A(f"v_mov_b32 v{vNon+2}, s{sT0}")
A(f"v_mov_b32 v{vNon+1}, 0")
A("s_waitcnt lgkmcnt(0)")
A("s_or_b32 s96, s96, 1")
A(f"v_mov_b32 v{vNon}, s96")
A(f"s_mov_b64 exec, 1")
A(f"buffer_atomic_cmpswap v[{vNon}:{vNon+1}], v{vNon+2}, {sr(srdD)}, 0 offen sc0 sc1")
A(f"s_mov_b64 exec, -1")
for r in range(4):
    A(f"v_mov_b32 v{vTmp}, 0x3f803f80") if r == 0 else None
    A(f"v_accvgpr_write_b32 a{aOne+r}, v{vTmp}")
A(f"s_mov_b32 s{srdW}, s18"); A(f"s_mov_b32 s{srdW+1}, s19"); A(f"s_mov_b32 s{srdW+2}, 0x10000000"); A(f"s_mov_b32 s{srdW+3}, 0x20000")

for t in range(8):
    i = 7 - t
    kb = aK + (t & 1)*16
    A("s_waitcnt vmcnt(29)")
    if t == 0:
        A(f"s_cmp_gt_i32 s{sUni}, 0")
        A("s_cbranch_scc1 L_qok")
        A(f"v_mov_b32 v{vTmp}, 0")
        for r in range(32): A(f"v_accvgpr_write_b32 a{aQ+r}, v{vTmp}")
        L("L_qok")
    for s in range(4):
        A(f"ds_read_b128 {ar(kb+4*s)}, v{vLds+s} offset:{i*4096}")
    A(f"s_sub_i32 s{sT0}, s{sLim}, {16*i}")
    for r in range(4):
        A(f"v_cmp_gt_i32 s[{sM0_+2*r}:{sM0_+2*r+1}], s{sT0}, v{vTok+r}")
    for r in range(4):
        A(f"v_cndmask_b32 v{vM+r}, v{vNEG}, 0, s[{sM0_+2*r}:{sM0_+2*r+1}]")
    A("s_nop 0")
    for s in range(4):
        A(f"s_waitcnt lgkmcnt({3-s})")
        for qt in range(2):
            c = vr(vM) if s == 0 else vr(S(i,qt))
            A(f"v_mfma_f32_16x16x32_bf16 {vr(S(i,qt))}, {ar(kb+4*s)}, {ar(aQ+(qt*4+s)*4)}, {c}")
    for u in range(4):
        A(f"buffer_load_dwordx4 {vr(V(t,u))}, v{vVoff+(u>>1)}, {sr(srdV)}, s{sSO+t} offen offset:{(u&1)*2048}{NT}")
    if t in (0, 3, 7): TS(f"k{t}")
for qt in range(2):
    regs = [S(i,qt,r) for i in range(7,-1,-1) for r in range(4)]
    m = vMc+qt
    A(f"v_max3_f32 v{m}, v{regs[0]}, v{regs[1]}, v{regs[2]}")
    k = 3
    while k + 1 < len(regs):
        A(f"v_max3_f32 v{m}, v{m}, v{regs[k]}, v{regs[k+1]}")
        k += 2
    if k < len(regs):
        A(f"v_max_f32 v{m}, v{m}, v{regs[k]}")
for qt in range(2):
    A(f"v_mov_b32 v{vX+qt}, v{vMc+qt}")
A("s_nop 1")
for qt in range(2):
    A(f"v_permlane16_swap_b32 v{vMc+qt}, v{vX+qt}")
for qt in range(2):
    A(f"v_max_f32 v{vMc+qt}, v{vMc+qt}, v{vX+qt}")
for qt in range(2):
    A(f"v_mov_b32 v{vX+qt}, v{vMc+qt}")
A("s_nop 1")
for qt in range(2):
    A(f"v_permlane32_swap_b32 v{vMc+qt}, v{vX+qt}")
for qt in range(2):
    A(f"v_max_f32 v{vMc+qt}, v{vMc+qt}, v{vX+qt}")
for qt in range(2):
    A(f"v_mul_f32 v{vMc+qt}, s{sC}, v{vMc+qt}")
for p in range(4):
    for qt in range(2):
        for i in (2*p, 2*p+1):
            for r in range(4):
                A(f"v_fma_f32 v{S(i,qt,r)}, v{S(i,qt,r)}, s{sC}, -v{vMc+qt}")
            for r in range(4):
                A(f"v_exp_f32 v{S(i,qt,r)}, v{S(i,qt,r)}")
        d = S(2*p,qt)
        A(f"v_cvt_pk_bf16_f32 v{d}, v{S(2*p,qt,0)}, v{S(2*p,qt,1)}")
        A(f"v_cvt_pk_bf16_f32 v{d+1}, v{S(2*p,qt,2)}, v{S(2*p,qt,3)}")
        A(f"v_cvt_pk_bf16_f32 v{d+2}, v{S(2*p+1,qt,0)}, v{S(2*p+1,qt,1)}")
        A(f"v_cvt_pk_bf16_f32 v{d+3}, v{S(2*p+1,qt,2)}, v{S(2*p+1,qt,3)}")
TS("softmax")
def perms(p, e, T):
    k = e >> 1
    sel = sSelHi if (e & 1) else sSelLo
    for x in range(4):
        pg = 2*p + (x >> 1); u0 = (x & 1)*2
        A(f"v_perm_b32 v{T+x}, v{V(pg,u0+1,k)}, v{V(pg,u0,k)}, s{sel}")
for p in range(4):
    A(f"s_waitcnt vmcnt({24-8*p})")
    if p == 0:
        A(f"v_readfirstlane_b32 s{sNonce+1}, v{vNon}")
        A("s_nop 0")
        A(f"s_cmp_eq_u32 s{sNonce+1}, 0")
        A(f"s_cselect_b32 s{sNonce}, s{sNonce}, s{sNonce+1}")
    perms(p, 0, vT)
    for e in range(8):
        T = vT + 4*(e % 3)
        if e < 7:
            perms(p, e+1, vT + 4*((e+1) % 3))
        else:
            for qt in range(2):
                c = "0" if p == 0 else ar(aL+qt*4)
                A(f"v_mfma_f32_16x16x32_bf16 {ar(aL+qt*4)}, {ar(aOne)}, {vr(S(2*p,qt))}, {c}")
        for qt in range(2):
            o = aO + (e*2+qt)*4
            c = "0" if p == 0 else ar(o)
            A(f"v_mfma_f32_16x16x32_bf16 {ar(o)}, {vr(T)}, {vr(S(2*p,qt))}, {c}")
    if p < 3:
        A(f"s_cmp_le_u32 s{sCnt}, {2*(p+1)}")
        A("s_cbranch_scc1 L_pvdone")
L("L_pvdone")
TS("pv")
vA0 = vTmp
A(f"v_lshlrev_b32 v{vA0}, 4, v{vLane}")
A(f"v_add_u32 v{vA0+1}, s{sLdsW}, v{vA0}")
A(f"v_lshlrev_b32 v{vA0+2}, 3, v{vLane}")
A(f"v_add_u32 v{vA0+3}, s{sLdsW}, v{vA0+2}")
A("s_nop 4")
for qt in range(2):
    A(f"v_accvgpr_read_b32 v{vX+2*qt+1}, a{aL+qt*4}")
    A(f"v_mov_b32 v{vX+2*qt}, v{vMc+qt}")
for qt in range(2):
    A(f"ds_write_b64 v{vA0+3}, v[{vX+2*qt}:{vX+2*qt+1}] offset:{16384+qt*512}")
for wd in range(4):
    qt = wd >> 1; rp = wd & 1
    for e in range(8):
        o = aO + (e*2+qt)*4 + 2*rp
        A(f"ds_write_b64 v{vA0+1}, a[{o}:{o+1}] offset:{wd*4096 + (e>>1)*1024 + (e&1)*8}")
A(f"s_lshl_b32 s{sT0}, s{sW}, 12")
A(f"v_add_u32 v{vA0+4}, s{sT0}, v{vA0}")
A(f"v_add_u32 v{vA0+5}, 0x10000, v{vA0+4}")
A(f"s_lshr_b32 s{sT1}, s{sW}, 1")
A(f"s_lshl_b32 s{sT1}, s{sT1}, 9")
A(f"s_add_u32 s{sT1}, s{sT1}, 16384")
A(f"v_add_u32 v{vA0+6}, s{sT1}, v{vA0+2}")
A(f"v_add_u32 v{vA0+7}, 0x10000, v{vA0+6}")
A("s_waitcnt lgkmcnt(0)")
A("s_barrier")
TS("bar1")
vML = 48
vXs = 128
def rdX(s_):
    for k in range(4):
        A(f"ds_read_b128 {vr(vXs+s_*16+k*4)}, v{vA0+4+(s_>>1)} offset:{(s_&1)*32768 + k*1024}")
for s in range(4):
    A(f"ds_read_b64 v[{vML+2*s}:{vML+2*s+1}], v{vA0+6+(s>>1)} offset:{(s&1)*32768}")
rdX(0); rdX(1)
A("s_waitcnt lgkmcnt(8)")
rdX(2)
vMs = 56; vAl = 58
A(f"v_max3_f32 v{vMs}, v{vML}, v{vML+2}, v{vML+4}")
A(f"v_max_f32 v{vMs}, v{vMs}, v{vML+6}")
for s in range(4):
    A(f"v_sub_f32 v{vAl+s}, v{vML+2*s}, v{vMs}")
for s in range(4):
    A(f"v_exp_f32 v{vAl+s}, v{vAl+s}")
A("s_waitcnt lgkmcnt(8)")
rdX(3)
A(f"v_mul_f32 v{vMs+1}, v{vAl}, v{vML+1}")
for s in range(1,4):
    A(f"v_fma_f32 v{vMs+1}, v{vAl+s}, v{vML+2*s+1}, v{vMs+1}")
vR = 64
for s in range(4):
    if s > 0: A(f"s_waitcnt lgkmcnt({12-4*s})")
    for k in range(4):
        for c in range(4):
            e = 2*k + (c >> 1); rq = c & 1
            dst = vR + 8*rq + e
            src = vXs + s*16 + k*4 + c
            if s == 0:
                A(f"v_mul_f32 v{dst}, v{vAl}, v{src}")
            else:
                A(f"v_fma_f32 v{dst}, v{vAl+s}, v{src}, v{dst}")
A(f"s_lshl_b32 s{sT0}, s{sH}, 5")
A(f"s_add_u32 s{sT0}, s{sT0}, s{sSlot}")
A(f"s_mul_i32 s{sT1}, s{sT0}, {REC}")
A(f"s_lshl_b32 s{sT2}, s{sW}, 12")
A(f"s_add_u32 s{sT2}, s{sT2}, s{sT1}")
for j in range(4):
    A(f"buffer_store_dwordx4 {vr(vR+4*j)}, v{vA0}, {sr(srdW)}, s{sT2} offen offset:{j*1024}{ST}")
A(f"s_lshl_b32 s{sT2}, s{sW}, 9")
A(f"s_add_u32 s{sT2}, s{sT2}, s{sT1}")
A(f"s_add_u32 s{sT2}, s{sT2}, 16384")
A(f"buffer_store_dwordx2 v[{vMs}:{vMs+1}], v{vA0+2}, {sr(srdW)}, s{sT2} offen{ST}")
TS("stored")
A("s_waitcnt vmcnt(0)")
A("s_barrier")
TS("bar2")
sHu = 39
A(f"s_cmp_lg_u32 s{sW}, 0")
A("s_cbranch_scc1 L_noflag")
A(f"s_lshl_b32 s{sT0}, s{sGrp}, 7")
A(f"s_add_u32 s{sT0}, s{sT0}, {FLAG_OFF}")
A(f"s_lshl_b32 s{sT1}, s{sI}, 2")
A(f"v_mov_b32 v{vX}, s{sNonce}")
A(f"v_mov_b32 v{vX+1}, s{sT1}")
A("s_mov_b64 exec, 1")
A(f"buffer_store_dword v{vX}, v{vX+1}, {sr(srdW)}, s{sT0} offen sc1")
A(f"s_cmp_ge_u32 s{sI}, 4")
A("s_cbranch_scc1 L_fin")
A(f"s_bfm_b64 s[{sM1_}:{sM1_+1}], s{sN}, 0")
A(f"s_mov_b64 exec, s[{sM1_}:{sM1_+1}]")
A(f"v_lshlrev_b32 v{vX+2}, 2, v{vLane}")
A(f"s_mov_b32 s{sM3_}, 0x40000")
L("L_poll")
A(f"s_sub_u32 s{sM3_}, s{sM3_}, 1")
A("s_cbranch_scc1 L_pollok")
A(f"buffer_load_dword v{vX+1}, v{vX+2}, {sr(srdW)}, s{sT0} offen sc1")
A("s_waitcnt vmcnt(0)")
A(f"v_cmp_eq_u32 vcc, s{sNonce}, v{vX+1}")
A("s_nop 1")
A(f"s_cmp_eq_u64 vcc, s[{sM1_}:{sM1_+1}]")
A("s_cbranch_scc1 L_pollok")
if a.sleep: A(f"s_sleep {a.sleep}")
A("s_branch L_poll")
L("L_pollok")
A("s_mov_b64 exec, -1")
L("L_noflag")
A(f"s_cmp_ge_u32 s{sI}, 4")
A("s_cbranch_scc1 L_fin")
A("s_barrier")
A(f"s_lshl_b32 s{sHu}, s{sI}, 2")
A(f"s_add_u32 s{sHu}, s{sHu}, s{sW}")
A(f"s_lshl_b32 s{sT0}, s{sH}, 5")
A(f"s_add_u32 s{sT0}, s{sT0}, s{sStart}")
TS("polled")
A(f"s_mul_i32 s{sT0}, s{sT0}, {REC}")
L("L_hu")
A(f"s_lshr_b32 s{sT1}, s{sHu}, 2")
A(f"s_and_b32 s{sT2}, s{sHu}, 3")
A(f"s_lshl_b32 s{sT3}, s{sT1}, 12")
A(f"s_lshl_b32 s{sM2_}, s{sT2}, 10")
A(f"s_add_u32 s{sT3}, s{sT3}, s{sM2_}")
A(f"s_add_u32 s{sT3}, s{sT3}, s{sT0}")
A(f"s_lshl_b32 s{sM2_}, s{sT1}, 9")
A(f"s_add_u32 s{sM2_}, s{sM2_}, s{sT0}")
A(f"s_add_u32 s{sM2_}, s{sM2_}, 16384")
A(f"v_mov_b32 v{vMs}, v{vNEG}")
A(f"v_mov_b32 v{vMs+1}, 0")
for c in range(4): A(f"v_mov_b32 v{vR+c}, 0")
A(f"s_mov_b32 s{sM3_}, 0")
L("L_chunk")
CH = 8
vOs = 128
vMLs = 160
for s in range(CH):
    A(f"s_add_u32 s{sM3_+1}, s{sM3_}, {s}")
    A(f"s_cmp_lt_u32 s{sM3_+1}, s{sN}")
    A(f"s_cselect_b32 s{sM2_+1}, s{sT3}, 0x80000000")
    A(f"s_cselect_b32 s{sM3_+1}, s{sM2_}, 0x80000000")
    A(f"buffer_load_dwordx4 {vr(vOs+4*s)}, v{vA0}, {sr(srdW)}, s{sM2_+1} offen{LD}")
    A(f"buffer_load_dwordx2 v[{vMLs+2*s}:{vMLs+2*s+1}], v{vA0+2}, {sr(srdW)}, s{sM3_+1} offen{LD}")
    A(f"s_add_u32 s{sT3}, s{sT3}, {REC}")
    A(f"s_add_u32 s{sM2_}, s{sM2_}, {REC}")
TS("pissue")
A("s_waitcnt vmcnt(0)")
TS("pload")
for s in range(CH):
    A(f"v_cmp_eq_f32 s[{sM0_+2*(s&1)}:{sM0_+2*(s&1)+1}], 0, v{vMLs+2*s+1}")
    if s & 1:
        A("s_nop 0")
        A(f"v_cndmask_b32 v{vMLs+2*(s-1)}, v{vMLs+2*(s-1)}, v{vNEG}, s[{sM0_}:{sM0_+1}]")
        A(f"v_cndmask_b32 v{vMLs+2*s}, v{vMLs+2*s}, v{vNEG}, s[{sM0_+2}:{sM0_+3}]")
vMn = 58
A(f"v_max3_f32 v{vMn}, v{vMs}, v{vMLs}, v{vMLs+2}")
for s in range(2, CH, 2):
    A(f"v_max3_f32 v{vMn}, v{vMn}, v{vMLs+2*s}, v{vMLs+2*s+2}")
A(f"v_sub_f32 v{vMn+1}, v{vMs}, v{vMn}")
A(f"v_exp_f32 v{vMn+1}, v{vMn+1}")
for s in range(CH):
    A(f"v_sub_f32 v{vMLs+2*s}, v{vMLs+2*s}, v{vMn}")
A(f"v_mul_f32 v{vMs+1}, v{vMs+1}, v{vMn+1}")
for c in range(4): A(f"v_mul_f32 v{vR+c}, v{vR+c}, v{vMn+1}")
for s in range(CH):
    A(f"v_exp_f32 v{vMLs+2*s}, v{vMLs+2*s}")
A(f"v_mov_b32 v{vMs}, v{vMn}")
for s in range(CH):
    A(f"v_fma_f32 v{vMs+1}, v{vMLs+2*s}, v{vMLs+2*s+1}, v{vMs+1}")
    for c in range(4):
        A(f"v_fma_f32 v{vR+c}, v{vMLs+2*s}, v{vOs+4*s+c}, v{vR+c}")
A(f"s_add_u32 s{sM3_}, s{sM3_}, {CH}")
A(f"s_cmp_lt_u32 s{sM3_}, s{sN}")
A("s_cbranch_scc1 L_chunk")
A(f"v_rcp_f32 v{vMs+1}, v{vMs+1}")
A("s_nop 0")
for c in range(4): A(f"v_mul_f32 v{vR+c}, v{vR+c}, v{vMs+1}")
A(f"v_cvt_pk_bf16_f32 v{vR}, v{vR}, v{vR+1}")
A(f"v_cvt_pk_bf16_f32 v{vR+1}, v{vR+2}, v{vR+3}")
A(f"s_lshr_b32 s{sM2_}, s{sT1}, 1")
A(f"s_lshl_b32 s{sM2_}, s{sM2_}, 12")
A(f"s_and_b32 s{sT1}, s{sT1}, 1")
A(f"s_lshl_b32 s{sT1}, s{sT1}, 5")
A(f"s_lshl_b32 s{sT2}, s{sT2}, 3")
A(f"s_add_u32 s{sM2_}, s{sM2_}, s{sT1}")
A(f"s_add_u32 s{sM2_}, s{sM2_}, s{sT2}")
A(f"v_lshlrev_b32 v{vX}, 8, v{vN}")
A(f"v_lshl_add_u32 v{vX}, v{vG}, 6, v{vX}")
A(f"buffer_store_dwordx2 v[{vR}:{vR+1}], v{vX}, {sr(srdO)}, s{sM2_} offen")
A(f"s_lshl_b32 s{sT1}, s{sN}, 2")
A(f"s_add_u32 s{sHu}, s{sHu}, s{sT1}")
A(f"s_cmp_lt_u32 s{sHu}, 16")
A("s_cbranch_scc0 L_fin")
A(f"s_lshl_b32 s{sT0}, s{sH}, 5")
A(f"s_add_u32 s{sT0}, s{sT0}, s{sStart}")
A(f"s_mul_i32 s{sT0}, s{sT0}, {REC}")
A("s_branch L_hu")
L("L_fin")
if a.ts:
    A("s_mov_b64 exec, -1")
    TS("end")
    A("s_waitcnt vmcnt(0)")
    A(f"s_lshl_b32 s{sT0}, s2, 2")
    A(f"s_add_u32 s{sT0}, s{sT0}, s{sW}")
    A(f"s_lshl_b32 s{sT0}, s{sT0}, 7")
    A(f"s_add_u32 s{sT0}, s{sT0}, {TS_OFF}")
    A(f"v_lshlrev_b32 v{vX}, 2, v{vLane}")
    A(f"v_cmp_gt_u32 vcc, 32, v{vLane}")
    A(f"s_and_saveexec_b64 s[{sM0_}:{sM0_+1}], vcc")
    A(f"buffer_store_dword v63, v{vX}, {sr(srdW)}, s{sT0} offen")
L("L_end")
A("s_endpgm")

hdr = open("standalone__paged_block_table_kv_pagedattention__sampling.s.ref").read().split("\n")
comments = [l for l in hdr if l.startswith(";") and "@launch" not in l and not l.startswith("; Override") and not l.startswith("; grid=")]
txt = "\n".join(comments) + "\n"
txt += f"; @launch grid=(256,1,1) block=(256,1,1) lds=131072\n"
txt += f""".amdgcn_target "amdgcn-amd-amdhsa--gfx950"
.text
.globl {KN}
.p2align 8
.type {KN},@function
"""
txt += "\n".join(out) + "\n"
txt += f""".section .rodata,"a"
.p2align 6
.amdhsa_kernel {KN}
  .amdhsa_next_free_vgpr {256+NAGPR}
  .amdhsa_next_free_sgpr 102
  .amdhsa_accum_offset 256
  .amdhsa_group_segment_fixed_size 0
  .amdhsa_kernarg_size 64
  .amdhsa_user_sgpr_count 2
  .amdhsa_user_sgpr_kernarg_segment_ptr 1
  .amdhsa_system_sgpr_workgroup_id_x 1
.end_amdhsa_kernel
"""
print(txt)
if a.ts:
    sys.stderr.write("TS: " + ",".join(ts_slots) + "\n")
```

```python
import argparse, sys
ap = argparse.ArgumentParser()
ap.add_argument("--ts", type=int, default=0, help="timestamps")
ap.add_argument("--nt", type=str, default="nt")
ap.add_argument("--st", type=str, default="sc1", help="partial store flags")
ap.add_argument("--ld", type=str, default="sc1", help="partial load flags")
ap.add_argument("--map", type=int, default=0)
ap.add_argument("--pf", type=int, default=1, help="prefetch bt / code")
ap.add_argument("--sleep", type=int, default=0)
ap.add_argument("--cpf", type=int, default=0, help="code prefetch KB")
ap.add_argument("--ost", type=str, default="", help="out store flags")
ap.add_argument("--rot", type=int, default=0)
a = ap.parse_args()
OST = (" " + a.ost) if a.ost else ""

KN = "standalone__paged_block_table_kv_pagedattention__sampling_kernel"
out = []
def A(s): out.append("    " + s)
def L(s): out.append(s + ":")
def C(s): out.append("    ; " + s)
NT = (" " + a.nt) if a.nt else ""
ST = (" " + a.st) if a.st else ""
LD = (" " + a.ld) if a.ld else ""

KV_BYTES = 1028*16*8*128*2
REC = 18432
FLAG_OFF = 6 << 20
TS_OFF = 8 << 20

sW   = 20
sH   = 21
sSlot= 22
sB   = 23
sN   = 24
sStart = 25
sI   = 26
sCl  = 27
sCnt = 28
sLim = 29
sT0, sT1, sT2, sT3 = 30, 31, 32, 33
sUni = 34
sC   = 35
sSelLo, sSelHi = 36, 37
sLdsW = 38
sP = list(range(40, 48))
sE = 40
sSO = 48
srdK = 56; srdV = 60; srdQ = 64; srdX = 68
srdO = 72; srdD = 76; srdW = 80
sM0_, sM1_, sM2_, sM3_ = 84, 86, 88, 90
sGrp = 92
sNonce = 96
sTS = 92
vLane = 1
vG = 2; vN = 3
vKoff = 4
vVoff = 8
vLds = 10
vTok = 14
vNEG = 18
vTmp = 19
vM = 28
vT = 32
vMc = 44
vNon = 60
vX = 46
vS = 64
vV = 128
def S(i, qt, r=0): return vS + i*8 + qt*4 + r
def V(i, u, k=0): return vV + i*16 + u*4 + k
aQ = 0
aK = 32
aO = 64
aL = 128
aOne = 136
NAGPR = 140
def vr(b, n=4): return f"v[{b}:{b+n-1}]"
def ar(b, n=4): return f"a[{b}:{b+n-1}]"
def sr(b, n=4): return f"s[{b}:{b+n-1}]"

ts_slots = []
def TS(name):
    if not a.ts: return
    idx = len(ts_slots)
    ts_slots.append(name)
    A("s_memrealtime s[100:101]")
    A("s_waitcnt lgkmcnt(0)")
    A(f"v_writelane_b32 v63, s100, {idx}")

L(KN)
A("s_cmp_ge_u32 s2, 256")
A("s_cbranch_scc1 L_end")
A("s_load_dwordx16 s[4:19], s[0:1], 0")
if a.cpf:
    A("s_getpc_b64 s[98:99]")
    A("v_lshlrev_b32 v62, 7, v0")
    A(f"v_cmp_gt_u32 vcc, {a.cpf*1024}, v62")
    A("s_and_saveexec_b64 s[94:95], vcc")
    A("s_cbranch_execz L_nocpf")
    A("global_load_dword v61, v62, s[98:99]")
    L("L_nocpf")
    A("s_mov_b64 exec, s[94:95]")
if a.ts:
    A("v_mov_b32 v63, 0")
TS("start")
A(f"v_and_b32 v{vLane}, 63, v0")
A(f"v_lshrrev_b32 v{vTmp}, 6, v0")
A(f"v_lshrrev_b32 v{vG}, 4, v{vLane}")
A(f"v_readfirstlane_b32 s{sW}, v{vTmp}")
A(f"v_and_b32 v{vN}, 15, v{vLane}")
if a.map == 0:
    if a.rot:
        A(f"s_add_u32 s{sH}, s2, {a.rot}")
        A(f"s_and_b32 s{sH}, s{sH}, 7")
    else:
        A(f"s_and_b32 s{sH}, s2, 7")
    A(f"s_lshr_b32 s{sSlot}, s2, 3")
else:
    A(f"s_and_b32 s{sSlot}, s2, 31")
    A(f"s_lshr_b32 s{sH}, s2, 5")
vMt = 20
A(f"v_add_u32 v{vTmp}, 1, v{vLane}")
A(f"v_cvt_f32_u32 v{vTmp}, v{vTmp}")
A(f"v_rcp_f32 v{vTmp}, v{vTmp}")
A(f"v_lshlrev_b32 v{vTmp+2}, 2, v{vLane}")
A(f"v_mul_f32 v{vTmp}, 0x47800000, v{vTmp}")
A(f"v_cvt_u32_f32 v{vTmp}, v{vTmp}")
A(f"v_add_u32 v{vMt}, 1, v{vTmp}")
for j in range(4):
    A(f"v_add_u32 v{vTmp+3}, {4*j}, v{vG}")
    A(f"v_xor_b32 v{vTmp+4}, v{vTmp+3}, v{vN}")
    A(f"v_lshlrev_b32 v{vTmp+3}, 11, v{vTmp+3}")
    A(f"v_lshl_add_u32 v{vKoff+j}, v{vTmp+4}, 4, v{vTmp+3}")
    if j: A(f"v_subrev_u32 v{vKoff+j}, {1024*j}, v{vKoff+j}")
A("s_waitcnt lgkmcnt(0)")
A(f"s_mov_b32 s{srdX}, s12"); A(f"s_mov_b32 s{srdX+1}, s13"); A(f"s_mov_b32 s{srdX+2}, 32"); A(f"s_mov_b32 s{srdX+3}, 0x20000")
A(f"buffer_load_dword v{vTmp+3}, v{vTmp+2}, {sr(srdX)}, 0 offen")
srdBT = 84
A(f"s_mov_b32 s{srdBT}, s10"); A(f"s_mov_b32 s{srdBT+1}, s11"); A(f"s_mov_b32 s{srdBT+2}, 4096"); A(f"s_mov_b32 s{srdBT+3}, 0x20000")
if a.pf:
    A(f"v_lshlrev_b32 v{vTmp+5}, 6, v{vLane}")
    A(f"buffer_load_dword v{vTmp+6}, v{vTmp+5}, {sr(srdBT)}, 0 offen")
A(f"v_lshlrev_b32 v{vVoff}, 13, v{vG}")
A(f"v_lshl_add_u32 v{vVoff}, v{vN}, 4, v{vVoff}")
A(f"v_add_u32 v{vVoff+1}, 4096, v{vVoff}")
A(f"s_lshl_b32 s{sLdsW}, s{sW}, 15")
A(f"v_lshlrev_b32 v{vTmp+4}, 8, v{vN}")
A(f"v_add_u32 v{vTmp+4}, s{sLdsW}, v{vTmp+4}")
for s in range(4):
    A(f"v_add_u32 v{vTmp+5}, {4*s}, v{vG}")
    A(f"v_xor_b32 v{vTmp+5}, v{vTmp+5}, v{vN}")
    A(f"v_lshl_add_u32 v{vLds+s}, v{vTmp+5}, 4, v{vTmp+4}")
for r in range(4):
    A(f"v_lshl_add_u32 v{vTok+r}, v{vG}, 2, {r}")
A(f"v_mov_b32 v{vNEG}, 0xf149f2ca")
A(f"s_mov_b32 s{sC}, 0x3e0293ee")
A(f"s_mov_b32 s{sSelLo}, 0x05040100")
A(f"s_mov_b32 s{sSelHi}, 0x07060302")
A(f"s_lshl_b32 s{sT0}, s{sH}, 8")
A(f"s_add_u32 s{srdK}, s6, s{sT0}"); A(f"s_addc_u32 s{srdK+1}, s7, 0"); A(f"s_sub_u32 s{srdK+2}, {KV_BYTES}, s{sT0}"); A(f"s_mov_b32 s{srdK+3}, 0x20000")
A(f"s_add_u32 s{srdV}, s8, s{sT0}"); A(f"s_addc_u32 s{srdV+1}, s9, 0"); A(f"s_sub_u32 s{srdV+2}, {KV_BYTES}, s{sT0}"); A(f"s_mov_b32 s{srdV+3}, 0x20000")
TS("karg")
A("s_waitcnt vmcnt(%d)" % (1 if a.pf else 0))
vCl = vTmp+3
vP1 = vTmp+4
A(f"v_add_u32 v{vP1}, -1, v{vCl}")
A(f"v_min_u32 v{vP1}, 0x7ff, v{vP1}")
A(f"v_mov_b32 v{vTmp+5}, v{vP1}")
A(f"v_lshrrev_b32 v{vP1}, 4, v{vP1}")
A("s_nop 0")
for b in range(8):
    A(f"v_readlane_b32 s{sP[b]}, v{vP1}, {b}")
vAcc = vTmp+6
vAcc = vTmp+7
vTt = vTmp+8
A(f"v_mul_u32_u24 v{vAcc}, s{sP[0]}, v{vMt}")
A(f"v_lshrrev_b32 v{vAcc}, 16, v{vAcc}")
for b in range(1, 8):
    A(f"v_mul_u32_u24 v{vTt}, s{sP[b]}, v{vMt}")
    A(f"v_add_u32_sdwa v{vAcc}, v{vAcc}, v{vTt} dst_sel:DWORD dst_unused:UNUSED_PAD src0_sel:DWORD src1_sel:WORD_1")
A(f"v_cmp_ge_u32 vcc, 24, v{vAcc}")
A("s_nop 1")
A(f"s_ff1_i32_b64 s{sT0}, vcc")
A("s_nop 0")
A(f"v_readlane_b32 s{sT1}, v{vMt}, s{sT0}")
A("s_nop 1")
vNb = vAcc; vInc = vTt
A(f"v_mul_u32_u24 v{vNb}, s{sT1}, v{vP1}")
A(f"v_lshrrev_b32 v{vNb}, 16, v{vNb}")
A(f"v_add_u32 v{vNb}, 1, v{vNb}")
A(f"v_mov_b32 v{vInc}, v{vNb}")
A("s_nop 1")
A(f"v_add_u32_dpp v{vInc}, v{vInc}, v{vInc} row_shr:1 row_mask:0xf bank_mask:0xf bound_ctrl:0")
A("s_nop 1")
A(f"v_add_u32_dpp v{vInc}, v{vInc}, v{vInc} row_shr:2 row_mask:0xf bank_mask:0xf bound_ctrl:0")
A("s_nop 1")
A(f"v_add_u32_dpp v{vInc}, v{vInc}, v{vInc} row_shr:4 row_mask:0xf bank_mask:0xf bound_ctrl:0")
A(f"v_cmp_lt_u32 vcc, s{sSlot}, v{vInc}")
A("s_nop 1")
A("s_and_b32 vcc_lo, vcc_lo, 0xff")
A("s_cbranch_scc0 L_end")
A(f"s_ff1_i32_b32 s{sB}, vcc_lo")
A("s_nop 0")
A(f"v_readlane_b32 s{sN}, v{vNb}, s{sB}")
A(f"v_readlane_b32 s{sStart}, v{vInc}, s{sB}")
A(f"v_readlane_b32 s{sT2}, v{vP1}, s{sB}")
A(f"v_readlane_b32 s{sCl}, v{vTmp+5}, s{sB}")
A(f"v_readlane_b32 s{sUni}, v{vCl}, s{sB}")
A(f"s_sub_u32 s{sStart}, s{sStart}, s{sN}")
A(f"s_sub_u32 s{sI}, s{sSlot}, s{sStart}")
A(f"s_sub_u32 s{sT0}, s{sN}, 1")
A(f"v_readlane_b32 s{sT1}, v{vMt}, s{sT0}")
A(f"s_add_u32 s{sT2}, s{sT2}, 1")
A(f"s_add_u32 s{sCl}, s{sCl}, 1")
A(f"s_mul_i32 s{sT1}, s{sT1}, s{sT2}")
A(f"s_mul_i32 s{sT3}, s{sT1}, s{sI}")
A(f"s_add_u32 s{sT1}, s{sT1}, s{sT3}")
A(f"s_lshr_b32 s{sT3}, s{sT3}, 16")
A(f"s_lshr_b32 s{sT1}, s{sT1}, 16")
A(f"s_cmp_eq_u32 s{sI}, s{sT0}")
A(f"s_cselect_b32 s{sT1}, s{sT2}, s{sT1}")
A(f"s_sub_u32 s{sT1}, s{sT1}, s{sT3}")
A(f"s_lshr_b32 s{sT0}, s{sT1}, 2")
A(f"s_and_b32 s{sT1}, s{sT1}, 3")
A(f"s_mul_i32 s{sT2}, s{sW}, s{sT0}")
A(f"s_add_u32 s{sT3}, s{sT3}, s{sT2}")
A(f"s_min_u32 s{sT2}, s{sW}, s{sT1}")
A(f"s_add_u32 s{sT3}, s{sT3}, s{sT2}")
A(f"s_cmp_lt_u32 s{sW}, s{sT1}")
A(f"s_addc_u32 s{sCnt}, s{sT0}, 0")
A(f"s_lshl_b32 s{sT0}, s{sB}, 7")
A(f"s_add_u32 s{sT0}, s{sT0}, s{sT3}")
A(f"s_lshl_b32 s{sT0}, s{sT0}, 2")
A(f"s_buffer_load_dwordx8 s[{sE}:{sE+7}], {sr(srdBT)}, s{sT0}")
A(f"s_lshl_b32 s{sT3}, s{sT3}, 4")
A(f"s_sub_i32 s{sLim}, s{sCl}, s{sT3}")
A(f"s_lshl_b32 s{sT2}, s{sCnt}, 4")
A(f"s_min_i32 s{sLim}, s{sLim}, s{sT2}")
A(f"s_lshl_b32 s{sT0}, s{sB}, 16")
A(f"s_lshl_b32 s{sT1}, s{sH}, 13")
A(f"s_add_u32 s{sT0}, s{sT0}, s{sT1}")
A(f"s_add_u32 s{srdQ}, s4, s{sT0}"); A(f"s_addc_u32 s{srdQ+1}, s5, 0"); A(f"s_mov_b32 s{srdQ+2}, 8192"); A(f"s_mov_b32 s{srdQ+3}, 0x20000")
A(f"s_add_u32 s{srdO}, s14, s{sT0}"); A(f"s_addc_u32 s{srdO+1}, s15, 0"); A(f"s_mov_b32 s{srdO+2}, 8192"); A(f"s_mov_b32 s{srdO+3}, 0x20000")
vQo = vTmp+2
A(f"v_lshlrev_b32 v{vQo}, 8, v{vN}")
A(f"v_lshl_add_u32 v{vQo}, v{vG}, 4, v{vQo}")
A(f"v_add_u32 v{vQo+1}, 4096, v{vQo}")
for qt in range(2):
    for s in range(4):
        A(f"buffer_load_dwordx4 {ar(aQ+(qt*4+s)*4)}, v{vQo+qt}, {sr(srdQ)}, 0 offen offset:{s*64}")
TS("alloc")
A("s_waitcnt lgkmcnt(0)")
for i in range(7, -1, -1):
    A(f"s_lshl_b32 s{sSO+i}, s{sE+i}, 15")
    A(f"s_cmp_gt_u32 s{sCnt}, {i}")
    A(f"s_cselect_b32 s{sSO+i}, s{sSO+i}, 0x80000000")
    A(f"s_add_u32 m0, s{sLdsW}, {i*4096}")
    A("s_nop 0")
    for j in range(4):
        A(f"buffer_load_dwordx4 v{vKoff+j}, {sr(srdK)}, s{sSO+i} offen offset:{j*1024}{NT} lds")
TS("kissued")
A("s_memrealtime s[96:97]")
A(f"s_lshl_b32 s{sGrp}, s{sB}, 3")
A(f"s_add_u32 s{sGrp}, s{sGrp}, s{sH}")
A(f"s_lshl_b32 s{sT0}, s{sGrp}, 2")
A(f"s_cmp_eq_u32 s{sW}, 0")
A(f"s_cselect_b32 s{sT0}, s{sT0}, 0x1000")
A(f"s_mov_b32 s{srdD}, s16"); A(f"s_mov_b32 s{srdD+1}, s17"); A(f"s_mov_b32 s{srdD+2}, 256"); A(f"s_mov_b32 s{srdD+3}, 0x20000")
A(f"v_mov_b32 v{vNon+2}, s{sT0}")
A(f"v_mov_b32 v{vNon+1}, 0")
A("s_waitcnt lgkmcnt(0)")
A("s_or_b32 s96, s96, 1")
A(f"v_mov_b32 v{vNon}, s96")
A(f"s_mov_b64 exec, 1")
A(f"buffer_atomic_cmpswap v[{vNon}:{vNon+1}], v{vNon+2}, {sr(srdD)}, 0 offen sc0 sc1")
A(f"s_mov_b64 exec, -1")
for r in range(4):
    A(f"v_mov_b32 v{vTmp}, 0x3f803f80") if r == 0 else None
    A(f"v_accvgpr_write_b32 a{aOne+r}, v{vTmp}")
A(f"s_mov_b32 s{srdW}, s18"); A(f"s_mov_b32 s{srdW+1}, s19"); A(f"s_mov_b32 s{srdW+2}, 0x10000000"); A(f"s_mov_b32 s{srdW+3}, 0x20000")

for t in range(8):
    i = 7 - t
    kb = aK + (t & 1)*16
    A("s_waitcnt vmcnt(29)")
    if t == 0:
        A(f"s_cmp_gt_i32 s{sUni}, 0")
        A("s_cbranch_scc1 L_qok")
        A(f"v_mov_b32 v{vTmp}, 0")
        for r in range(32): A(f"v_accvgpr_write_b32 a{aQ+r}, v{vTmp}")
        L("L_qok")
    for s in range(4):
        A(f"ds_read_b128 {ar(kb+4*s)}, v{vLds+s} offset:{i*4096}")
    A(f"s_sub_i32 s{sT0}, s{sLim}, {16*i}")
    for r in range(4):
        A(f"v_cmp_gt_i32 s[{sM0_+2*r}:{sM0_+2*r+1}], s{sT0}, v{vTok+r}")
    for r in range(4):
        A(f"v_cndmask_b32 v{vM+r}, v{vNEG}, 0, s[{sM0_+2*r}:{sM0_+2*r+1}]")
    A("s_nop 0")
    for s in range(4):
        A(f"s_waitcnt lgkmcnt({3-s})")
        for qt in range(2):
            c = vr(vM) if s == 0 else vr(S(i,qt))
            A(f"v_mfma_f32_16x16x32_bf16 {vr(S(i,qt))}, {ar(kb+4*s)}, {ar(aQ+(qt*4+s)*4)}, {c}")
    for u in range(4):
        A(f"buffer_load_dwordx4 {vr(V(t,u))}, v{vVoff+(u>>1)}, {sr(srdV)}, s{sSO+t} offen offset:{(u&1)*2048}{NT}")
    if t in (0, 3, 7): TS(f"k{t}")
for qt in range(2):
    regs = [S(i,qt,r) for i in range(7,-1,-1) for r in range(4)]
    m = vMc+qt
    A(f"v_max3_f32 v{m}, v{regs[0]}, v{regs[1]}, v{regs[2]}")
    k = 3
    while k + 1 < len(regs):
        A(f"v_max3_f32 v{m}, v{m}, v{regs[k]}, v{regs[k+1]}")
        k += 2
    if k < len(regs):
        A(f"v_max_f32 v{m}, v{m}, v{regs[k]}")
for qt in range(2):
    A(f"v_mov_b32 v{vX+qt}, v{vMc+qt}")
A("s_nop 1")
for qt in range(2):
    A(f"v_permlane16_swap_b32 v{vMc+qt}, v{vX+qt}")
for qt in range(2):
    A(f"v_max_f32 v{vMc+qt}, v{vMc+qt}, v{vX+qt}")
for qt in range(2):
    A(f"v_mov_b32 v{vX+qt}, v{vMc+qt}")
A("s_nop 1")
for qt in range(2):
    A(f"v_permlane32_swap_b32 v{vMc+qt}, v{vX+qt}")
for qt in range(2):
    A(f"v_max_f32 v{vMc+qt}, v{vMc+qt}, v{vX+qt}")
for qt in range(2):
    A(f"v_mul_f32 v{vMc+qt}, s{sC}, v{vMc+qt}")
for p in range(4):
    for qt in range(2):
        for i in (2*p, 2*p+1):
            for r in range(4):
                A(f"v_fma_f32 v{S(i,qt,r)}, v{S(i,qt,r)}, s{sC}, -v{vMc+qt}")
            for r in range(4):
                A(f"v_exp_f32 v{S(i,qt,r)}, v{S(i,qt,r)}")
        d = S(2*p,qt)
        A(f"v_cvt_pk_bf16_f32 v{d}, v{S(2*p,qt,0)}, v{S(2*p,qt,1)}")
        A(f"v_cvt_pk_bf16_f32 v{d+1}, v{S(2*p,qt,2)}, v{S(2*p,qt,3)}")
        A(f"v_cvt_pk_bf16_f32 v{d+2}, v{S(2*p+1,qt,0)}, v{S(2*p+1,qt,1)}")
        A(f"v_cvt_pk_bf16_f32 v{d+3}, v{S(2*p+1,qt,2)}, v{S(2*p+1,qt,3)}")
TS("softmax")
def perms(p, e, T):
    k = e >> 1
    sel = sSelHi if (e & 1) else sSelLo
    for x in range(4):
        pg = 2*p + (x >> 1); u0 = (x & 1)*2
        A(f"v_perm_b32 v{T+x}, v{V(pg,u0+1,k)}, v{V(pg,u0,k)}, s{sel}")
for p in range(4):
    A(f"s_waitcnt vmcnt({24-8*p})")
    if p == 0:
        A(f"v_readfirstlane_b32 s{sNonce+1}, v{vNon}")
        A("s_nop 0")
        A(f"s_cmp_eq_u32 s{sNonce+1}, 0")
        A(f"s_cselect_b32 s{sNonce}, s{sNonce}, s{sNonce+1}")
    perms(p, 0, vT)
    for e in range(8):
        T = vT + 4*(e % 3)
        if e < 7:
            perms(p, e+1, vT + 4*((e+1) % 3))
        else:
            for qt in range(2):
                c = "0" if p == 0 else ar(aL+qt*4)
                A(f"v_mfma_f32_16x16x32_bf16 {ar(aL+qt*4)}, {ar(aOne)}, {vr(S(2*p,qt))}, {c}")
        for qt in range(2):
            o = aO + (e*2+qt)*4
            c = "0" if p == 0 else ar(o)
            A(f"v_mfma_f32_16x16x32_bf16 {ar(o)}, {vr(T)}, {vr(S(2*p,qt))}, {c}")
    if p < 3:
        A(f"s_cmp_le_u32 s{sCnt}, {2*(p+1)}")
        A("s_cbranch_scc1 L_pvdone")
L("L_pvdone")
TS("pv")
vA0 = vTmp
A(f"v_lshlrev_b32 v{vA0}, 4, v{vLane}")
A(f"v_add_u32 v{vA0+1}, s{sLdsW}, v{vA0}")
A(f"v_lshlrev_b32 v{vA0+2}, 3, v{vLane}")
A(f"v_add_u32 v{vA0+3}, s{sLdsW}, v{vA0+2}")
A("s_nop 4")
for qt in range(2):
    A(f"v_accvgpr_read_b32 v{vX+2*qt+1}, a{aL+qt*4}")
    A(f"v_mov_b32 v{vX+2*qt}, v{vMc+qt}")
for qt in range(2):
    A(f"ds_write_b64 v{vA0+3}, v[{vX+2*qt}:{vX+2*qt+1}] offset:{16384+qt*512}")
for wd in range(4):
    qt = wd >> 1; rp = wd & 1
    for e in range(8):
        o = aO + (e*2+qt)*4 + 2*rp
        A(f"ds_write_b64 v{vA0+1}, a[{o}:{o+1}] offset:{wd*4096 + (e>>1)*1024 + (e&1)*8}")
A(f"s_lshl_b32 s{sT0}, s{sW}, 12")
A(f"v_add_u32 v{vA0+4}, s{sT0}, v{vA0}")
A(f"v_add_u32 v{vA0+5}, 0x10000, v{vA0+4}")
A(f"s_lshr_b32 s{sT1}, s{sW}, 1")
A(f"s_lshl_b32 s{sT1}, s{sT1}, 9")
A(f"s_add_u32 s{sT1}, s{sT1}, 16384")
A(f"v_add_u32 v{vA0+6}, s{sT1}, v{vA0+2}")
A(f"v_add_u32 v{vA0+7}, 0x10000, v{vA0+6}")
A("s_waitcnt lgkmcnt(0)")
A("s_barrier")
TS("bar1")
vML = 48
vXs = 128
def rdX(s_):
    for k in range(4):
        A(f"ds_read_b128 {vr(vXs+s_*16+k*4)}, v{vA0+4+(s_>>1)} offset:{(s_&1)*32768 + k*1024}")
for s in range(4):
    A(f"ds_read_b64 v[{vML+2*s}:{vML+2*s+1}], v{vA0+6+(s>>1)} offset:{(s&1)*32768}")
rdX(0); rdX(1)
A("s_waitcnt lgkmcnt(8)")
rdX(2)
vMs = 56; vAl = 58
A(f"v_max3_f32 v{vMs}, v{vML}, v{vML+2}, v{vML+4}")
A(f"v_max_f32 v{vMs}, v{vMs}, v{vML+6}")
for s in range(4):
    A(f"v_sub_f32 v{vAl+s}, v{vML+2*s}, v{vMs}")
for s in range(4):
    A(f"v_exp_f32 v{vAl+s}, v{vAl+s}")
A("s_waitcnt lgkmcnt(8)")
rdX(3)
A(f"v_mul_f32 v{vMs+1}, v{vAl}, v{vML+1}")
for s in range(1,4):
    A(f"v_fma_f32 v{vMs+1}, v{vAl+s}, v{vML+2*s+1}, v{vMs+1}")
vR = 64
for s in range(4):
    if s > 0: A(f"s_waitcnt lgkmcnt({12-4*s})")
    for k in range(4):
        for c in range(4):
            e = 2*k + (c >> 1); rq = c & 1
            dst = vR + 8*rq + e
            src = vXs + s*16 + k*4 + c
            if s == 0:
                A(f"v_mul_f32 v{dst}, v{vAl}, v{src}")
            else:
                A(f"v_fma_f32 v{dst}, v{vAl+s}, v{src}, v{dst}")
A(f"s_lshl_b32 s{sT0}, s{sH}, 5")
A(f"s_add_u32 s{sT0}, s{sT0}, s{sSlot}")
A(f"s_mul_i32 s{sT1}, s{sT0}, {REC}")
A(f"s_lshl_b32 s{sT2}, s{sW}, 12")
A(f"s_add_u32 s{sT2}, s{sT2}, s{sT1}")
for j in range(4):
    A(f"buffer_store_dwordx4 {vr(vR+4*j)}, v{vA0}, {sr(srdW)}, s{sT2} offen offset:{j*1024}{ST}")
A(f"s_lshl_b32 s{sT2}, s{sW}, 9")
A(f"s_add_u32 s{sT2}, s{sT2}, s{sT1}")
A(f"s_add_u32 s{sT2}, s{sT2}, 16384")
A(f"buffer_store_dwordx2 v[{vMs}:{vMs+1}], v{vA0+2}, {sr(srdW)}, s{sT2} offen{ST}")
TS("stored")
A("s_waitcnt vmcnt(0)")
A("s_barrier")
TS("bar2")
sHu = 39
A(f"s_cmp_lg_u32 s{sW}, 0")
A("s_cbranch_scc1 L_noflag")
A(f"s_lshl_b32 s{sT0}, s{sGrp}, 7")
A(f"s_add_u32 s{sT0}, s{sT0}, {FLAG_OFF}")
A(f"s_lshl_b32 s{sT1}, s{sI}, 2")
A(f"v_mov_b32 v{vX}, s{sNonce}")
A(f"v_mov_b32 v{vX+1}, s{sT1}")
A("s_mov_b64 exec, 1")
A(f"buffer_store_dword v{vX}, v{vX+1}, {sr(srdW)}, s{sT0} offen sc1")
A(f"s_cmp_ge_u32 s{sI}, 4")
A("s_cbranch_scc1 L_fin")
A(f"s_bfm_b64 s[{sM1_}:{sM1_+1}], s{sN}, 0")
A(f"s_mov_b64 exec, s[{sM1_}:{sM1_+1}]")
A(f"v_lshlrev_b32 v{vX+2}, 2, v{vLane}")
A(f"s_mov_b32 s{sM3_}, 0x40000")
L("L_poll")
A(f"s_sub_u32 s{sM3_}, s{sM3_}, 1")
A("s_cbranch_scc1 L_pollok")
A(f"buffer_load_dword v{vX+1}, v{vX+2}, {sr(srdW)}, s{sT0} offen sc1")
A("s_waitcnt vmcnt(0)")
A(f"v_cmp_eq_u32 vcc, s{sNonce}, v{vX+1}")
A("s_nop 1")
A(f"s_cmp_eq_u64 vcc, s[{sM1_}:{sM1_+1}]")
A("s_cbranch_scc1 L_pollok")
if a.sleep: A(f"s_sleep {a.sleep}")
A("s_branch L_poll")
L("L_pollok")
A("s_mov_b64 exec, -1")
L("L_noflag")
A(f"s_cmp_ge_u32 s{sI}, 4")
A("s_cbranch_scc1 L_fin")
A("s_barrier")
A(f"s_lshl_b32 s{sHu}, s{sI}, 2")
A(f"s_add_u32 s{sHu}, s{sHu}, s{sW}")
A(f"s_lshl_b32 s{sT0}, s{sH}, 5")
A(f"s_add_u32 s{sT0}, s{sT0}, s{sStart}")
TS("polled")
A(f"s_mul_i32 s{sT0}, s{sT0}, {REC}")
L("L_hu")
A(f"s_lshr_b32 s{sT1}, s{sHu}, 2")
A(f"s_and_b32 s{sT2}, s{sHu}, 3")
A(f"s_lshl_b32 s{sT3}, s{sT1}, 12")
A(f"s_lshl_b32 s{sM2_}, s{sT2}, 10")
A(f"s_add_u32 s{sT3}, s{sT3}, s{sM2_}")
A(f"s_add_u32 s{sT3}, s{sT3}, s{sT0}")
A(f"s_lshl_b32 s{sM2_}, s{sT1}, 9")
A(f"s_add_u32 s{sM2_}, s{sM2_}, s{sT0}")
A(f"s_add_u32 s{sM2_}, s{sM2_}, 16384")
A(f"v_mov_b32 v{vMs}, v{vNEG}")
A(f"v_mov_b32 v{vMs+1}, 0")
for c in range(4): A(f"v_mov_b32 v{vR+c}, 0")
A(f"s_mov_b32 s{sM3_}, 0")
L("L_chunk")
CH = 8
vOs = 128
vMLs = 160
for s in range(CH):
    A(f"s_add_u32 s{sM3_+1}, s{sM3_}, {s}")
    A(f"s_cmp_lt_u32 s{sM3_+1}, s{sN}")
    A(f"s_cselect_b32 s{sM2_+1}, s{sT3}, 0x80000000")
    A(f"s_cselect_b32 s{sM3_+1}, s{sM2_}, 0x80000000")
    A(f"buffer_load_dwordx4 {vr(vOs+4*s)}, v{vA0}, {sr(srdW)}, s{sM2_+1} offen{LD}")
    A(f"buffer_load_dwordx2 v[{vMLs+2*s}:{vMLs+2*s+1}], v{vA0+2}, {sr(srdW)}, s{sM3_+1} offen{LD}")
    A(f"s_add_u32 s{sT3}, s{sT3}, {REC}")
    A(f"s_add_u32 s{sM2_}, s{sM2_}, {REC}")
TS("pissue")
A("s_waitcnt vmcnt(0)")
TS("pload")
for s in range(CH):
    A(f"v_cmp_eq_f32 s[{sM0_+2*(s&1)}:{sM0_+2*(s&1)+1}], 0, v{vMLs+2*s+1}")
    if s & 1:
        A("s_nop 0")
        A(f"v_cndmask_b32 v{vMLs+2*(s-1)}, v{vMLs+2*(s-1)}, v{vNEG}, s[{sM0_}:{sM0_+1}]")
        A(f"v_cndmask_b32 v{vMLs+2*s}, v{vMLs+2*s}, v{vNEG}, s[{sM0_+2}:{sM0_+3}]")
vMn = 58
A(f"v_max3_f32 v{vMn}, v{vMs}, v{vMLs}, v{vMLs+2}")
for s in range(2, CH, 2):
    A(f"v_max3_f32 v{vMn}, v{vMn}, v{vMLs+2*s}, v{vMLs+2*s+2}")
A(f"v_sub_f32 v{vMn+1}, v{vMs}, v{vMn}")
A(f"v_exp_f32 v{vMn+1}, v{vMn+1}")
for s in range(CH):
    A(f"v_sub_f32 v{vMLs+2*s}, v{vMLs+2*s}, v{vMn}")
A(f"v_mul_f32 v{vMs+1}, v{vMs+1}, v{vMn+1}")
for c in range(4): A(f"v_mul_f32 v{vR+c}, v{vR+c}, v{vMn+1}")
for s in range(CH):
    A(f"v_exp_f32 v{vMLs+2*s}, v{vMLs+2*s}")
A(f"v_mov_b32 v{vMs}, v{vMn}")
for s in range(CH):
    A(f"v_fma_f32 v{vMs+1}, v{vMLs+2*s}, v{vMLs+2*s+1}, v{vMs+1}")
    for c in range(4):
        A(f"v_fma_f32 v{vR+c}, v{vMLs+2*s}, v{vOs+4*s+c}, v{vR+c}")
A(f"s_add_u32 s{sM3_}, s{sM3_}, {CH}")
A(f"s_cmp_lt_u32 s{sM3_}, s{sN}")
A("s_cbranch_scc1 L_chunk")
A(f"v_rcp_f32 v{vMs+1}, v{vMs+1}")
A("s_nop 0")
for c in range(4): A(f"v_mul_f32 v{vR+c}, v{vR+c}, v{vMs+1}")
A(f"v_cvt_pk_bf16_f32 v{vR}, v{vR}, v{vR+1}")
A(f"v_cvt_pk_bf16_f32 v{vR+1}, v{vR+2}, v{vR+3}")
A(f"s_lshr_b32 s{sM2_}, s{sT1}, 1")
A(f"s_lshl_b32 s{sM2_}, s{sM2_}, 12")
A(f"s_and_b32 s{sT1}, s{sT1}, 1")
A(f"s_lshl_b32 s{sT1}, s{sT1}, 5")
A(f"s_lshl_b32 s{sT2}, s{sT2}, 3")
A(f"s_add_u32 s{sM2_}, s{sM2_}, s{sT1}")
A(f"s_add_u32 s{sM2_}, s{sM2_}, s{sT2}")
A(f"v_lshlrev_b32 v{vX}, 8, v{vN}")
A(f"v_lshl_add_u32 v{vX}, v{vG}, 6, v{vX}")
A(f"buffer_store_dwordx2 v[{vR}:{vR+1}], v{vX}, {sr(srdO)}, s{sM2_} offen{OST}")
A(f"s_lshl_b32 s{sT1}, s{sN}, 2")
A(f"s_add_u32 s{sHu}, s{sHu}, s{sT1}")
A(f"s_cmp_lt_u32 s{sHu}, 16")
A("s_cbranch_scc0 L_fin")
A(f"s_lshl_b32 s{sT0}, s{sH}, 5")
A(f"s_add_u32 s{sT0}, s{sT0}, s{sStart}")
A(f"s_mul_i32 s{sT0}, s{sT0}, {REC}")
A("s_branch L_hu")
L("L_fin")
if a.ts:
    A("s_mov_b64 exec, -1")
    TS("end")
    A("s_waitcnt vmcnt(0)")
    A(f"s_lshl_b32 s{sT0}, s2, 2")
    A(f"s_add_u32 s{sT0}, s{sT0}, s{sW}")
    A(f"s_lshl_b32 s{sT0}, s{sT0}, 7")
    A(f"s_add_u32 s{sT0}, s{sT0}, {TS_OFF}")
    A(f"v_lshlrev_b32 v{vX}, 2, v{vLane}")
    A(f"v_cmp_gt_u32 vcc, 32, v{vLane}")
    A(f"s_and_saveexec_b64 s[{sM0_}:{sM0_+1}], vcc")
    A(f"buffer_store_dword v63, v{vX}, {sr(srdW)}, s{sT0} offen")
L("L_end")
A("s_endpgm")

hdr = open("standalone__paged_block_table_kv_pagedattention__sampling.s.ref").read().split("\n")
comments = [l for l in hdr if l.startswith(";") and "@launch" not in l and not l.startswith("; Override") and not l.startswith("; grid=")]
txt = "\n".join(comments) + "\n"
txt += f"; @launch grid=(256,1,1) block=(256,1,1) lds=131072\n"
txt += f""".amdgcn_target "amdgcn-amd-amdhsa--gfx950"
.text
.globl {KN}
.p2align 8
.type {KN},@function
"""
txt += "\n".join(out) + "\n"
txt += f""".section .rodata,"a"
.p2align 6
.amdhsa_kernel {KN}
  .amdhsa_next_free_vgpr {256+NAGPR}
  .amdhsa_next_free_sgpr 102
  .amdhsa_accum_offset 256
  .amdhsa_group_segment_fixed_size 0
  .amdhsa_kernarg_size 64
  .amdhsa_user_sgpr_count 2
  .amdhsa_user_sgpr_kernarg_segment_ptr 1
  .amdhsa_system_sgpr_workgroup_id_x 1
.end_amdhsa_kernel
"""
print(txt)
if a.ts:
    sys.stderr.write("TS: " + ",".join(ts_slots) + "\n")
```

```python
import argparse, sys
ap = argparse.ArgumentParser()
ap.add_argument("--ts", type=int, default=0, help="timestamps")
ap.add_argument("--nt", type=str, default="nt")
ap.add_argument("--st", type=str, default="sc1", help="partial store flags")
ap.add_argument("--ld", type=str, default="sc1", help="partial load flags")
ap.add_argument("--ost", type=str, default="", help="out store flags")
ap.add_argument("--rot", type=int, default=0)
ap.add_argument("--cpf", type=int, default=8, help="code prefetch KB")
ap.add_argument("--sleep", type=int, default=0)
ap.add_argument("--rpf", type=int, default=1, help="prefetch own record lines at start")
ap.add_argument("--tpf", type=int, default=1, help="re-prefetch tail code")
ap.add_argument("--spin", type=int, default=0x40000)
a = ap.parse_args()

KN = "standalone__paged_block_table_kv_pagedattention__sampling_kernel"
out = []
def A(s): out.append("    " + s)
def L(s): out.append(s + ":")
def C(s): out.append("    ; " + s)
NT = (" " + a.nt) if a.nt else ""
ST = (" " + a.st) if a.st else ""
LD = (" " + a.ld) if a.ld else ""
OST = (" " + a.ost) if a.ost else ""

KV_BYTES = 1028*16*8*128*2
REC = 16384
TS_OFF = 8 << 20
WREG = 28672
PBASE = 4*WREG
XMAX = PBASE + 32768
XL = XMAX + 2048
XN = XL + 2048
QBASE = XN + 64
LDS_BYTES = QBASE + 8192

sW, sH, sSlot, sB, sN, sStart, sI, sCl, sCnt, sLim = 20, 21, 22, 23, 24, 25, 26, 27, 28, 29
sT0, sT1, sT2, sT3 = 30, 31, 32, 33
sUni, sC, sR, sP, sLdsW, sA = 34, 35, 36, 37, 38, 39
sE = 40
sSO = 48
srdK, srdV, srdQ, srdX, srdO, srdD, srdW = 56, 60, 64, 68, 72, 76, 80
sM = 84
sGrp, sNonce, sRec, sJ = 92, 93, 94, 95
sCO = 4
sCN = 12
sCB, sDual, sOA, sOB, sRem, sMc = 40, 41, 42, 43, 44, 45
vLane, vG, vN = 1, 2, 3
vKoff = 4; vVoff = 8; vLds = 12; vTok = 16; vNEG = 20
vT = 21
vMc = 30
vM = 32
vTr = 36
vPa = 40; vXw = 41; vXr = 42; vL16 = 43
vTrC = 44
vPC = 48
vRl = 50
vLsq = 52
vNon = 60
vS = 64
vO = 128
vRB = 144
vGr = 208
vLseN = 224
vOo = 226
vCS = 228
def S(i, qt, r=0): return vS + i*8 + qt*4 + r
def O(mt, qt): return vO + (mt*2+qt)*4
aQ = 0; aK = 32; aOne = 64
NAGPR = 68
def vr(b, n=4): return f"v[{b}:{b+n-1}]"
def ar(b, n=4): return f"a[{b}:{b+n-1}]"
def sr(b, n=4): return f"s[{b}:{b+n-1}]"
def sp(b): return f"s[{b}:{b+1}]"

ts_slots = []
def TS(name):
    if not a.ts: return
    idx = len(ts_slots)
    ts_slots.append(name)
    A("s_memrealtime s[100:101]")
    A("s_waitcnt lgkmcnt(0)")
    A(f"v_writelane_b32 v63, s100, {idx}")

def kslot(j): return j % 7
def vslot(j): return (j + 1) % 7
def kdma(j):
    A(f"s_add_u32 m0, s{sLdsW}, {kslot(j)*4096}")
    A(f"s_lshl_b32 s{sSO+j}, s{sE+j}, 15")
    A(f"s_cmp_gt_u32 s{sCnt}, {j}")
    A(f"s_cselect_b32 s{sSO+j}, s{sSO+j}, 0x80000000")
    for jj in range(4):
        A(f"buffer_load_dwordx4 v{vKoff+jj}, {sr(srdK)}, s{sSO+j} offen offset:{jj*1024}{NT} lds")
def vdma(j):
    A(f"s_add_u32 m0, s{sLdsW}, {vslot(j)*4096}")
    A("s_nop 0")
    for jj in range(4):
        A(f"buffer_load_dwordx4 v{vVoff+jj}, {sr(srdV)}, s{sSO+j} offen offset:{jj*1024}{NT} lds")

L(KN)
A("s_cmp_ge_u32 s2, 256")
A("s_cbranch_scc1 L_end")
A("s_load_dwordx16 s[4:19], s[0:1], 0")
if a.cpf:
    A("s_getpc_b64 s[98:99]")
    A("v_lshlrev_b32 v62, 7, v0")
    A(f"v_cmp_gt_u32 vcc, {a.cpf*1024}, v62")
    A("s_and_saveexec_b64 s[96:97], vcc")
    A("s_cbranch_execz L_nocpf")
    A("global_load_dword v58, v62, s[98:99]")
    L("L_nocpf")
    A("s_mov_b64 exec, s[96:97]")
if a.ts:
    A("v_mov_b32 v63, 0")
TS("start")
A(f"v_and_b32 v{vLane}, 63, v0")
A(f"v_lshrrev_b32 v{vT}, 6, v0")
A(f"v_lshrrev_b32 v{vG}, 4, v{vLane}")
A(f"v_readfirstlane_b32 s{sW}, v{vT}")
A(f"v_and_b32 v{vN}, 15, v{vLane}")
if a.rot:
    A(f"s_add_u32 s{sH}, s2, {a.rot}")
    A(f"s_and_b32 s{sH}, s{sH}, 7")
else:
    A(f"s_and_b32 s{sH}, s2, 7")
A(f"s_lshr_b32 s{sSlot}, s2, 3")
vMt = vT+1
vCl = vT+2
vP1 = vT+3
vClm = vT+4
A(f"v_add_u32 v{vT}, 1, v{vLane}")
A(f"v_cvt_f32_u32 v{vT}, v{vT}")
A(f"v_rcp_f32 v{vT}, v{vT}")
A(f"v_lshlrev_b32 v{vT+5}, 2, v{vLane}")
A(f"v_mul_f32 v{vT}, 0x47800000, v{vT}")
A(f"v_cvt_u32_f32 v{vT}, v{vT}")
A(f"v_add_u32 v{vMt}, 1, v{vT}")
for j in range(4):
    A(f"v_add_u32 v{vT+6}, {4*j}, v{vG}")
    A(f"v_xor_b32 v{vT+7}, v{vT+6}, v{vN}")
    A(f"v_lshlrev_b32 v{vT+8}, 11, v{vT+6}")
    if j: A(f"v_subrev_u32 v{vT+8}, {1024*j}, v{vT+8}")
    A(f"v_lshl_add_u32 v{vKoff+j}, v{vT+7}, 4, v{vT+8}")
    A(f"v_and_b32 v{vT+6}, 7, v{vT+6}")
    A(f"v_lshlrev_b32 v{vT+6}, 1, v{vT+6}")
    A(f"v_xor_b32 v{vT+7}, v{vT+6}, v{vN}")
    A(f"v_lshl_add_u32 v{vVoff+j}, v{vT+7}, 4, v{vT+8}")
A("s_waitcnt lgkmcnt(0)")
A(f"s_mov_b32 s{srdX}, s12"); A(f"s_mov_b32 s{srdX+1}, s13"); A(f"s_mov_b32 s{srdX+2}, 32"); A(f"s_mov_b32 s{srdX+3}, 0x20000")
A(f"buffer_load_dword v{vCl}, v{vT+5}, {sr(srdX)}, 0 offen")
srdBT = sM
A(f"s_mov_b32 s{srdBT}, s10"); A(f"s_mov_b32 s{srdBT+1}, s11"); A(f"s_mov_b32 s{srdBT+2}, 4096"); A(f"s_mov_b32 s{srdBT+3}, 0x20000")
A(f"v_lshlrev_b32 v{vT+6}, 6, v{vLane}")
A(f"buffer_load_dword v59, v{vT+6}, {sr(srdBT)}, 0 offen")
A(f"s_mov_b32 s{srdW}, s18"); A(f"s_mov_b32 s{srdW+1}, s19"); A(f"s_mov_b32 s{srdW+2}, 0x10000000"); A(f"s_mov_b32 s{srdW+3}, 0x20000")
A(f"v_lshlrev_b32 v{vL16}, 4, v{vLane}")
A(f"s_lshl_b32 s{sT0}, s{sH}, 5")
A(f"s_add_u32 s{sT1}, s{sT0}, s{sSlot}")
A(f"s_lshl_b32 s{sRec}, s{sT1}, 14")
A(f"s_lshl_b32 s{sT1}, s{sW}, 12")
A(f"s_add_u32 s{sRec}, s{sRec}, s{sT1}")
if a.rpf:
    for u in range(4):
        A(f"buffer_load_dwordx4 {vr(vS+4*u)}, v{vL16}, {sr(srdW)}, s{sRec} offen offset:{u*1024}")
A(f"s_mul_i32 s{sLdsW}, s{sW}, {WREG}")
A(f"v_lshlrev_b32 v{vT+6}, 8, v{vN}")
A(f"v_add_u32 v{vT+6}, s{sLdsW}, v{vT+6}")
for s in range(4):
    A(f"v_add_u32 v{vT+7}, {4*s}, v{vG}")
    A(f"v_xor_b32 v{vT+7}, v{vT+7}, v{vN}")
    A(f"v_lshl_add_u32 v{vLds+s}, v{vT+7}, 4, v{vT+6}")
for r in range(4):
    A(f"v_lshl_add_u32 v{vTok+r}, v{vG}, 2, {r}")
A(f"v_mov_b32 v{vNEG}, 0xf149f2ca")
A(f"s_mov_b32 s{sC}, 0x3e0293ee")
A(f"s_lshl_b32 s{sT0}, s{sH}, 8")
A(f"s_add_u32 s{srdK}, s6, s{sT0}"); A(f"s_addc_u32 s{srdK+1}, s7, 0"); A(f"s_sub_u32 s{srdK+2}, {KV_BYTES}, s{sT0}"); A(f"s_mov_b32 s{srdK+3}, 0x20000")
A(f"s_add_u32 s{srdV}, s8, s{sT0}"); A(f"s_addc_u32 s{srdV+1}, s9, 0"); A(f"s_sub_u32 s{srdV+2}, {KV_BYTES}, s{sT0}"); A(f"s_mov_b32 s{srdV+3}, 0x20000")
vQo = vT+7
A(f"s_lshl_b32 s{sT1}, s{sW}, 3")
for jj in range(2):
    A(f"v_add_u32 v{vT+6}, s{sT1}, v{vG}")
    if jj: A(f"v_add_u32 v{vT+6}, 4, v{vT+6}")
    A(f"v_and_b32 v{vT}, 15, v{vT+6}")
    A(f"v_xor_b32 v{vT}, v{vT}, v{vN}")
    A(f"v_lshlrev_b32 v{vT+6}, 8, v{vT+6}")
    if jj: A(f"v_subrev_u32 v{vT+6}, 1024, v{vT+6}")
    A(f"v_lshl_add_u32 v{vQo+jj}, v{vT}, 4, v{vT+6}")
TS("karg")
A(f"s_waitcnt vmcnt({5 if a.rpf else 1})")
A(f"v_add_u32 v{vClm}, -1, v{vCl}")
A(f"v_min_u32 v{vClm}, 0x7ff, v{vClm}")
A(f"v_lshrrev_b32 v{vP1}, 4, v{vClm}")
A("s_nop 0")
for b in range(8):
    A(f"v_readlane_b32 s{sE+b}, v{vP1}, {b}")
vAcc = vT+5; vTt = vT+6
A(f"v_mul_u32_u24 v{vAcc}, s{sE}, v{vMt}")
A(f"v_lshrrev_b32 v{vAcc}, 16, v{vAcc}")
for b in range(1, 8):
    A(f"v_mul_u32_u24 v{vTt}, s{sE+b}, v{vMt}")
    A(f"v_add_u32_sdwa v{vAcc}, v{vAcc}, v{vTt} dst_sel:DWORD dst_unused:UNUSED_PAD src0_sel:DWORD src1_sel:WORD_1")
A(f"v_cmp_ge_u32 vcc, 24, v{vAcc}")
A("s_nop 1")
A(f"s_ff1_i32_b64 s{sT0}, vcc")
A("s_nop 0")
A(f"v_readlane_b32 s{sT1}, v{vMt}, s{sT0}")
A("s_nop 1")
vNb = vAcc; vInc = vTt
A(f"v_mul_u32_u24 v{vNb}, s{sT1}, v{vP1}")
A(f"v_lshrrev_b32 v{vNb}, 16, v{vNb}")
A(f"v_add_u32 v{vNb}, 1, v{vNb}")
A(f"v_mov_b32 v{vInc}, v{vNb}")
for sh in (1, 2, 4):
    A("s_nop 1")
    A(f"v_add_u32_dpp v{vInc}, v{vInc}, v{vInc} row_shr:{sh} row_mask:0xf bank_mask:0xf bound_ctrl:0")
A(f"v_cmp_lt_u32 vcc, s{sSlot}, v{vInc}")
A("s_nop 1")
A("s_and_b32 vcc_lo, vcc_lo, 0xff")
A("s_cbranch_scc0 L_end")
A(f"s_ff1_i32_b32 s{sB}, vcc_lo")
A("s_nop 0")
A(f"v_readlane_b32 s{sN}, v{vNb}, s{sB}")
A(f"v_readlane_b32 s{sStart}, v{vInc}, s{sB}")
A(f"v_readlane_b32 s{sT2}, v{vP1}, s{sB}")
A(f"v_readlane_b32 s{sCl}, v{vClm}, s{sB}")
A(f"v_readlane_b32 s{sUni}, v{vCl}, s{sB}")
A(f"s_sub_u32 s{sT0}, s{sN}, 1")
A(f"v_readlane_b32 s{sT1}, v{vMt}, s{sT0}")
A(f"s_sub_u32 s{sStart}, s{sStart}, s{sN}")
A(f"s_sub_u32 s{sI}, s{sSlot}, s{sStart}")
A(f"s_add_u32 s{sT2}, s{sT2}, 1")
A(f"s_mul_i32 s{sT1}, s{sT1}, s{sT2}")
A(f"s_mul_i32 s{sT3}, s{sT1}, s{sI}")
A(f"s_add_u32 s{sT1}, s{sT1}, s{sT3}")
A(f"s_lshr_b32 s{sT3}, s{sT3}, 16")
A(f"s_lshr_b32 s{sT1}, s{sT1}, 16")
A(f"s_cmp_eq_u32 s{sI}, s{sT0}")
A(f"s_cselect_b32 s{sT1}, s{sT2}, s{sT1}")
A(f"s_sub_u32 s{sT1}, s{sT1}, s{sT3}")
A(f"s_add_u32 s{sR}, s{sT1}, 7")
A(f"s_lshr_b32 s{sR}, s{sR}, 3")
A(f"s_lshr_b32 s{sT0}, s{sT1}, 2")
A(f"s_and_b32 s{sT1}, s{sT1}, 3")
A(f"s_mul_i32 s{sT2}, s{sW}, s{sT0}")
A(f"s_add_u32 s{sT3}, s{sT3}, s{sT2}")
A(f"s_min_u32 s{sT2}, s{sW}, s{sT1}")
A(f"s_add_u32 s{sT3}, s{sT3}, s{sT2}")
A(f"s_cmp_lt_u32 s{sW}, s{sT1}")
A(f"s_addc_u32 s{sCnt}, s{sT0}, 0")
A(f"s_lshl_b32 s{sT0}, s{sB}, 7")
A(f"s_add_u32 s{sT0}, s{sT0}, s{sT3}")
A(f"s_lshl_b32 s{sT0}, s{sT0}, 2")
A(f"s_buffer_load_dwordx8 s[{sE}:{sE+7}], {sr(srdBT)}, s{sT0}")
A(f"s_add_u32 s{sCl}, s{sCl}, 1")
A(f"s_lshl_b32 s{sT3}, s{sT3}, 4")
A(f"s_sub_i32 s{sLim}, s{sCl}, s{sT3}")
A(f"s_lshl_b32 s{sT2}, s{sCnt}, 4")
A(f"s_min_i32 s{sLim}, s{sLim}, s{sT2}")
A(f"s_lshl_b32 s{sT0}, s{sB}, 16")
A(f"s_lshl_b32 s{sT1}, s{sH}, 13")
A(f"s_add_u32 s{sT0}, s{sT0}, s{sT1}")
A(f"s_add_u32 s{srdQ}, s4, s{sT0}"); A(f"s_addc_u32 s{srdQ+1}, s5, 0"); A(f"s_mov_b32 s{srdQ+2}, 8192"); A(f"s_mov_b32 s{srdQ+3}, 0x20000")
A(f"s_add_u32 s{srdO}, s14, s{sT0}"); A(f"s_addc_u32 s{srdO+1}, s15, 0"); A(f"s_mov_b32 s{srdO+2}, 8192"); A(f"s_mov_b32 s{srdO+3}, 0x20000")
TS("alloc")
A("s_waitcnt lgkmcnt(0)")
kdma(0)
A(f"s_lshl_b32 s{sT1}, s{sW}, 11")
A(f"s_add_u32 m0, s{sT1}, {QBASE}")
A("s_nop 0")
for jj in range(2):
    A(f"buffer_load_dwordx4 v{vQo+jj}, {sr(srdQ)}, 0 offen offset:{jj*1024} lds")
for j in range(1, 5): kdma(j)
TS("k4issued")
A("s_memrealtime s[96:97]")
A(f"s_lshl_b32 s{sGrp}, s{sB}, 3")
A(f"s_add_u32 s{sGrp}, s{sGrp}, s{sH}")
A(f"s_lshl_b32 s{sT0}, s{sGrp}, 2")
A(f"s_cmp_eq_u32 s{sW}, 0")
A(f"s_cselect_b32 s{sT0}, s{sT0}, 0x1000")
A(f"s_mov_b32 s{srdD}, s16"); A(f"s_mov_b32 s{srdD+1}, s17"); A(f"s_mov_b32 s{srdD+2}, 256"); A(f"s_mov_b32 s{srdD+3}, 0x20000")
A(f"v_mov_b32 v{vNon+2}, s{sT0}")
A(f"v_mov_b32 v{vNon+1}, 0")
A("s_waitcnt lgkmcnt(0)")
A(f"s_or_b32 s{sNonce}, s96, 1")
A(f"v_mov_b32 v{vNon}, s{sNonce}")
A("s_mov_b64 exec, 1")
A(f"buffer_atomic_cmpswap v[{vNon}:{vNon+1}], v{vNon+2}, {sr(srdD)}, 0 offen sc0 sc1")
A("s_mov_b64 exec, -1")
A(f"v_lshrrev_b32 v{vT}, 2, v{vLane}")
A(f"v_and_b32 v{vT+1}, 7, v{vT}")
A(f"v_lshlrev_b32 v{vT+1}, 1, v{vT+1}")
A(f"v_bfe_u32 v{vT+2}, v{vLane}, 1, 1")
A(f"s_lshl_b32 s{sT0}, s{sW}, 2")
A(f"v_add_u32 v{vT+2}, s{sT0}, v{vT+2}")
A(f"v_and_b32 v{vT+3}, 1, v{vLane}")
A(f"v_lshlrev_b32 v{vT+3}, 3, v{vT+3}")
A(f"v_lshl_add_u32 v{vT+3}, v{vT}, 8, v{vT+3}")
for mt in range(2):
    A(f"v_add_u32 v{vT+4}, {2*mt}, v{vT+2}")
    A(f"v_xor_b32 v{vT+4}, v{vT+4}, v{vT+1}")
    A(f"v_lshl_add_u32 v{vTr+mt}, v{vT+4}, 4, v{vT+3}")
    A(f"v_add_u32 v{vTr+2+mt}, {2*WREG}, v{vTr+mt}")
A(f"v_add_u32 v{vPa}, {PBASE}, v{vL16}")
A(f"s_lshl_b32 s{sT0}, s{sW}, 2")
A(f"s_add_u32 s{sT0}, s{sT0}, {XMAX}")
A(f"v_add_u32 v{vXw}, s{sT0}, v{vL16}")
A(f"v_add_u32 v{vXr}, {XMAX}, v{vL16}")
A(f"v_mov_b32 v{vT}, 0x3f803f80")
for r in range(4): A(f"v_accvgpr_write_b32 a{aOne+r}, v{vT}")
A(f"s_sub_u32 s{sT0}, {QBASE}, s{sLdsW}")
for s in range(4): A(f"v_add_u32 v{vT+s}, s{sT0}, v{vLds+s}")

nxt = ["K5", "K6", "K7", "V0", "V1", "V2", "V3", "V4"]
for j in range(8):
    kb = aK + (j & 1)*16
    A(f"s_waitcnt vmcnt({17 if j < 5 else 16})")
    if j == 0:
        A("s_barrier")
        for qt in range(2):
            for s in range(4):
                A(f"ds_read_b128 {ar(aQ+(qt*4+s)*4)}, v{vT+s} offset:{qt*4096}")
    for s in range(4):
        A(f"ds_read_b128 {ar(kb+4*s)}, v{vLds+s} offset:{kslot(j)*4096}")
    A(f"s_sub_i32 s{sT0}, s{sLim}, {16*j}")
    for r in range(4):
        A(f"v_cmp_gt_i32 {sp(sM+2*r)}, s{sT0}, v{vTok+r}")
    for r in range(4):
        A(f"v_cndmask_b32 v{vM+r}, v{vNEG}, 0, {sp(sM+2*r)}")
    if j == 0:
        A("s_waitcnt lgkmcnt(4)")
        A(f"s_cmp_gt_i32 s{sUni}, 0")
        A("s_cbranch_scc1 L_qok")
        A(f"v_mov_b32 v{vT}, 0")
        for r in range(32): A(f"v_accvgpr_write_b32 a{aQ+r}, v{vT}")
        L("L_qok")
    if j == 5:
        A(f"v_readfirstlane_b32 s{sT1}, v{vNon}")
    A("s_nop 0")
    for s in range(4):
        A(f"s_waitcnt lgkmcnt({3-s})")
        for qt in range(2):
            c = vr(vM) if s == 0 else vr(S(j,qt))
            A(f"v_mfma_f32_16x16x32_bf16 {vr(S(j,qt))}, {ar(kb+4*s)}, {ar(aQ+(qt*4+s)*4)}, {c}")
    if j == 5:
        A(f"s_cmp_eq_u32 s{sT1}, 0")
        A(f"s_cselect_b32 s{sNonce}, s{sNonce}, s{sT1}")
    nm = nxt[j]
    if nm[0] == "K": kdma(int(nm[1]))
    else: vdma(int(nm[1]))
    if j in (0, 3, 7): TS(f"k{j}")
for qt in range(2):
    regs = [S(i,qt,r) for i in range(8) for r in range(4)]
    m = vMc+qt
    A(f"v_max3_f32 v{m}, v{regs[0]}, v{regs[1]}, v{regs[2]}")
    k = 3
    while k + 1 < len(regs):
        A(f"v_max3_f32 v{m}, v{m}, v{regs[k]}, v{regs[k+1]}")
        k += 2
    if k < len(regs):
        A(f"v_max_f32 v{m}, v{m}, v{regs[k]}")
for op in ("v_permlane16_swap_b32", "v_permlane32_swap_b32"):
    for qt in range(2): A(f"v_mov_b32 v{vT+qt}, v{vMc+qt}")
    A("s_nop 1")
    for qt in range(2): A(f"{op} v{vMc+qt}, v{vT+qt}")
    for qt in range(2): A(f"v_max_f32 v{vMc+qt}, v{vMc+qt}, v{vT+qt}")
for qt in range(2):
    A(f"ds_write_b32 v{vXw}, v{vMc+qt} offset:{qt*1024}")
A(f"s_lshl_b32 s{sT0}, s{sW}, 2")
A(f"s_add_u32 s{sT0}, s{sT0}, {XN}")
A(f"v_mov_b32 v{vT+2}, s{sT0}")
A(f"v_mov_b32 v{vT+3}, s{sNonce}")
A("s_mov_b64 exec, 1")
A(f"ds_write_b32 v{vT+2}, v{vT+3}")
A("s_mov_b64 exec, -1")
vdma(5)
A("s_waitcnt lgkmcnt(0)")
A("s_barrier")
TS("bar1")
for qt in range(2):
    A(f"ds_read_b128 {vr(vRB+4*qt)}, v{vXr} offset:{qt*1024}")
A(f"v_mov_b32 v{vT+2}, {XN}")
A(f"ds_read_b32 v{vT+3}, v{vT+2}")
A("s_waitcnt lgkmcnt(1)")
for qt in range(2):
    b = vRB+4*qt
    A(f"v_max3_f32 v{vMc+qt}, v{b}, v{b+1}, v{b+2}")
for qt in range(2):
    A(f"v_max_f32 v{vMc+qt}, v{vMc+qt}, v{vRB+4*qt+3}")
for qt in range(2):
    A(f"v_mul_f32 v{vMc+qt}, s{sC}, v{vMc+qt}")
A("s_waitcnt lgkmcnt(0)")
A(f"v_readfirstlane_b32 s{sNonce}, v{vT+3}")
A(f"s_lshl_b32 s{sT0}, s{sW}, 13")
A(f"v_add_u32 v{vT+4}, s{sT0}, v{vPa}")
for p in range(4):
    for qt in range(2):
        for i in (2*p, 2*p+1):
            for r in range(4):
                A(f"v_fma_f32 v{S(i,qt,r)}, v{S(i,qt,r)}, s{sC}, -v{vMc+qt}")
            for r in range(4):
                A(f"v_exp_f32 v{S(i,qt,r)}, v{S(i,qt,r)}")
        d = S(2*p,qt)
        A(f"v_cvt_pk_bf16_f32 v{d}, v{S(2*p,qt,0)}, v{S(2*p,qt,1)}")
        A(f"v_cvt_pk_bf16_f32 v{d+1}, v{S(2*p,qt,2)}, v{S(2*p,qt,3)}")
        A(f"v_cvt_pk_bf16_f32 v{d+2}, v{S(2*p+1,qt,0)}, v{S(2*p+1,qt,1)}")
        A(f"v_cvt_pk_bf16_f32 v{d+3}, v{S(2*p+1,qt,2)}, v{S(2*p+1,qt,3)}")
        A(f"ds_write_b128 v{vT+4}, {vr(d)} offset:{p*2048+qt*1024}")
        if p > 0 or qt > 0:
            pp, pq = (p, 0) if qt == 1 else (p-1, 1)
            c = "0" if pp == 0 else vr(vLsq+4*pq)
            A(f"v_mfma_f32_16x16x32_bf16 {vr(vLsq+4*pq)}, {ar(aOne)}, {vr(S(2*pp,pq))}, {c}")
    if p == 1:
        vdma(6)
        if a.tpf:
            A("s_getpc_b64 s[98:99]")
            L("L_tpf")
            A(f"v_lshlrev_b32 v{vT}, 7, v{vLane}")
            A(f"v_min_u32 v{vT}, L_end-L_tpf, v{vT}")
            A(f"global_load_dword v{vT+1}, v{vT}, s[98:99]")
A("s_nop 1")
A(f"v_mfma_f32_16x16x32_bf16 {vr(vLsq+4)}, {ar(aOne)}, {vr(S(6,1))}, {vr(vLsq+4)}")
A(f"s_lshl_b32 s{sT0}, s{sH}, 5")
A(f"s_lshl_b32 s{sT1}, s{sW}, 12")
A("s_nop 2")
A(f"s_add_u32 s{sT0}, s{sT0}, s{sStart}")
A(f"s_lshl_b32 s{sGrp}, s{sT0}, 14")
A(f"s_add_u32 s{sGrp}, s{sGrp}, s{sT1}")
A("s_nop 3")
A(f"v_add_u32 v{vT+4}, {XL-XMAX}, v{vXw}")
for qt in range(2):
    A(f"ds_write_b32 v{vT+4}, v{vLsq+4*qt} offset:{qt*1024}")
A("s_waitcnt lgkmcnt(0)")
A("s_barrier")
TS("bar2")
for qt in range(2):
    A(f"ds_read_b128 {vr(vRB+4*qt)}, v{vXr} offset:{XL-XMAX+qt*1024}")
A(f"s_mov_b32 s{sP}, 0")
A(f"s_mov_b32 s{sA}, 4096")
for k in range(4): A(f"v_add_u32 v{vTrC+k}, 4096, v{vTr+k}")
A(f"v_mov_b32 v{vPC}, v{vPa}")
A("s_waitcnt lgkmcnt(0)")
for qt in range(2):
    b = vRB+4*qt
    A(f"v_add_f32 v{b}, v{b}, v{b+1}")
    A(f"v_add_f32 v{b+2}, v{b+2}, v{b+3}")
for qt in range(2):
    b = vRB+4*qt
    A(f"v_add_f32 v{b}, v{b}, v{b+2}")
for qt in range(2):
    b = vRB+4*qt
    A(f"v_rcp_f32 v{vRl+qt}, v{b}")
    A(f"v_log_f32 v{b+1}, v{b}")
A("s_nop 0")
for qt in range(2):
    b = vRB+4*qt
    A(f"v_add_f32 v{b+1}, v{b+1}, v{vMc+qt}")
for mt in range(2):
    for qt in range(2):
        A(f"v_mov_b32 v{vGr+(mt*2+qt)*4+2}, v{vRB+4*qt+1}")
for qt in range(2):
    A(f"v_xor_b32 v{vLseN+qt}, s{sNonce}, v{vRB+4*qt+1}")
for r in range(16): A(f"v_mov_b32 v{vO+r}, 0")
A(f"v_lshlrev_b32 v{vOo}, 8, v{vN}")
A(f"v_lshl_add_u32 v{vOo}, v{vG}, 3, v{vOo}")
A(f"s_lshl_b32 s{sT0}, s{sI}, 10")
A(f"s_add_u32 s{sCB}, s{sT0}, s{sGrp}")
A(f"s_add_u32 s{sT1}, s{sI}, s{sN}")
A(f"s_cmp_lt_u32 s{sT1}, 4")
A(f"s_cselect_b32 s{sDual}, 1, 0")
A(f"s_lshl_b32 s{sT2}, s{sT1}, 10")
A(f"s_add_u32 s{sT2}, s{sT2}, s{sGrp}")
A(f"s_sub_u32 s{sT2}, s{sT2}, {4*REC}")
A(f"s_add_u32 s{sT3}, s{sN}, 4")
A(f"s_cmp_lg_u32 s{sDual}, 0")
A(f"s_cselect_b32 s{sT2}, s{sT2}, s{sCB}")
A(f"s_cselect_b32 s{sT3}, s{sT3}, s{sN}")
for s_ in range(8):
    b = sCB if s_ < 4 else sT2
    n_ = sN if s_ < 4 else sT3
    A(f"s_add_u32 s{sT0}, s{b}, {s_*REC}")
    A(f"s_cmp_gt_u32 s{n_}, {s_}")
    A(f"s_cselect_b32 s{sCO+s_}, s{sT0}, 0x80000000")
    A(f"s_cselect_b32 s{sCN+s_}, s{sNonce}, 0")
def outoff(dst, j):
    A(f"s_and_b32 s{sT0}, s{j}, 1")
    A(f"s_lshl_b32 s{sT0}, s{sT0}, 12")
    A(f"s_lshr_b32 s{dst}, s{j}, 1")
    A(f"s_lshl_b32 s{dst}, s{dst}, 5")
    A(f"s_add_u32 s{dst}, s{dst}, s{sT0}")
    A(f"s_lshl_b32 s{sT0}, s{sW}, 6")
    A(f"s_add_u32 s{dst}, s{dst}, s{sT0}")
outoff(sOA, sI)
outoff(sOB, sT1)
A(f"s_mov_b32 s{sRem}, s{sN}")
A(f"s_min_u32 s{sMc}, s{sN}, 8")
A(f"v_mov_b32 v{vCS+4}, v{vNEG}")
A(f"v_mov_b32 v{vCS+5}, 0")
for c in range(4): A(f"v_mov_b32 v{vCS+c}, 0")
L("L_round")
A(f"s_add_u32 s{sT0}, s{sP}, 1")
A(f"s_cmp_eq_u32 s{sT0}, s{sR}")
A("s_cbranch_scc1 L_w0")
A(f"s_cmp_eq_u32 s{sP}, 0")
A("s_cbranch_scc1 L_w20")
A(f"s_cmp_eq_u32 s{sP}, 1")
A("s_cbranch_scc1 L_w12")
A(f"s_waitcnt vmcnt({8+a.tpf})")
A("s_branch L_wd")
L("L_w20")
A(f"s_waitcnt vmcnt({20+a.tpf})")
A("s_branch L_wd")
L("L_w12")
A(f"s_waitcnt vmcnt({12+a.tpf})")
A("s_branch L_wd")
L("L_w0")
A("s_waitcnt vmcnt(0)")
L("L_wd")
A("s_barrier")
def rd(w_):
    b = vRB + 16*w_
    for qt in range(2):
        A(f"ds_read_b128 {vr(b+4*qt)}, v{vPC} offset:{w_*8192+qt*1024}")
    for mt in range(2):
        for hh in range(2):
            A(f"ds_read_b64_tr_b16 {vr(b+8+4*mt+2*hh, 2)}, v{vTrC+(w_>>1)*2+mt} offset:{(w_&1)*WREG+hh*4096}")
def mm(w_):
    b = vRB + 16*w_
    for mt in range(2):
        for qt in range(2):
            A(f"v_mfma_f32_16x16x32_bf16 {vr(O(mt,qt))}, {vr(b+8+4*mt)}, {vr(b+4*qt)}, {vr(O(mt,qt))}")
rd(0); rd(1)
A(f"s_cmp_lg_u32 s{sP}, 1")
A("s_cbranch_scc1 L_nov7")
vdma(7)
L("L_nov7")
A("s_waitcnt lgkmcnt(6)")
rd(2); mm(0)
A("s_waitcnt lgkmcnt(6)")
rd(3); mm(1)
A(f"s_add_u32 s{sA}, s{sA}, 8192")
A(f"s_cmp_ge_u32 s{sA}, {WREG}")
A(f"s_cselect_b32 s{sT0}, {WREG}, 0")
A(f"s_sub_u32 s{sA}, s{sA}, s{sT0}")
A("s_waitcnt lgkmcnt(6)")
mm(2)
for k in range(4): A(f"v_add_u32 v{vTrC+k}, s{sA}, v{vTr+k}")
A(f"v_add_u32 v{vPC}, 2048, v{vPC}")
A("s_waitcnt lgkmcnt(0)")
mm(3)
A(f"s_add_u32 s{sP}, s{sP}, 1")
A(f"s_cmp_lt_u32 s{sP}, s{sR}")
A("s_cbranch_scc1 L_round")
TS("pv")
A("s_nop 4")
for mt in range(2):
    for qt in range(2):
        o = O(mt,qt); g = vGr+(mt*2+qt)*4
        for r in range(4): A(f"v_mul_f32 v{o+r}, v{o+r}, v{vRl+qt}")
        A(f"v_cvt_pk_bf16_f32 v{g}, v{o}, v{o+1}")
        A(f"v_cvt_pk_bf16_f32 v{g+1}, v{o+2}, v{o+3}")
        A(f"v_bitop3_b32 v{g+3}, v{g}, v{g+1}, v{vLseN+qt} bitop3:0x96")
        A(f"buffer_store_dwordx4 {vr(g)}, v{vL16}, {sr(srdW)}, s{sRec} offen offset:{(mt*2+qt)*1024}{ST}")
TS("stored")
vAcc = vCS; vMx = vCS+4; vW = vCS+5; vTmp = vCS+6
vSrc = vRB
A(f"s_cmp_eq_u32 s{sN}, 1")
A("s_cbranch_scc1 L_direct")
A(f"s_cmp_ge_u32 s{sI}, 4")
A("s_cbranch_scc1 L_fin")
A(f"s_mov_b32 s{sT2}, {a.spin}")
L("L_poll")
for s in range(8):
    A(f"buffer_load_dwordx4 {vr(vSrc+4*s)}, v{vL16}, {sr(srdW)}, s{sCO+s} offen{LD}")
if a.ts:
    A(f"s_cmp_eq_u32 s{sT2}, {a.spin}")
    A("s_cbranch_scc0 L_ts1")
    TS("iss1")
    L("L_ts1")
A("s_waitcnt vmcnt(0)")
if a.ts:
    A(f"s_cmp_eq_u32 s{sT2}, {a.spin}")
    A("s_cbranch_scc0 L_ts2")
    TS("ld1")
    L("L_ts2")
for s in range(8):
    g = vSrc+4*s
    A(f"v_bitop3_b32 v{vTmp+(s&1)}, v{g}, v{g+1}, v{g+2} bitop3:0x96")
    A(f"v_bitop3_b32 v{vTmp+(s&1)}, v{vTmp+(s&1)}, v{g+3}, s{sCN+s} bitop3:0x96")
    if s == 1: A(f"v_or_b32 v{vTmp+2}, v{vTmp}, v{vTmp+1}")
    elif s & 1: A(f"v_or3_b32 v{vTmp+2}, v{vTmp+2}, v{vTmp}, v{vTmp+1}")
A(f"v_cmp_eq_u32 vcc, 0, v{vTmp+2}")
A(f"s_sub_u32 s{sT2}, s{sT2}, 1")
A("s_cbranch_scc1 L_ok")
A("s_cmp_eq_u64 vcc, exec")
if a.sleep:
    A("s_cbranch_scc1 L_ok")
    A(f"s_sleep {a.sleep}")
    A("s_branch L_poll")
else:
    A("s_cbranch_scc0 L_poll")
L("L_ok")
TS("polled")
if a.ts:
    ts_slots.append("npoll")
    A(f"s_sub_u32 s100, {a.spin}, s{sT2}")
    A(f"v_writelane_b32 v63, s100, {len(ts_slots)-1}")
L("L_merge")
A(f"v_mov_b32 v{vTmp}, v{vMx}")
for s in range(8):
    if s:
        A(f"s_cmp_le_u32 s{sMc}, {s}")
        A("s_cbranch_scc1 L_mx")
    A(f"v_max_f32 v{vTmp}, v{vTmp}, v{vSrc+4*s+2}")
L("L_mx")
A(f"v_sub_f32 v{vTmp+1}, v{vMx}, v{vTmp}")
A(f"v_exp_f32 v{vTmp+1}, v{vTmp+1}")
A(f"v_mov_b32 v{vMx}, v{vTmp}")
A(f"v_mul_f32 v{vW}, v{vW}, v{vTmp+1}")
for c in range(4): A(f"v_mul_f32 v{vAcc+c}, v{vAcc+c}, v{vTmp+1}")
for s in range(8):
    if s:
        A(f"s_cmp_le_u32 s{sMc}, {s}")
        A("s_cbranch_scc1 L_mg")
    g = vSrc+4*s
    A(f"v_sub_f32 v{g+2}, v{g+2}, v{vMx}")
    A(f"v_exp_f32 v{g+2}, v{g+2}")
    A(f"v_lshlrev_b32 v{vTmp}, 16, v{g}")
    A(f"v_and_b32 v{g}, 0xffff0000, v{g}")
    A(f"v_lshlrev_b32 v{vTmp+1}, 16, v{g+1}")
    A(f"v_and_b32 v{g+1}, 0xffff0000, v{g+1}")
    A(f"v_add_f32 v{vW}, v{vW}, v{g+2}")
    A(f"v_fma_f32 v{vAcc}, v{g+2}, v{vTmp}, v{vAcc}")
    A(f"v_fma_f32 v{vAcc+1}, v{g+2}, v{g}, v{vAcc+1}")
    A(f"v_fma_f32 v{vAcc+2}, v{g+2}, v{vTmp+1}, v{vAcc+2}")
    A(f"v_fma_f32 v{vAcc+3}, v{g+2}, v{g+1}, v{vAcc+3}")
L("L_mg")
A(f"s_cmp_gt_u32 s{sRem}, 8")
A("s_cbranch_scc1 L_more")
A(f"v_rcp_f32 v{vW}, v{vW}")
A(f"s_cmp_lg_u32 s{sDual}, 0")
for c in range(4): A(f"v_mul_f32 v{vAcc+c}, v{vAcc+c}, v{vW}")
A(f"v_cvt_pk_bf16_f32 v{vAcc}, v{vAcc}, v{vAcc+1}")
A(f"v_cvt_pk_bf16_f32 v{vAcc+1}, v{vAcc+2}, v{vAcc+3}")
A(f"buffer_store_dwordx2 {vr(vAcc,2)}, v{vOo}, {sr(srdO)}, s{sOA} offen{OST}")
A("s_cbranch_scc0 L_fin")
for s in range(3):
    for c in range(4): A(f"v_mov_b32 v{vSrc+4*s+c}, v{vSrc+16+4*s+c}")
A(f"s_mov_b32 s{sDual}, 0")
A(f"s_mov_b32 s{sOA}, s{sOB}")
A(f"v_mov_b32 v{vMx}, v{vNEG}")
A(f"v_mov_b32 v{vW}, 0")
for c in range(4): A(f"v_mov_b32 v{vAcc+c}, 0")
A("s_branch L_merge")
L("L_more")
A(f"s_sub_u32 s{sRem}, s{sRem}, 8")
A(f"s_min_u32 s{sMc}, s{sRem}, 8")
for s in range(8):
    A(f"s_add_u32 s{sT0}, s{sCB}, {(8+s)*REC}")
    A(f"s_cmp_gt_u32 s{sRem}, {s}")
    A(f"s_cselect_b32 s{sCO+s}, s{sT0}, 0x80000000")
    A(f"s_cselect_b32 s{sCN+s}, s{sNonce}, 0")
A(f"s_add_u32 s{sCB}, s{sCB}, {8*REC}")
A(f"s_mov_b32 s{sT2}, {a.spin}")
A("s_branch L_poll")
L("L_direct")
for mt in range(2):
    for qt in range(2):
        g = vGr+(mt*2+qt)*4
        A(f"s_lshl_b32 s{sT0}, s{sW}, 6")
        A(f"s_add_u32 s{sT0}, s{sT0}, {qt*4096+mt*32}")
        A(f"buffer_store_dwordx2 {vr(g,2)}, v{vOo}, {sr(srdO)}, s{sT0} offen{OST}")
L("L_fin")
if a.ts:
    TS("end")
    A("s_waitcnt vmcnt(0)")
    A(f"s_lshl_b32 s{sT0}, s2, 2")
    A(f"s_add_u32 s{sT0}, s{sT0}, s{sW}")
    A(f"s_lshl_b32 s{sT0}, s{sT0}, 7")
    A(f"s_add_u32 s{sT0}, s{sT0}, {TS_OFF}")
    A(f"v_lshlrev_b32 v{vT}, 2, v{vLane}")
    A(f"v_cmp_gt_u32 vcc, 32, v{vLane}")
    A(f"s_and_saveexec_b64 {sp(sM)}, vcc")
    A(f"buffer_store_dword v63, v{vT}, {sr(srdW)}, s{sT0} offen")
L("L_end")
A("s_endpgm")

hdr = open("standalone__paged_block_table_kv_pagedattention__sampling.s.ref").read().split("\n")
comments = [l for l in hdr if l.startswith(";") and "@launch" not in l and not l.startswith("; Override") and not l.startswith("; grid=")]
txt = "\n".join(comments) + "\n"
txt += f"; @launch grid=(256,1,1) block=(256,1,1) lds={LDS_BYTES}\n"
txt += f""".amdgcn_target "amdgcn-amd-amdhsa--gfx950"
.text
.globl {KN}
.p2align 8
.type {KN},@function
"""
txt += "\n".join(out) + "\n"
txt += f""".section .rodata,"a"
.p2align 6
.amdhsa_kernel {KN}
  .amdhsa_next_free_vgpr {256+NAGPR}
  .amdhsa_next_free_sgpr 102
  .amdhsa_accum_offset 256
  .amdhsa_group_segment_fixed_size 0
  .amdhsa_kernarg_size 64
  .amdhsa_user_sgpr_count 2
  .amdhsa_user_sgpr_kernarg_segment_ptr 1
  .amdhsa_system_sgpr_workgroup_id_x 1
.end_amdhsa_kernel
"""
print(txt)
if a.ts:
    sys.stderr.write("TS: " + ",".join(ts_slots) + "\n")
```

```python
import argparse, sys
ap = argparse.ArgumentParser()
ap.add_argument("--ts", type=int, default=0, help="timestamps")
ap.add_argument("--nt", type=str, default="nt")
ap.add_argument("--st", type=str, default="sc1", help="partial store flags")
ap.add_argument("--ld", type=str, default="sc1", help="partial load flags")
ap.add_argument("--ost", type=str, default="", help="out store flags")
ap.add_argument("--rot", type=int, default=0)
ap.add_argument("--cpf", type=int, default=8, help="code prefetch KB")
ap.add_argument("--sleep", type=int, default=0)
ap.add_argument("--rpf", type=int, default=1, help="prefetch own record lines at start")
ap.add_argument("--rst", type=str, default="sc1")
ap.add_argument("--perm", type=str, default="")
ap.add_argument("--lad", type=int, default=1, help="ladder instead of dummy loads in the poll")
ap.add_argument("--fast", type=int, default=1, help="plain stores when the whole group sits on this XCD")
ap.add_argument("--tpf", type=int, default=1, help="re-prefetch tail code")
ap.add_argument("--spin", type=int, default=0x40000)
a = ap.parse_args()

KN = "standalone__paged_block_table_kv_pagedattention__sampling_kernel"
out = []
def A(s): out.append("    " + s)
def L(s): out.append(s + ":")
def C(s): out.append("    ; " + s)
NT = (" " + a.nt) if a.nt else ""
ST = (" " + a.st) if a.st else ""
LD = (" " + a.ld) if a.ld else ""
OST = (" " + a.ost) if a.ost else ""
RST = (" " + a.rst) if a.rst else ""

KV_BYTES = 1028*16*8*128*2
REC = 16384
XT_OFF = 6 << 20
TS_OFF = 8 << 20
WREG = 28672
PBASE = 4*WREG
XMAX = PBASE + 32768
XL = XMAX + 2048
XN = XL + 2048
QBASE = XN + 64
LDS_BYTES = QBASE + 8192

sW, sH, sSlot, sB, sN, sStart, sI, sCl, sCnt, sLim = 20, 21, 22, 23, 24, 25, 26, 27, 28, 29
sT0, sT1, sT2, sT3 = 30, 31, 32, 33
sUni, sC, sR, sP, sLdsW, sA = 34, 35, 36, 37, 38, 39
sE = 40
sSO = 48
srdK, srdV, srdQ, srdX, srdO, srdD, srdW = 56, 60, 64, 68, 72, 76, 80
sM = 84
sGrp, sNonce, sRec, sJ = 92, 93, 94, 95
sCO = 4
sCN = 12
sCB, sDual, sOA, sOB, sRem, sMc, sHiN = 40, 41, 42, 43, 44, 45, 46
sXTg, sTag = 95, 3
vLane, vG, vN = 1, 2, 3
vKoff = 4; vVoff = 8; vLds = 12; vTok = 16; vNEG = 20
vT = 21
vMc = 30
vM = 32
vTr = 36
vPa = 40; vXw = 41; vXr = 42; vL16 = 43
vTrC = 44
vPC = 48
vRl = 50
vLsq = 52
vNon = 60
vS = 64
vO = 128
vRB = 144
vGr = 208
vLseN = 224
vTg = 227
vOo = 226
vCS = 228
def S(i, qt, r=0): return vS + i*8 + qt*4 + r
def O(mt, qt): return vO + (mt*2+qt)*4
aQ = 0; aK = 32; aOne = 64
NAGPR = 68
def vr(b, n=4): return f"v[{b}:{b+n-1}]"
def ar(b, n=4): return f"a[{b}:{b+n-1}]"
def sr(b, n=4): return f"s[{b}:{b+n-1}]"
def sp(b): return f"s[{b}:{b+1}]"

ts_slots = []
def TS(name):
    if not a.ts: return
    idx = len(ts_slots)
    ts_slots.append(name)
    A("s_memrealtime s[100:101]")
    A("s_waitcnt lgkmcnt(0)")
    A(f"v_writelane_b32 v63, s100, {idx}")

def TS2(name):
    if a.ts >= 2: TS(name)
def kslot(j): return j % 7
def vslot(j): return (j + 1) % 7
def kdma(j):
    A(f"s_add_u32 m0, s{sLdsW}, {kslot(j)*4096}")
    A(f"s_lshl_b32 s{sSO+j}, s{sE+j}, 15")
    A(f"s_cmp_gt_u32 s{sCnt}, {j}")
    A(f"s_cselect_b32 s{sSO+j}, s{sSO+j}, 0x80000000")
    for jj in range(4):
        A(f"buffer_load_dwordx4 v{vKoff+jj}, {sr(srdK)}, s{sSO+j} offen offset:{jj*1024}{NT} lds")
def vdma(j):
    A(f"s_add_u32 m0, s{sLdsW}, {vslot(j)*4096}")
    A("s_nop 0")
    for jj in range(4):
        A(f"buffer_load_dwordx4 v{vVoff+jj}, {sr(srdV)}, s{sSO+j} offen offset:{jj*1024}{NT} lds")

L(KN)
A("s_cmp_ge_u32 s2, 256")
A("s_cbranch_scc1 L_end")
A("s_load_dwordx16 s[4:19], s[0:1], 0")
if a.cpf:
    A("s_getpc_b64 s[98:99]")
    A("v_lshlrev_b32 v62, 7, v0")
    A(f"v_cmp_gt_u32 vcc, {a.cpf*1024}, v62")
    A("s_and_saveexec_b64 s[96:97], vcc")
    A("s_cbranch_execz L_nocpf")
    A("global_load_dword v58, v62, s[98:99]")
    L("L_nocpf")
    A("s_mov_b64 exec, s[96:97]")
if a.ts:
    A("v_mov_b32 v63, 0")
TS("start")
A(f"v_and_b32 v{vLane}, 63, v0")
A(f"v_lshrrev_b32 v{vT}, 6, v0")
A(f"v_lshrrev_b32 v{vG}, 4, v{vLane}")
A(f"v_readfirstlane_b32 s{sW}, v{vT}")
A(f"v_and_b32 v{vN}, 15, v{vLane}")
if a.perm:
    A(f"s_and_b32 s{sH}, s2, 7")
    A(f"s_lshl_b32 s{sH}, s{sH}, 2")
    A(f"s_lshr_b32 s{sH}, {a.perm}, s{sH}")
    A(f"s_and_b32 s{sH}, s{sH}, 7")
elif a.rot:
    A(f"s_add_u32 s{sH}, s2, {a.rot}")
    A(f"s_and_b32 s{sH}, s{sH}, 7")
else:
    A(f"s_and_b32 s{sH}, s2, 7")
A(f"s_lshr_b32 s{sSlot}, s2, 3")
vMt = vT+1
vCl = vT+2
vP1 = vT+3
vClm = vT+4
A(f"v_add_u32 v{vT}, 1, v{vLane}")
A(f"v_cvt_f32_u32 v{vT}, v{vT}")
A(f"v_rcp_f32 v{vT}, v{vT}")
A(f"v_lshlrev_b32 v{vT+5}, 2, v{vLane}")
A(f"v_mul_f32 v{vT}, 0x47800000, v{vT}")
A(f"v_cvt_u32_f32 v{vT}, v{vT}")
A(f"v_add_u32 v{vMt}, 1, v{vT}")
for j in range(4):
    A(f"v_add_u32 v{vT+6}, {4*j}, v{vG}")
    A(f"v_xor_b32 v{vT+7}, v{vT+6}, v{vN}")
    A(f"v_lshlrev_b32 v{vT+8}, 11, v{vT+6}")
    if j: A(f"v_subrev_u32 v{vT+8}, {1024*j}, v{vT+8}")
    A(f"v_lshl_add_u32 v{vKoff+j}, v{vT+7}, 4, v{vT+8}")
    A(f"v_and_b32 v{vT+6}, 7, v{vT+6}")
    A(f"v_lshlrev_b32 v{vT+6}, 1, v{vT+6}")
    A(f"v_xor_b32 v{vT+7}, v{vT+6}, v{vN}")
    A(f"v_lshl_add_u32 v{vVoff+j}, v{vT+7}, 4, v{vT+8}")
TS2("preka")
A("s_waitcnt lgkmcnt(0)")
TS2("ka")
A(f"s_mov_b32 s{srdX}, s12"); A(f"s_mov_b32 s{srdX+1}, s13"); A(f"s_mov_b32 s{srdX+2}, 32"); A(f"s_mov_b32 s{srdX+3}, 0x20000")
A(f"buffer_load_dword v{vCl}, v{vT+5}, {sr(srdX)}, 0 offen")
srdBT = sM
A(f"s_mov_b32 s{srdBT}, s10"); A(f"s_mov_b32 s{srdBT+1}, s11"); A(f"s_mov_b32 s{srdBT+2}, 4096"); A(f"s_mov_b32 s{srdBT+3}, 0x20000")
A(f"v_lshlrev_b32 v{vT+6}, 6, v{vLane}")
A(f"buffer_load_dword v59, v{vT+6}, {sr(srdBT)}, 0 offen")
A(f"s_mov_b32 s{srdW}, s18"); A(f"s_mov_b32 s{srdW+1}, s19"); A(f"s_mov_b32 s{srdW+2}, 0x10000000"); A(f"s_mov_b32 s{srdW+3}, 0x20000")
A(f"v_lshlrev_b32 v{vL16}, 4, v{vLane}")
A(f"s_lshl_b32 s{sT0}, s{sH}, 5")
A(f"s_add_u32 s{sT1}, s{sT0}, s{sSlot}")
A(f"s_lshl_b32 s{sRec}, s{sT1}, 14")
A(f"s_lshl_b32 s{sT1}, s{sW}, 12")
A(f"s_add_u32 s{sRec}, s{sRec}, s{sT1}")
if a.rpf == 1:
    for u in range(4):
        A(f"buffer_load_dwordx4 {vr(vS+4*u)}, v{vL16}, {sr(srdW)}, s{sRec} offen offset:{u*1024}")
elif a.rpf == 2:
    for c in range(4): A(f"v_mov_b32 v{vS+c}, 0")
    for u in range(4):
        A(f"buffer_store_dwordx4 {vr(vS)}, v{vL16}, {sr(srdW)}, s{sRec} offen offset:{u*1024}{RST}")
A(f"s_mul_i32 s{sLdsW}, s{sW}, {WREG}")
A(f"v_lshlrev_b32 v{vT+6}, 8, v{vN}")
A(f"v_add_u32 v{vT+6}, s{sLdsW}, v{vT+6}")
for s in range(4):
    A(f"v_add_u32 v{vT+7}, {4*s}, v{vG}")
    A(f"v_xor_b32 v{vT+7}, v{vT+7}, v{vN}")
    A(f"v_lshl_add_u32 v{vLds+s}, v{vT+7}, 4, v{vT+6}")
for r in range(4):
    A(f"v_lshl_add_u32 v{vTok+r}, v{vG}, 2, {r}")
A(f"v_mov_b32 v{vNEG}, 0xf149f2ca")
A(f"s_mov_b32 s{sC}, 0x3e0293ee")
A(f"s_lshl_b32 s{sT0}, s{sH}, 8")
A(f"s_add_u32 s{srdK}, s6, s{sT0}"); A(f"s_addc_u32 s{srdK+1}, s7, 0"); A(f"s_sub_u32 s{srdK+2}, {KV_BYTES}, s{sT0}"); A(f"s_mov_b32 s{srdK+3}, 0x20000")
A(f"s_add_u32 s{srdV}, s8, s{sT0}"); A(f"s_addc_u32 s{srdV+1}, s9, 0"); A(f"s_sub_u32 s{srdV+2}, {KV_BYTES}, s{sT0}"); A(f"s_mov_b32 s{srdV+3}, 0x20000")
vQo = vT+7
A(f"s_lshl_b32 s{sT1}, s{sW}, 3")
for jj in range(2):
    A(f"v_add_u32 v{vT+6}, s{sT1}, v{vG}")
    if jj: A(f"v_add_u32 v{vT+6}, 4, v{vT+6}")
    A(f"v_and_b32 v{vT}, 15, v{vT+6}")
    A(f"v_xor_b32 v{vT}, v{vT}, v{vN}")
    A(f"v_lshlrev_b32 v{vT+6}, 8, v{vT+6}")
    if jj: A(f"v_subrev_u32 v{vT+6}, 1024, v{vT+6}")
    A(f"v_lshl_add_u32 v{vQo+jj}, v{vT}, 4, v{vT+6}")
TS("karg")
A(f"s_waitcnt vmcnt({5 if a.rpf else 1})")
TS2("clw")
A(f"v_add_u32 v{vClm}, -1, v{vCl}")
A(f"v_min_u32 v{vClm}, 0x7ff, v{vClm}")
A(f"v_lshrrev_b32 v{vP1}, 4, v{vClm}")
A("s_nop 0")
for b in range(8):
    A(f"v_readlane_b32 s{sE+b}, v{vP1}, {b}")
vAcc = vT+5; vTt = vT+6
A(f"v_mul_u32_u24 v{vAcc}, s{sE}, v{vMt}")
A(f"v_lshrrev_b32 v{vAcc}, 16, v{vAcc}")
for b in range(1, 8):
    A(f"v_mul_u32_u24 v{vTt}, s{sE+b}, v{vMt}")
    A(f"v_add_u32_sdwa v{vAcc}, v{vAcc}, v{vTt} dst_sel:DWORD dst_unused:UNUSED_PAD src0_sel:DWORD src1_sel:WORD_1")
A(f"v_cmp_ge_u32 vcc, 24, v{vAcc}")
A("s_nop 1")
A(f"s_ff1_i32_b64 s{sT0}, vcc")
TS2("cf")
A("s_nop 0")
A(f"v_readlane_b32 s{sT1}, v{vMt}, s{sT0}")
A("s_nop 1")
vNb = vAcc; vInc = vTt
A(f"v_mul_u32_u24 v{vNb}, s{sT1}, v{vP1}")
A(f"v_lshrrev_b32 v{vNb}, 16, v{vNb}")
A(f"v_add_u32 v{vNb}, 1, v{vNb}")
A(f"v_mov_b32 v{vInc}, v{vNb}")
for sh in (1, 2, 4):
    A("s_nop 1")
    A(f"v_add_u32_dpp v{vInc}, v{vInc}, v{vInc} row_shr:{sh} row_mask:0xf bank_mask:0xf bound_ctrl:0")
A(f"v_cmp_lt_u32 vcc, s{sSlot}, v{vInc}")
A("s_nop 1")
A("s_and_b32 vcc_lo, vcc_lo, 0xff")
A("s_cbranch_scc0 L_end")
A(f"s_ff1_i32_b32 s{sB}, vcc_lo")
TS2("bf")
A("s_nop 0")
A(f"v_readlane_b32 s{sN}, v{vNb}, s{sB}")
A(f"v_readlane_b32 s{sStart}, v{vInc}, s{sB}")
A(f"v_readlane_b32 s{sT2}, v{vP1}, s{sB}")
A(f"v_readlane_b32 s{sCl}, v{vClm}, s{sB}")
A(f"v_readlane_b32 s{sUni}, v{vCl}, s{sB}")
A(f"s_sub_u32 s{sT0}, s{sN}, 1")
A(f"v_readlane_b32 s{sT1}, v{vMt}, s{sT0}")
A(f"s_sub_u32 s{sStart}, s{sStart}, s{sN}")
A(f"s_sub_u32 s{sI}, s{sSlot}, s{sStart}")
A(f"s_add_u32 s{sT2}, s{sT2}, 1")
A(f"s_mul_i32 s{sT1}, s{sT1}, s{sT2}")
A(f"s_mul_i32 s{sT3}, s{sT1}, s{sI}")
A(f"s_add_u32 s{sT1}, s{sT1}, s{sT3}")
A(f"s_lshr_b32 s{sT3}, s{sT3}, 16")
A(f"s_lshr_b32 s{sT1}, s{sT1}, 16")
A(f"s_cmp_eq_u32 s{sI}, s{sT0}")
A(f"s_cselect_b32 s{sT1}, s{sT2}, s{sT1}")
A(f"s_sub_u32 s{sT1}, s{sT1}, s{sT3}")
A(f"s_add_u32 s{sR}, s{sT1}, 7")
A(f"s_lshr_b32 s{sR}, s{sR}, 3")
A(f"s_lshr_b32 s{sT0}, s{sT1}, 2")
A(f"s_and_b32 s{sT1}, s{sT1}, 3")
A(f"s_mul_i32 s{sT2}, s{sW}, s{sT0}")
A(f"s_add_u32 s{sT3}, s{sT3}, s{sT2}")
A(f"s_min_u32 s{sT2}, s{sW}, s{sT1}")
A(f"s_add_u32 s{sT3}, s{sT3}, s{sT2}")
A(f"s_cmp_lt_u32 s{sW}, s{sT1}")
A(f"s_addc_u32 s{sCnt}, s{sT0}, 0")
A(f"s_lshl_b32 s{sT0}, s{sB}, 7")
A(f"s_add_u32 s{sT0}, s{sT0}, s{sT3}")
A(f"s_lshl_b32 s{sT0}, s{sT0}, 2")
A(f"s_buffer_load_dwordx8 s[{sE}:{sE+7}], {sr(srdBT)}, s{sT0}")
A(f"s_add_u32 s{sCl}, s{sCl}, 1")
A(f"s_lshl_b32 s{sT3}, s{sT3}, 4")
A(f"s_sub_i32 s{sLim}, s{sCl}, s{sT3}")
A(f"s_lshl_b32 s{sT2}, s{sCnt}, 4")
A(f"s_min_i32 s{sLim}, s{sLim}, s{sT2}")
A(f"s_lshl_b32 s{sT0}, s{sB}, 16")
A(f"s_lshl_b32 s{sT1}, s{sH}, 13")
A(f"s_add_u32 s{sT0}, s{sT0}, s{sT1}")
A(f"s_add_u32 s{srdQ}, s4, s{sT0}"); A(f"s_addc_u32 s{srdQ+1}, s5, 0"); A(f"s_mov_b32 s{srdQ+2}, 8192"); A(f"s_mov_b32 s{srdQ+3}, 0x20000")
A(f"s_add_u32 s{srdO}, s14, s{sT0}"); A(f"s_addc_u32 s{srdO+1}, s15, 0"); A(f"s_mov_b32 s{srdO+2}, 8192"); A(f"s_mov_b32 s{srdO+3}, 0x20000")
TS("alloc")
A("s_waitcnt lgkmcnt(0)")
kdma(0)
TS2("k0i")
A(f"s_lshl_b32 s{sT1}, s{sW}, 11")
A(f"s_add_u32 m0, s{sT1}, {QBASE}")
A("s_nop 0")
for jj in range(2):
    A(f"buffer_load_dwordx4 v{vQo+jj}, {sr(srdQ)}, 0 offen offset:{jj*1024} lds")
for j in range(1, 5): kdma(j)
TS("k4issued")
A("s_memrealtime s[96:97]")
A(f"s_lshl_b32 s{sGrp}, s{sB}, 3")
A(f"s_add_u32 s{sGrp}, s{sGrp}, s{sH}")
A(f"s_lshl_b32 s{sT0}, s{sGrp}, 2")
A(f"s_cmp_eq_u32 s{sW}, 0")
A(f"s_cselect_b32 s{sT0}, s{sT0}, 0x1000")
A(f"s_mov_b32 s{srdD}, s16"); A(f"s_mov_b32 s{srdD+1}, s17"); A(f"s_mov_b32 s{srdD+2}, 256"); A(f"s_mov_b32 s{srdD+3}, 0x20000")
A(f"v_mov_b32 v{vNon+2}, s{sT0}")
A(f"v_mov_b32 v{vNon+1}, 0")
A("s_waitcnt lgkmcnt(0)")
A(f"s_and_b32 s{sNonce}, s96, 0xffffffe0")
A(f"s_or_b32 s{sNonce}, s{sNonce}, 0x10")
A(f"v_mov_b32 v{vNon}, s{sNonce}")
A("s_mov_b64 exec, 1")
A(f"buffer_atomic_cmpswap v[{vNon}:{vNon+1}], v{vNon+2}, {sr(srdD)}, 0 offen sc0 sc1")
A("s_mov_b64 exec, -1")
A(f"v_lshrrev_b32 v{vT}, 2, v{vLane}")
A(f"v_and_b32 v{vT+1}, 7, v{vT}")
A(f"v_lshlrev_b32 v{vT+1}, 1, v{vT+1}")
A(f"v_bfe_u32 v{vT+2}, v{vLane}, 1, 1")
A(f"s_lshl_b32 s{sT0}, s{sW}, 2")
A(f"v_add_u32 v{vT+2}, s{sT0}, v{vT+2}")
A(f"v_and_b32 v{vT+3}, 1, v{vLane}")
A(f"v_lshlrev_b32 v{vT+3}, 3, v{vT+3}")
A(f"v_lshl_add_u32 v{vT+3}, v{vT}, 8, v{vT+3}")
for mt in range(2):
    A(f"v_add_u32 v{vT+4}, {2*mt}, v{vT+2}")
    A(f"v_xor_b32 v{vT+4}, v{vT+4}, v{vT+1}")
    A(f"v_lshl_add_u32 v{vTr+mt}, v{vT+4}, 4, v{vT+3}")
    A(f"v_add_u32 v{vTr+2+mt}, {2*WREG}, v{vTr+mt}")
A(f"v_add_u32 v{vPa}, {PBASE}, v{vL16}")
A(f"s_lshl_b32 s{sT0}, s{sW}, 2")
A(f"s_add_u32 s{sT0}, s{sT0}, {XMAX}")
A(f"v_add_u32 v{vXw}, s{sT0}, v{vL16}")
A(f"v_add_u32 v{vXr}, {XMAX}, v{vL16}")
A(f"v_mov_b32 v{vT}, 0x3f803f80")
for r in range(4): A(f"v_accvgpr_write_b32 a{aOne+r}, v{vT}")
A(f"s_sub_u32 s{sT0}, {QBASE}, s{sLdsW}")
for s in range(4): A(f"v_add_u32 v{vT+s}, s{sT0}, v{vLds+s}")

nxt = ["K5", "K6", "K7", "V0", "V1", "V2", "V3", "V4"]
for j in range(8):
    kb = aK + (j & 1)*16
    A(f"s_waitcnt vmcnt({17 if j < 5 else (16 + (a.fast if j > 5 else 0))})")
    if j == 0:
        A("s_barrier")
        for qt in range(2):
            for s in range(4):
                A(f"ds_read_b128 {ar(aQ+(qt*4+s)*4)}, v{vT+s} offset:{qt*4096}")
    for s in range(4):
        A(f"ds_read_b128 {ar(kb+4*s)}, v{vLds+s} offset:{kslot(j)*4096}")
    A(f"s_sub_i32 s{sT0}, s{sLim}, {16*j}")
    for r in range(4):
        A(f"v_cmp_gt_i32 {sp(sM+2*r)}, s{sT0}, v{vTok+r}")
    for r in range(4):
        A(f"v_cndmask_b32 v{vM+r}, v{vNEG}, 0, {sp(sM+2*r)}")
    if j == 0:
        A("s_waitcnt lgkmcnt(4)")
        A(f"s_cmp_gt_i32 s{sUni}, 0")
        A("s_cbranch_scc1 L_qok")
        A(f"v_mov_b32 v{vT}, 0")
        for r in range(32): A(f"v_accvgpr_write_b32 a{aQ+r}, v{vT}")
        L("L_qok")
    if j == 5:
        A(f"v_readfirstlane_b32 s{sT1}, v{vNon}")
    A("s_nop 0")
    for s in range(4):
        A(f"s_waitcnt lgkmcnt({3-s})")
        for qt in range(2):
            c = vr(vM) if s == 0 else vr(S(j,qt))
            A(f"v_mfma_f32_16x16x32_bf16 {vr(S(j,qt))}, {ar(kb+4*s)}, {ar(aQ+(qt*4+s)*4)}, {c}")
    if j == 5:
        A(f"s_cmp_eq_u32 s{sT1}, 0")
        A(f"s_cselect_b32 s{sNonce}, s{sNonce}, s{sT1}")
        if a.fast:
            A(f"s_getreg_b32 s{sT0}, hwreg(HW_REG_XCC_ID)")
            A(f"s_and_b32 s{sTag}, s{sT0}, 7")
            A(f"s_or_b32 s{sT0}, s{sNonce}, s{sTag}")
            A(f"s_lshl_b32 s{sXTg}, s{sGrp}, 7")
            A(f"s_add_u32 s{sXTg}, s{sXTg}, {XT_OFF}")
            A(f"s_lshl_b32 s{sT1}, s{sI}, 2")
            A(f"s_add_u32 s{sT1}, s{sT1}, s{sXTg}")
            A(f"s_cmp_eq_u32 s{sW}, 0")
            A(f"s_cselect_b32 s{sT1}, s{sT1}, 0x80000000")
            A(f"v_mov_b32 v{vT+5}, s{sT0}")
            A(f"v_mov_b32 v{vT+6}, 0")
            A("s_mov_b64 exec, 1")
            A(f"buffer_store_dword v{vT+5}, v{vT+6}, {sr(srdW)}, s{sT1} offen sc1")
            A("s_mov_b64 exec, -1")
    nm = nxt[j]
    if nm[0] == "K": kdma(int(nm[1]))
    else: vdma(int(nm[1]))
    if j in (0, 3, 7): TS(f"k{j}")
for qt in range(2):
    regs = [S(i,qt,r) for i in range(8) for r in range(4)]
    m = vMc+qt
    A(f"v_max3_f32 v{m}, v{regs[0]}, v{regs[1]}, v{regs[2]}")
    k = 3
    while k + 1 < len(regs):
        A(f"v_max3_f32 v{m}, v{m}, v{regs[k]}, v{regs[k+1]}")
        k += 2
    if k < len(regs):
        A(f"v_max_f32 v{m}, v{m}, v{regs[k]}")
for op in ("v_permlane16_swap_b32", "v_permlane32_swap_b32"):
    for qt in range(2): A(f"v_mov_b32 v{vT+qt}, v{vMc+qt}")
    A("s_nop 1")
    for qt in range(2): A(f"{op} v{vMc+qt}, v{vT+qt}")
    for qt in range(2): A(f"v_max_f32 v{vMc+qt}, v{vMc+qt}, v{vT+qt}")
for qt in range(2):
    A(f"ds_write_b32 v{vXw}, v{vMc+qt} offset:{qt*1024}")
A(f"s_lshl_b32 s{sT0}, s{sW}, 2")
A(f"s_add_u32 s{sT0}, s{sT0}, {XN}")
A(f"v_mov_b32 v{vT+2}, s{sT0}")
A(f"v_mov_b32 v{vT+3}, s{sNonce}")
A("s_mov_b64 exec, 1")
A(f"ds_write_b32 v{vT+2}, v{vT+3}")
A("s_mov_b64 exec, -1")
vdma(5)
A("s_waitcnt lgkmcnt(0)")
A("s_barrier")
TS("bar1")
for qt in range(2):
    A(f"ds_read_b128 {vr(vRB+4*qt)}, v{vXr} offset:{qt*1024}")
A(f"v_mov_b32 v{vT+2}, {XN}")
A(f"ds_read_b32 v{vT+3}, v{vT+2}")
A("s_waitcnt lgkmcnt(1)")
for qt in range(2):
    b = vRB+4*qt
    A(f"v_max3_f32 v{vMc+qt}, v{b}, v{b+1}, v{b+2}")
for qt in range(2):
    A(f"v_max_f32 v{vMc+qt}, v{vMc+qt}, v{vRB+4*qt+3}")
for qt in range(2):
    A(f"v_mul_f32 v{vMc+qt}, s{sC}, v{vMc+qt}")
A("s_waitcnt lgkmcnt(0)")
A(f"v_readfirstlane_b32 s{sNonce}, v{vT+3}")
A(f"s_lshl_b32 s{sT0}, s{sW}, 13")
A(f"v_add_u32 v{vT+4}, s{sT0}, v{vPa}")
for p in range(4):
    for qt in range(2):
        for i in (2*p, 2*p+1):
            for r in range(4):
                A(f"v_fma_f32 v{S(i,qt,r)}, v{S(i,qt,r)}, s{sC}, -v{vMc+qt}")
            for r in range(4):
                A(f"v_exp_f32 v{S(i,qt,r)}, v{S(i,qt,r)}")
        d = S(2*p,qt)
        A(f"v_cvt_pk_bf16_f32 v{d}, v{S(2*p,qt,0)}, v{S(2*p,qt,1)}")
        A(f"v_cvt_pk_bf16_f32 v{d+1}, v{S(2*p,qt,2)}, v{S(2*p,qt,3)}")
        A(f"v_cvt_pk_bf16_f32 v{d+2}, v{S(2*p+1,qt,0)}, v{S(2*p+1,qt,1)}")
        A(f"v_cvt_pk_bf16_f32 v{d+3}, v{S(2*p+1,qt,2)}, v{S(2*p+1,qt,3)}")
        A(f"ds_write_b128 v{vT+4}, {vr(d)} offset:{p*2048+qt*1024}")
        if p > 0 or qt > 0:
            pp, pq = (p, 0) if qt == 1 else (p-1, 1)
            c = "0" if pp == 0 else vr(vLsq+4*pq)
            A(f"v_mfma_f32_16x16x32_bf16 {vr(vLsq+4*pq)}, {ar(aOne)}, {vr(S(2*pp,pq))}, {c}")
    if p == 1:
        vdma(6)
        if a.tpf:
            A("s_getpc_b64 s[98:99]")
            L("L_tpf")
            A(f"v_lshlrev_b32 v{vT}, 7, v{vLane}")
            A(f"v_min_u32 v{vT}, L_end-L_tpf, v{vT}")
            A(f"global_load_dword v{vT+1}, v{vT}, s[98:99]")
A("s_nop 1")
A(f"v_mfma_f32_16x16x32_bf16 {vr(vLsq+4)}, {ar(aOne)}, {vr(S(6,1))}, {vr(vLsq+4)}")
A(f"s_lshl_b32 s{sT0}, s{sH}, 5")
A(f"s_lshl_b32 s{sT1}, s{sW}, 12")
A("s_nop 2")
A(f"s_add_u32 s{sT0}, s{sT0}, s{sStart}")
A(f"s_lshl_b32 s{sGrp}, s{sT0}, 14")
A(f"s_add_u32 s{sGrp}, s{sGrp}, s{sT1}")
A("s_nop 3")
A(f"v_add_u32 v{vT+4}, {XL-XMAX}, v{vXw}")
for qt in range(2):
    A(f"ds_write_b32 v{vT+4}, v{vLsq+4*qt} offset:{qt*1024}")
A("s_waitcnt lgkmcnt(0)")
A("s_barrier")
TS("bar2")
if a.fast:
    A(f"v_lshlrev_b32 v{vT+5}, 2, v{vLane}")
    A(f"v_cmp_gt_u32 vcc, s{sN}, v{vLane}")
    A(f"v_mov_b32 v{vT+6}, 0x40000000")
    A("s_nop 0")
    A(f"v_cndmask_b32 v{vT+5}, v{vT+6}, v{vT+5}, vcc")
    A(f"buffer_load_dword v{vTg}, v{vT+5}, {sr(srdW)}, s{sXTg} offen sc1")
for qt in range(2):
    A(f"ds_read_b128 {vr(vRB+4*qt)}, v{vXr} offset:{XL-XMAX+qt*1024}")
A(f"s_mov_b32 s{sP}, 0")
A(f"s_mov_b32 s{sA}, 4096")
for k in range(4): A(f"v_add_u32 v{vTrC+k}, 4096, v{vTr+k}")
A(f"v_mov_b32 v{vPC}, v{vPa}")
A("s_waitcnt lgkmcnt(0)")
for qt in range(2):
    b = vRB+4*qt
    A(f"v_add_f32 v{b}, v{b}, v{b+1}")
    A(f"v_add_f32 v{b+2}, v{b+2}, v{b+3}")
for qt in range(2):
    b = vRB+4*qt
    A(f"v_add_f32 v{b}, v{b}, v{b+2}")
for qt in range(2):
    b = vRB+4*qt
    A(f"v_rcp_f32 v{vRl+qt}, v{b}")
    A(f"v_log_f32 v{b+1}, v{b}")
A("s_nop 0")
for qt in range(2):
    b = vRB+4*qt
    A(f"v_add_f32 v{b+1}, v{b+1}, v{vMc+qt}")
for mt in range(2):
    for qt in range(2):
        A(f"v_mov_b32 v{vGr+(mt*2+qt)*4+2}, v{vRB+4*qt+1}")
for qt in range(2):
    A(f"v_xor_b32 v{vLseN+qt}, s{sNonce}, v{vRB+4*qt+1}")
for r in range(16): A(f"v_mov_b32 v{vO+r}, 0")
A(f"v_lshlrev_b32 v{vOo}, 8, v{vN}")
A(f"v_lshl_add_u32 v{vOo}, v{vG}, 3, v{vOo}")
A(f"s_lshl_b32 s{sT0}, s{sI}, 10")
A(f"s_add_u32 s{sCB}, s{sT0}, s{sGrp}")
A(f"s_add_u32 s{sT1}, s{sI}, s{sN}")
A(f"s_cmp_lt_u32 s{sT1}, 4")
A(f"s_cselect_b32 s{sDual}, 1, 0")
A(f"s_lshl_b32 s{sT2}, s{sT1}, 10")
A(f"s_add_u32 s{sT2}, s{sT2}, s{sGrp}")
A(f"s_sub_u32 s{sT2}, s{sT2}, {4*REC}")
A(f"s_add_u32 s{sT3}, s{sN}, 4")
A(f"s_cmp_lg_u32 s{sDual}, 0")
A(f"s_cselect_b32 s{sT2}, s{sT2}, s{sCB}")
A(f"s_cselect_b32 s{sT3}, s{sT3}, s{sN}")
A(f"s_mov_b32 s{sHiN}, s{sT3}")
for s_ in range(8):
    b = sCB if s_ < 4 else sT2
    n_ = sN if s_ < 4 else sT3
    A(f"s_add_u32 s{sT0}, s{b}, {s_*REC}")
    A(f"s_cmp_gt_u32 s{n_}, {s_}")
    A(f"s_cselect_b32 s{sCO+s_}, s{sT0}, 0x80000000")
    A(f"s_cselect_b32 s{sCN+s_}, s{sNonce}, 0")
def outoff(dst, j):
    A(f"s_and_b32 s{sT0}, s{j}, 1")
    A(f"s_lshl_b32 s{sT0}, s{sT0}, 12")
    A(f"s_lshr_b32 s{dst}, s{j}, 1")
    A(f"s_lshl_b32 s{dst}, s{dst}, 5")
    A(f"s_add_u32 s{dst}, s{dst}, s{sT0}")
    A(f"s_lshl_b32 s{sT0}, s{sW}, 6")
    A(f"s_add_u32 s{dst}, s{dst}, s{sT0}")
outoff(sOA, sI)
outoff(sOB, sT1)
A(f"s_mov_b32 s{sRem}, s{sN}")
A(f"s_min_u32 s{sMc}, s{sN}, 8")
A(f"v_mov_b32 v{vCS+4}, v{vNEG}")
A(f"v_mov_b32 v{vCS+5}, 0")
for c in range(4): A(f"v_mov_b32 v{vCS+c}, 0")
L("L_round")
A(f"s_add_u32 s{sT0}, s{sP}, 1")
A(f"s_cmp_eq_u32 s{sT0}, s{sR}")
A("s_cbranch_scc1 L_w0")
A(f"s_cmp_eq_u32 s{sP}, 0")
A("s_cbranch_scc1 L_w20")
A(f"s_cmp_eq_u32 s{sP}, 1")
A("s_cbranch_scc1 L_w12")
A(f"s_waitcnt vmcnt({8+a.tpf+a.fast})")
A("s_branch L_wd")
L("L_w20")
A(f"s_waitcnt vmcnt({20+a.tpf+2*a.fast})")
A("s_branch L_wd")
L("L_w12")
A(f"s_waitcnt vmcnt({12+a.tpf+a.fast})")
A("s_branch L_wd")
L("L_w0")
A("s_waitcnt vmcnt(0)")
L("L_wd")
A("s_barrier")
def rd(w_):
    b = vRB + 16*w_
    for qt in range(2):
        A(f"ds_read_b128 {vr(b+4*qt)}, v{vPC} offset:{w_*8192+qt*1024}")
    for mt in range(2):
        for hh in range(2):
            A(f"ds_read_b64_tr_b16 {vr(b+8+4*mt+2*hh, 2)}, v{vTrC+(w_>>1)*2+mt} offset:{(w_&1)*WREG+hh*4096}")
def mm(w_):
    b = vRB + 16*w_
    for mt in range(2):
        for qt in range(2):
            A(f"v_mfma_f32_16x16x32_bf16 {vr(O(mt,qt))}, {vr(b+8+4*mt)}, {vr(b+4*qt)}, {vr(O(mt,qt))}")
rd(0); rd(1)
A(f"s_cmp_lg_u32 s{sP}, 1")
A("s_cbranch_scc1 L_nov7")
vdma(7)
L("L_nov7")
A("s_waitcnt lgkmcnt(6)")
rd(2); mm(0)
A("s_waitcnt lgkmcnt(6)")
rd(3); mm(1)
A(f"s_add_u32 s{sA}, s{sA}, 8192")
A(f"s_cmp_ge_u32 s{sA}, {WREG}")
A(f"s_cselect_b32 s{sT0}, {WREG}, 0")
A(f"s_sub_u32 s{sA}, s{sA}, s{sT0}")
A("s_waitcnt lgkmcnt(6)")
mm(2)
for k in range(4): A(f"v_add_u32 v{vTrC+k}, s{sA}, v{vTr+k}")
A(f"v_add_u32 v{vPC}, 2048, v{vPC}")
A("s_waitcnt lgkmcnt(0)")
mm(3)
A(f"s_add_u32 s{sP}, s{sP}, 1")
A(f"s_cmp_lt_u32 s{sP}, s{sR}")
A("s_cbranch_scc1 L_round")
TS("pv")
def publish(flags):
    for mt in range(2):
        for qt in range(2):
            o = O(mt,qt); g = vGr+(mt*2+qt)*4
            for r in range(4): A(f"v_mul_f32 v{o+r}, v{o+r}, v{vRl+qt}")
            A(f"v_cvt_pk_bf16_f32 v{g}, v{o}, v{o+1}")
            A(f"v_cvt_pk_bf16_f32 v{g+1}, v{o+2}, v{o+3}")
            A(f"v_bitop3_b32 v{g+3}, v{g}, v{g+1}, v{vLseN+qt} bitop3:0x96")
            A(f"buffer_store_dwordx4 {vr(g)}, v{vL16}, {sr(srdW)}, s{sRec} offen offset:{(mt*2+qt)*1024}{flags}")
if a.fast:
    A(f"s_or_b32 s{sT0}, s{sNonce}, s{sTag}")
    A(f"v_cmp_eq_u32 vcc, s{sT0}, v{vTg}")
    A(f"s_bfm_b64 {sp(sM)}, s{sN}, 0")
    A("s_nop 0")
    A(f"s_cmp_eq_u64 vcc, {sp(sM)}")
    A("s_cbranch_scc0 L_pubslow")
    publish("")
    L("L_pubdone")
else:
    A("s_nop 4")
    publish(ST)
TS("stored")
vAcc = vCS; vMx = vCS+4; vW = vCS+5; vTmp = vCS+6
vSrc = vRB
A(f"s_cmp_eq_u32 s{sN}, 1")
A("s_cbranch_scc1 L_direct")
A(f"s_cmp_ge_u32 s{sI}, 4")
A("s_cbranch_scc1 L_fin")
A(f"s_mov_b32 s{sT2}, {a.spin}")
L("L_poll")
def ladder(lo, hi, bound, tgt, body):
    for s_ in range(lo, hi):
        if a.lad and s_ not in (0, 1):
            A(f"s_cmp_le_u32 s{bound}, {s_}")
            A(f"s_cbranch_scc1 {tgt}")
        body(s_)
def ld_body(s_): A(f"buffer_load_dwordx4 {vr(vSrc+4*s_)}, v{vL16}, {sr(srdW)}, s{sCO+s_} offen{LD}")
ladder(0, 4, sN, "L_i4", ld_body)
L("L_i4")
ladder(4, 8, sHiN, "L_i8", ld_body)
L("L_i8")
if a.ts:
    A(f"s_cmp_eq_u32 s{sT2}, {a.spin}")
    A("s_cbranch_scc0 L_ts1")
    TS("iss1")
    L("L_ts1")
A(f"v_mov_b32 v{vTmp+2}, 0")
A("s_waitcnt vmcnt(0)")
if a.ts:
    A(f"s_cmp_eq_u32 s{sT2}, {a.spin}")
    A("s_cbranch_scc0 L_ts2")
    TS("ld1")
    L("L_ts2")
def ck_body(s_):
    g = vSrc+4*s_
    A(f"v_bitop3_b32 v{vTmp}, v{g}, v{g+1}, v{g+2} bitop3:0x96")
    A(f"v_bitop3_b32 v{vTmp}, v{vTmp}, v{g+3}, s{sCN+s_} bitop3:0x96")
    A(f"v_or_b32 v{vTmp+2}, v{vTmp+2}, v{vTmp}")
ladder(0, 4, sN, "L_c4", ck_body)
L("L_c4")
ladder(4, 8, sHiN, "L_c8", ck_body)
L("L_c8")
A(f"v_cmp_eq_u32 vcc, 0, v{vTmp+2}")
A(f"s_sub_u32 s{sT2}, s{sT2}, 1")
A("s_cbranch_scc1 L_ok")
A("s_cmp_eq_u64 vcc, exec")
if a.sleep:
    A("s_cbranch_scc1 L_ok")
    A(f"s_sleep {a.sleep}")
    A("s_branch L_poll")
else:
    A("s_cbranch_scc0 L_poll")
L("L_ok")
TS("polled")
if a.ts:
    ts_slots.append("npoll")
    A(f"s_sub_u32 s100, {a.spin}, s{sT2}")
    A(f"v_writelane_b32 v63, s100, {len(ts_slots)-1}")
L("L_merge")
A(f"v_mov_b32 v{vTmp}, v{vMx}")
for s in range(8):
    if s:
        A(f"s_cmp_le_u32 s{sMc}, {s}")
        A("s_cbranch_scc1 L_mx")
    A(f"v_max_f32 v{vTmp}, v{vTmp}, v{vSrc+4*s+2}")
L("L_mx")
A(f"v_sub_f32 v{vTmp+1}, v{vMx}, v{vTmp}")
A(f"v_exp_f32 v{vTmp+1}, v{vTmp+1}")
A(f"v_mov_b32 v{vMx}, v{vTmp}")
A(f"v_mul_f32 v{vW}, v{vW}, v{vTmp+1}")
for c in range(4): A(f"v_mul_f32 v{vAcc+c}, v{vAcc+c}, v{vTmp+1}")
for s in range(8):
    if s:
        A(f"s_cmp_le_u32 s{sMc}, {s}")
        A("s_cbranch_scc1 L_mg")
    g = vSrc+4*s
    A(f"v_sub_f32 v{g+2}, v{g+2}, v{vMx}")
    A(f"v_exp_f32 v{g+2}, v{g+2}")
    A(f"v_lshlrev_b32 v{vTmp}, 16, v{g}")
    A(f"v_and_b32 v{g}, 0xffff0000, v{g}")
    A(f"v_lshlrev_b32 v{vTmp+1}, 16, v{g+1}")
    A(f"v_and_b32 v{g+1}, 0xffff0000, v{g+1}")
    A(f"v_add_f32 v{vW}, v{vW}, v{g+2}")
    A(f"v_fma_f32 v{vAcc}, v{g+2}, v{vTmp}, v{vAcc}")
    A(f"v_fma_f32 v{vAcc+1}, v{g+2}, v{g}, v{vAcc+1}")
    A(f"v_fma_f32 v{vAcc+2}, v{g+2}, v{vTmp+1}, v{vAcc+2}")
    A(f"v_fma_f32 v{vAcc+3}, v{g+2}, v{g+1}, v{vAcc+3}")
L("L_mg")
A(f"s_cmp_gt_u32 s{sRem}, 8")
A("s_cbranch_scc1 L_more")
A(f"v_rcp_f32 v{vW}, v{vW}")
A(f"s_cmp_lg_u32 s{sDual}, 0")
for c in range(4): A(f"v_mul_f32 v{vAcc+c}, v{vAcc+c}, v{vW}")
A(f"v_cvt_pk_bf16_f32 v{vAcc}, v{vAcc}, v{vAcc+1}")
A(f"v_cvt_pk_bf16_f32 v{vAcc+1}, v{vAcc+2}, v{vAcc+3}")
A(f"buffer_store_dwordx2 {vr(vAcc,2)}, v{vOo}, {sr(srdO)}, s{sOA} offen{OST}")
A("s_cbranch_scc0 L_fin")
for s in range(3):
    for c in range(4): A(f"v_mov_b32 v{vSrc+4*s+c}, v{vSrc+16+4*s+c}")
A(f"s_mov_b32 s{sDual}, 0")
A(f"s_mov_b32 s{sOA}, s{sOB}")
A(f"v_mov_b32 v{vMx}, v{vNEG}")
A(f"v_mov_b32 v{vW}, 0")
for c in range(4): A(f"v_mov_b32 v{vAcc+c}, 0")
A("s_branch L_merge")
if a.fast:
    L("L_pubslow")
    publish(ST)
    A("s_branch L_pubdone")
L("L_more")
A(f"s_sub_u32 s{sRem}, s{sRem}, 8")
A(f"s_min_u32 s{sMc}, s{sRem}, 8")
A(f"s_mov_b32 s{sHiN}, s{sRem}")
for s in range(8):
    A(f"s_add_u32 s{sT0}, s{sCB}, {(8+s)*REC}")
    A(f"s_cmp_gt_u32 s{sRem}, {s}")
    A(f"s_cselect_b32 s{sCO+s}, s{sT0}, 0x80000000")
    A(f"s_cselect_b32 s{sCN+s}, s{sNonce}, 0")
A(f"s_add_u32 s{sCB}, s{sCB}, {8*REC}")
A(f"s_mov_b32 s{sT2}, {a.spin}")
A("s_branch L_poll")
L("L_direct")
for mt in range(2):
    for qt in range(2):
        g = vGr+(mt*2+qt)*4
        A(f"s_lshl_b32 s{sT0}, s{sW}, 6")
        A(f"s_add_u32 s{sT0}, s{sT0}, {qt*4096+mt*32}")
        A(f"buffer_store_dwordx2 {vr(g,2)}, v{vOo}, {sr(srdO)}, s{sT0} offen{OST}")
L("L_fin")
if a.ts:
    TS("end")
    A("s_waitcnt vmcnt(0)")
    A(f"s_lshl_b32 s{sT0}, s2, 2")
    A(f"s_add_u32 s{sT0}, s{sT0}, s{sW}")
    A(f"s_lshl_b32 s{sT0}, s{sT0}, 7")
    A(f"s_add_u32 s{sT0}, s{sT0}, {TS_OFF}")
    A(f"v_lshlrev_b32 v{vT}, 2, v{vLane}")
    A(f"v_cmp_gt_u32 vcc, 32, v{vLane}")
    A(f"s_and_saveexec_b64 {sp(sM)}, vcc")
    A(f"buffer_store_dword v63, v{vT}, {sr(srdW)}, s{sT0} offen")
L("L_end")
A("s_endpgm")

hdr = open("standalone__paged_block_table_kv_pagedattention__sampling.s.ref").read().split("\n")
comments = [l for l in hdr if l.startswith(";") and "@launch" not in l and not l.startswith("; Override") and not l.startswith("; grid=")]
txt = "\n".join(comments) + "\n"
txt += f"; @launch grid=(256,1,1) block=(256,1,1) lds={LDS_BYTES}\n"
txt += f""".amdgcn_target "amdgcn-amd-amdhsa--gfx950"
.text
.globl {KN}
.p2align 8
.type {KN},@function
"""
txt += "\n".join(out) + "\n"
txt += f""".section .rodata,"a"
.p2align 6
.amdhsa_kernel {KN}
  .amdhsa_next_free_vgpr {256+NAGPR}
  .amdhsa_next_free_sgpr 102
  .amdhsa_accum_offset 256
  .amdhsa_group_segment_fixed_size 0
  .amdhsa_kernarg_size 64
  .amdhsa_user_sgpr_count 2
  .amdhsa_user_sgpr_kernarg_segment_ptr 1
  .amdhsa_system_sgpr_workgroup_id_x 1
.end_amdhsa_kernel
"""
print(txt)
if a.ts:
    sys.stderr.write("TS: " + ",".join(ts_slots) + "\n")
```

```python
import argparse, sys
ap = argparse.ArgumentParser()
ap.add_argument("--ts", type=int, default=0, help="timestamps")
ap.add_argument("--nt", type=str, default="nt")
ap.add_argument("--st", type=str, default="sc1", help="partial store flags")
ap.add_argument("--ld", type=str, default="sc1", help="partial load flags")
ap.add_argument("--ost", type=str, default="", help="out store flags")
ap.add_argument("--rot", type=int, default=0)
ap.add_argument("--cpf", type=int, default=8, help="code prefetch KB")
ap.add_argument("--sleep", type=int, default=0)
ap.add_argument("--rpf", type=int, default=1, help="prefetch own record lines at start")
ap.add_argument("--rst", type=str, default="sc1")
ap.add_argument("--perm", type=str, default="")
ap.add_argument("--lad", type=int, default=1, help="ladder instead of dummy loads in the poll")
ap.add_argument("--fast", type=int, default=1, help="plain stores when the whole group sits on this XCD")
ap.add_argument("--thr", type=str, default="", help="XA,XB,tA,tB,aslow : throttle levels; t in 1/64 of reference work")
ap.add_argument("--fst", type=str, default="", help="fast-path store flags")
ap.add_argument("--sel", type=int, default=0, help="selective re-poll of missing sources")
ap.add_argument("--tpf", type=int, default=1, help="re-prefetch tail code")
ap.add_argument("--spin", type=int, default=0x40000)
a = ap.parse_args()

KN = "standalone__paged_block_table_kv_pagedattention__sampling_kernel"
out = []
def A(s): out.append("    " + s)
def L(s): out.append(s + ":")
def C(s): out.append("    ; " + s)
NT = (" " + a.nt) if a.nt else ""
ST = (" " + a.st) if a.st else ""
LD = (" " + a.ld) if a.ld else ""
OST = (" " + a.ost) if a.ost else ""
RST = (" " + a.rst) if a.rst else ""

KV_BYTES = 1028*16*8*128*2
REC = 16384
XT_OFF = 6 << 20
TS_OFF = 8 << 20
WREG = 28672
PBASE = 4*WREG
XMAX = PBASE + 32768
XL = XMAX + 2048
XN = XL + 2048
QBASE = XN + 64
LDS_BYTES = QBASE + 8192

sW, sH, sSlot, sB, sN, sStart, sI, sCl, sCnt, sLim = 20, 21, 22, 23, 24, 25, 26, 27, 28, 29
sT0, sT1, sT2, sT3 = 30, 31, 32, 33
sUni, sC, sR, sP, sLdsW, sA = 34, 35, 36, 37, 38, 39
sE = 40
sSO = 48
srdK, srdV, srdQ, srdX, srdO, srdD, srdW = 56, 60, 64, 68, 72, 76, 80
sM = 84
sGrp, sNonce, sRec, sJ = 92, 93, 94, 95
sCO = 4
sCN = 12
sCB, sDual, sOA, sOB, sRem, sMc, sHiN = 40, 41, 42, 43, 44, 45, 46
sThr = 0
sMiss, sAct = 47, 1
sXTg, sTag = 95, 3
vLane, vG, vN = 1, 2, 3
vKoff = 4; vVoff = 8; vLds = 12; vTok = 16; vNEG = 20
vT = 21
vMc = 30
vM = 32
vTr = 36
vPa = 40; vXw = 41; vXr = 42; vL16 = 43
vTrC = 44
vPC = 48
vRl = 50
vLsq = 52
vNon = 60
vS = 64
vO = 128
vRB = 144
vGr = 208
vLseN = 224
vTg = 227
vOo = 226
vCS = 228
def S(i, qt, r=0): return vS + i*8 + qt*4 + r
def O(mt, qt): return vO + (mt*2+qt)*4
aQ = 0; aK = 32; aOne = 64
NAGPR = 68
def vr(b, n=4): return f"v[{b}:{b+n-1}]"
def ar(b, n=4): return f"a[{b}:{b+n-1}]"
def sr(b, n=4): return f"s[{b}:{b+n-1}]"
def sp(b): return f"s[{b}:{b+1}]"

ts_slots = []
def TS(name):
    if not a.ts: return
    idx = len(ts_slots)
    ts_slots.append(name)
    A("s_memrealtime s[100:101]")
    A("s_waitcnt lgkmcnt(0)")
    A(f"v_writelane_b32 v63, s100, {idx}")

def TS2(name):
    if a.ts >= 2: TS(name)
def kslot(j): return j % 7
def vslot(j): return (j + 1) % 7
THR = [int(x) for x in a.thr.split(",")] if a.thr else None
thr_n = [0]
def throttle():
    if not THR: return
    k = thr_n[0]; thr_n[0] += 1
    A(f"s_bitcmp1_b32 s{sThr}, 0")
    A(f"s_cbranch_scc0 L_ta{k}")
    A(f"s_waitcnt vmcnt({THR[0]})")
    L(f"L_ta{k}")
    A(f"s_bitcmp1_b32 s{sThr}, 1")
    A(f"s_cbranch_scc0 L_tb{k}")
    A(f"s_waitcnt vmcnt({THR[1]})")
    L(f"L_tb{k}")
def kdma(j):
    if j >= 2: throttle()
    A(f"s_add_u32 m0, s{sLdsW}, {kslot(j)*4096}")
    A(f"s_lshl_b32 s{sSO+j}, s{sE+j}, 15")
    A(f"s_cmp_gt_u32 s{sCnt}, {j}")
    A(f"s_cselect_b32 s{sSO+j}, s{sSO+j}, 0x80000000")
    for jj in range(4):
        A(f"buffer_load_dwordx4 v{vKoff+jj}, {sr(srdK)}, s{sSO+j} offen offset:{jj*1024}{NT} lds")
def vdma(j):
    throttle()
    A(f"s_add_u32 m0, s{sLdsW}, {vslot(j)*4096}")
    A("s_nop 0")
    for jj in range(4):
        A(f"buffer_load_dwordx4 v{vVoff+jj}, {sr(srdV)}, s{sSO+j} offen offset:{jj*1024}{NT} lds")

L(KN)
A("s_cmp_ge_u32 s2, 256")
A("s_cbranch_scc1 L_end")
A("s_load_dwordx16 s[4:19], s[0:1], 0")
if a.cpf:
    A("s_getpc_b64 s[98:99]")
    A("v_lshlrev_b32 v62, 7, v0")
    A(f"v_cmp_gt_u32 vcc, {a.cpf*1024}, v62")
    A("s_and_saveexec_b64 s[96:97], vcc")
    A("s_cbranch_execz L_nocpf")
    A("global_load_dword v58, v62, s[98:99]")
    L("L_nocpf")
    A("s_mov_b64 exec, s[96:97]")
if a.ts:
    A("v_mov_b32 v63, 0")
TS("start")
A(f"v_and_b32 v{vLane}, 63, v0")
A(f"v_lshrrev_b32 v{vT}, 6, v0")
A(f"v_lshrrev_b32 v{vG}, 4, v{vLane}")
A(f"v_readfirstlane_b32 s{sW}, v{vT}")
A(f"v_and_b32 v{vN}, 15, v{vLane}")
if a.perm:
    A(f"s_and_b32 s{sH}, s2, 7")
    A(f"s_lshl_b32 s{sH}, s{sH}, 2")
    A(f"s_lshr_b32 s{sH}, {a.perm}, s{sH}")
    A(f"s_and_b32 s{sH}, s{sH}, 7")
elif a.rot:
    A(f"s_add_u32 s{sH}, s2, {a.rot}")
    A(f"s_and_b32 s{sH}, s{sH}, 7")
else:
    A(f"s_and_b32 s{sH}, s2, 7")
A(f"s_lshr_b32 s{sSlot}, s2, 3")
vMt = vT+1
vCl = vT+2
vP1 = vT+3
vClm = vT+4
A(f"v_add_u32 v{vT}, 1, v{vLane}")
A(f"v_cvt_f32_u32 v{vT}, v{vT}")
A(f"v_rcp_f32 v{vT}, v{vT}")
A(f"v_lshlrev_b32 v{vT+5}, 2, v{vLane}")
A(f"v_mul_f32 v{vT}, 0x47800000, v{vT}")
A(f"v_cvt_u32_f32 v{vT}, v{vT}")
A(f"v_add_u32 v{vMt}, 1, v{vT}")
for j in range(4):
    A(f"v_add_u32 v{vT+6}, {4*j}, v{vG}")
    A(f"v_xor_b32 v{vT+7}, v{vT+6}, v{vN}")
    A(f"v_lshlrev_b32 v{vT+8}, 11, v{vT+6}")
    if j: A(f"v_subrev_u32 v{vT+8}, {1024*j}, v{vT+8}")
    A(f"v_lshl_add_u32 v{vKoff+j}, v{vT+7}, 4, v{vT+8}")
    A(f"v_and_b32 v{vT+6}, 7, v{vT+6}")
    A(f"v_lshlrev_b32 v{vT+6}, 1, v{vT+6}")
    A(f"v_xor_b32 v{vT+7}, v{vT+6}, v{vN}")
    A(f"v_lshl_add_u32 v{vVoff+j}, v{vT+7}, 4, v{vT+8}")
TS2("preka")
A("s_waitcnt lgkmcnt(0)")
TS2("ka")
A(f"s_mov_b32 s{srdX}, s12"); A(f"s_mov_b32 s{srdX+1}, s13"); A(f"s_mov_b32 s{srdX+2}, 32"); A(f"s_mov_b32 s{srdX+3}, 0x20000")
A(f"buffer_load_dword v{vCl}, v{vT+5}, {sr(srdX)}, 0 offen")
srdBT = sM
A(f"s_mov_b32 s{srdBT}, s10"); A(f"s_mov_b32 s{srdBT+1}, s11"); A(f"s_mov_b32 s{srdBT+2}, 4096"); A(f"s_mov_b32 s{srdBT+3}, 0x20000")
A(f"v_lshlrev_b32 v{vT+6}, 6, v{vLane}")
A(f"buffer_load_dword v59, v{vT+6}, {sr(srdBT)}, 0 offen")
A(f"s_mov_b32 s{srdW}, s18"); A(f"s_mov_b32 s{srdW+1}, s19"); A(f"s_mov_b32 s{srdW+2}, 0x10000000"); A(f"s_mov_b32 s{srdW+3}, 0x20000")
A(f"v_lshlrev_b32 v{vL16}, 4, v{vLane}")
A(f"s_lshl_b32 s{sT0}, s{sH}, 5")
A(f"s_add_u32 s{sT1}, s{sT0}, s{sSlot}")
A(f"s_lshl_b32 s{sRec}, s{sT1}, 14")
A(f"s_lshl_b32 s{sT1}, s{sW}, 12")
A(f"s_add_u32 s{sRec}, s{sRec}, s{sT1}")
if a.rpf == 1:
    for u in range(4):
        A(f"buffer_load_dwordx4 {vr(vS+4*u)}, v{vL16}, {sr(srdW)}, s{sRec} offen offset:{u*1024}")
elif a.rpf == 3:
    A(f"v_lshlrev_b32 v{vS}, 6, v{vLane}")
    A(f"buffer_load_dword v{vS+1}, v{vS}, {sr(srdW)}, s{sRec} offen")
elif a.rpf == 2:
    for c in range(4): A(f"v_mov_b32 v{vS+c}, 0")
    for u in range(4):
        A(f"buffer_store_dwordx4 {vr(vS)}, v{vL16}, {sr(srdW)}, s{sRec} offen offset:{u*1024}{RST}")
A(f"s_mul_i32 s{sLdsW}, s{sW}, {WREG}")
A(f"v_lshlrev_b32 v{vT+6}, 8, v{vN}")
A(f"v_add_u32 v{vT+6}, s{sLdsW}, v{vT+6}")
for s in range(4):
    A(f"v_add_u32 v{vT+7}, {4*s}, v{vG}")
    A(f"v_xor_b32 v{vT+7}, v{vT+7}, v{vN}")
    A(f"v_lshl_add_u32 v{vLds+s}, v{vT+7}, 4, v{vT+6}")
for r in range(4):
    A(f"v_lshl_add_u32 v{vTok+r}, v{vG}, 2, {r}")
A(f"v_mov_b32 v{vNEG}, 0xf149f2ca")
A(f"s_mov_b32 s{sC}, 0x3e0293ee")
A(f"s_lshl_b32 s{sT0}, s{sH}, 8")
A(f"s_add_u32 s{srdK}, s6, s{sT0}"); A(f"s_addc_u32 s{srdK+1}, s7, 0"); A(f"s_sub_u32 s{srdK+2}, {KV_BYTES}, s{sT0}"); A(f"s_mov_b32 s{srdK+3}, 0x20000")
A(f"s_add_u32 s{srdV}, s8, s{sT0}"); A(f"s_addc_u32 s{srdV+1}, s9, 0"); A(f"s_sub_u32 s{srdV+2}, {KV_BYTES}, s{sT0}"); A(f"s_mov_b32 s{srdV+3}, 0x20000")
vQo = vT+7
A(f"s_lshl_b32 s{sT1}, s{sW}, 3")
for jj in range(2):
    A(f"v_add_u32 v{vT+6}, s{sT1}, v{vG}")
    if jj: A(f"v_add_u32 v{vT+6}, 4, v{vT+6}")
    A(f"v_and_b32 v{vT}, 15, v{vT+6}")
    A(f"v_xor_b32 v{vT}, v{vT}, v{vN}")
    A(f"v_lshlrev_b32 v{vT+6}, 8, v{vT+6}")
    if jj: A(f"v_subrev_u32 v{vT+6}, 1024, v{vT+6}")
    A(f"v_lshl_add_u32 v{vQo+jj}, v{vT}, 4, v{vT+6}")
TS("karg")
A(f"s_waitcnt vmcnt({ {0:1,1:5,2:5,3:2}[a.rpf] })")
TS2("clw")
A(f"v_add_u32 v{vClm}, -1, v{vCl}")
A(f"v_min_u32 v{vClm}, 0x7ff, v{vClm}")
A(f"v_lshrrev_b32 v{vP1}, 4, v{vClm}")
A("s_nop 0")
for b in range(8):
    A(f"v_readlane_b32 s{sE+b}, v{vP1}, {b}")
vAcc = vT+5; vTt = vT+6
A(f"v_mul_u32_u24 v{vAcc}, s{sE}, v{vMt}")
A(f"v_lshrrev_b32 v{vAcc}, 16, v{vAcc}")
for b in range(1, 8):
    A(f"v_mul_u32_u24 v{vTt}, s{sE+b}, v{vMt}")
    A(f"v_add_u32_sdwa v{vAcc}, v{vAcc}, v{vTt} dst_sel:DWORD dst_unused:UNUSED_PAD src0_sel:DWORD src1_sel:WORD_1")
A(f"v_cmp_ge_u32 vcc, 24, v{vAcc}")
A("s_nop 1")
A(f"s_ff1_i32_b64 s{sT0}, vcc")
if THR: A(f"s_add_u32 s{sA}, s{sT0}, 1")
TS2("cf")
A("s_nop 0")
A(f"v_readlane_b32 s{sT1}, v{vMt}, s{sT0}")
A("s_nop 1")
vNb = vAcc; vInc = vTt
A(f"v_mul_u32_u24 v{vNb}, s{sT1}, v{vP1}")
A(f"v_lshrrev_b32 v{vNb}, 16, v{vNb}")
A(f"v_add_u32 v{vNb}, 1, v{vNb}")
A(f"v_mov_b32 v{vInc}, v{vNb}")
for sh in (1, 2, 4):
    A("s_nop 1")
    A(f"v_add_u32_dpp v{vInc}, v{vInc}, v{vInc} row_shr:{sh} row_mask:0xf bank_mask:0xf bound_ctrl:0")
A(f"v_cmp_lt_u32 vcc, s{sSlot}, v{vInc}")
A("s_nop 1")
A("s_and_b32 vcc_lo, vcc_lo, 0xff")
A("s_cbranch_scc0 L_end")
A(f"s_ff1_i32_b32 s{sB}, vcc_lo")
TS2("bf")
A("s_nop 0")
A(f"v_readlane_b32 s{sN}, v{vNb}, s{sB}")
A(f"v_readlane_b32 s{sStart}, v{vInc}, s{sB}")
A(f"v_readlane_b32 s{sT2}, v{vP1}, s{sB}")
A(f"v_readlane_b32 s{sCl}, v{vClm}, s{sB}")
A(f"v_readlane_b32 s{sUni}, v{vCl}, s{sB}")
A(f"s_sub_u32 s{sT0}, s{sN}, 1")
A(f"v_readlane_b32 s{sT1}, v{vMt}, s{sT0}")
A(f"s_sub_u32 s{sStart}, s{sStart}, s{sN}")
A(f"s_sub_u32 s{sI}, s{sSlot}, s{sStart}")
A(f"s_add_u32 s{sT2}, s{sT2}, 1")
A(f"s_mul_i32 s{sT1}, s{sT1}, s{sT2}")
A(f"s_mul_i32 s{sT3}, s{sT1}, s{sI}")
A(f"s_add_u32 s{sT1}, s{sT1}, s{sT3}")
A(f"s_lshr_b32 s{sT3}, s{sT3}, 16")
A(f"s_lshr_b32 s{sT1}, s{sT1}, 16")
A(f"s_cmp_eq_u32 s{sI}, s{sT0}")
A(f"s_cselect_b32 s{sT1}, s{sT2}, s{sT1}")
A(f"s_sub_u32 s{sT1}, s{sT1}, s{sT3}")
if THR:
    A(f"s_lshr_b32 s{sP}, s6, 8")
    A(f"s_add_u32 s{sP}, s{sP}, s{sH}")
    A(f"s_and_b32 s{sP}, s{sP}, 3")
    A(f"s_cmp_eq_u32 s{sP}, 1")
    A(f"s_cselect_b32 s{sP}, {THR[4]}, 8")
    A(f"s_mul_i32 s{sP}, s{sP}, s{sT1}")
    A(f"s_mul_i32 s{sA}, s{sA}, {THR[4]}")
    A(f"s_sub_i32 s{sP}, s{sA}, s{sP}")
    A(f"s_lshl_b32 s{sP}, s{sP}, 6")
    A(f"s_mul_i32 s{sR}, s{sA}, {THR[2]}")
    A(f"s_cmp_ge_i32 s{sP}, s{sR}")
    A(f"s_cselect_b32 s{sThr}, 1, 0")
    A(f"s_mul_i32 s{sR}, s{sA}, {THR[3]}")
    A(f"s_cmp_ge_i32 s{sP}, s{sR}")
    A(f"s_cselect_b32 s{sR}, 2, 0")
    A(f"s_or_b32 s{sThr}, s{sThr}, s{sR}")
A(f"s_add_u32 s{sR}, s{sT1}, 7")
A(f"s_lshr_b32 s{sR}, s{sR}, 3")
A(f"s_lshr_b32 s{sT0}, s{sT1}, 2")
A(f"s_and_b32 s{sT1}, s{sT1}, 3")
A(f"s_mul_i32 s{sT2}, s{sW}, s{sT0}")
A(f"s_add_u32 s{sT3}, s{sT3}, s{sT2}")
A(f"s_min_u32 s{sT2}, s{sW}, s{sT1}")
A(f"s_add_u32 s{sT3}, s{sT3}, s{sT2}")
A(f"s_cmp_lt_u32 s{sW}, s{sT1}")
A(f"s_addc_u32 s{sCnt}, s{sT0}, 0")
A(f"s_lshl_b32 s{sT0}, s{sB}, 7")
A(f"s_add_u32 s{sT0}, s{sT0}, s{sT3}")
A(f"s_lshl_b32 s{sT0}, s{sT0}, 2")
A(f"s_buffer_load_dwordx8 s[{sE}:{sE+7}], {sr(srdBT)}, s{sT0}")
A(f"s_add_u32 s{sCl}, s{sCl}, 1")
A(f"s_lshl_b32 s{sT3}, s{sT3}, 4")
A(f"s_sub_i32 s{sLim}, s{sCl}, s{sT3}")
A(f"s_lshl_b32 s{sT2}, s{sCnt}, 4")
A(f"s_min_i32 s{sLim}, s{sLim}, s{sT2}")
A(f"s_lshl_b32 s{sT0}, s{sB}, 16")
A(f"s_lshl_b32 s{sT1}, s{sH}, 13")
A(f"s_add_u32 s{sT0}, s{sT0}, s{sT1}")
A(f"s_add_u32 s{srdQ}, s4, s{sT0}"); A(f"s_addc_u32 s{srdQ+1}, s5, 0"); A(f"s_mov_b32 s{srdQ+2}, 8192"); A(f"s_mov_b32 s{srdQ+3}, 0x20000")
A(f"s_add_u32 s{srdO}, s14, s{sT0}"); A(f"s_addc_u32 s{srdO+1}, s15, 0"); A(f"s_mov_b32 s{srdO+2}, 8192"); A(f"s_mov_b32 s{srdO+3}, 0x20000")
TS("alloc")
A("s_waitcnt lgkmcnt(0)")
kdma(0)
TS2("k0i")
A(f"s_lshl_b32 s{sT1}, s{sW}, 11")
A(f"s_add_u32 m0, s{sT1}, {QBASE}")
A("s_nop 0")
for jj in range(2):
    A(f"buffer_load_dwordx4 v{vQo+jj}, {sr(srdQ)}, 0 offen offset:{jj*1024} lds")
for j in range(1, 5): kdma(j)
TS("k4issued")
A("s_memrealtime s[96:97]")
A(f"s_lshl_b32 s{sGrp}, s{sB}, 3")
A(f"s_add_u32 s{sGrp}, s{sGrp}, s{sH}")
A(f"s_lshl_b32 s{sT0}, s{sGrp}, 2")
A(f"s_cmp_eq_u32 s{sW}, 0")
A(f"s_cselect_b32 s{sT0}, s{sT0}, 0x1000")
A(f"s_mov_b32 s{srdD}, s16"); A(f"s_mov_b32 s{srdD+1}, s17"); A(f"s_mov_b32 s{srdD+2}, 256"); A(f"s_mov_b32 s{srdD+3}, 0x20000")
A(f"v_mov_b32 v{vNon+2}, s{sT0}")
A(f"v_mov_b32 v{vNon+1}, 0")
A("s_waitcnt lgkmcnt(0)")
A(f"s_and_b32 s{sNonce}, s96, 0xffffffe0")
A(f"s_or_b32 s{sNonce}, s{sNonce}, 0x10")
A(f"v_mov_b32 v{vNon}, s{sNonce}")
A("s_mov_b64 exec, 1")
A(f"buffer_atomic_cmpswap v[{vNon}:{vNon+1}], v{vNon+2}, {sr(srdD)}, 0 offen sc0 sc1")
A("s_mov_b64 exec, -1")
A(f"v_lshrrev_b32 v{vT}, 2, v{vLane}")
A(f"v_and_b32 v{vT+1}, 7, v{vT}")
A(f"v_lshlrev_b32 v{vT+1}, 1, v{vT+1}")
A(f"v_bfe_u32 v{vT+2}, v{vLane}, 1, 1")
A(f"s_lshl_b32 s{sT0}, s{sW}, 2")
A(f"v_add_u32 v{vT+2}, s{sT0}, v{vT+2}")
A(f"v_and_b32 v{vT+3}, 1, v{vLane}")
A(f"v_lshlrev_b32 v{vT+3}, 3, v{vT+3}")
A(f"v_lshl_add_u32 v{vT+3}, v{vT}, 8, v{vT+3}")
for mt in range(2):
    A(f"v_add_u32 v{vT+4}, {2*mt}, v{vT+2}")
    A(f"v_xor_b32 v{vT+4}, v{vT+4}, v{vT+1}")
    A(f"v_lshl_add_u32 v{vTr+mt}, v{vT+4}, 4, v{vT+3}")
    A(f"v_add_u32 v{vTr+2+mt}, {2*WREG}, v{vTr+mt}")
A(f"v_add_u32 v{vPa}, {PBASE}, v{vL16}")
A(f"s_lshl_b32 s{sT0}, s{sW}, 2")
A(f"s_add_u32 s{sT0}, s{sT0}, {XMAX}")
A(f"v_add_u32 v{vXw}, s{sT0}, v{vL16}")
A(f"v_add_u32 v{vXr}, {XMAX}, v{vL16}")
A(f"v_mov_b32 v{vT}, 0x3f803f80")
for r in range(4): A(f"v_accvgpr_write_b32 a{aOne+r}, v{vT}")
A(f"s_sub_u32 s{sT0}, {QBASE}, s{sLdsW}")
for s in range(4): A(f"v_add_u32 v{vT+s}, s{sT0}, v{vLds+s}")

nxt = ["K5", "K6", "K7", "V0", "V1", "V2", "V3", "V4"]
for j in range(8):
    kb = aK + (j & 1)*16
    A(f"s_waitcnt vmcnt({17 if j < 5 else (16 + (a.fast if j > 5 else 0))})")
    if j == 0:
        A("s_barrier")
        for qt in range(2):
            for s in range(4):
                A(f"ds_read_b128 {ar(aQ+(qt*4+s)*4)}, v{vT+s} offset:{qt*4096}")
    for s in range(4):
        A(f"ds_read_b128 {ar(kb+4*s)}, v{vLds+s} offset:{kslot(j)*4096}")
    A(f"s_sub_i32 s{sT0}, s{sLim}, {16*j}")
    for r in range(4):
        A(f"v_cmp_gt_i32 {sp(sM+2*r)}, s{sT0}, v{vTok+r}")
    for r in range(4):
        A(f"v_cndmask_b32 v{vM+r}, v{vNEG}, 0, {sp(sM+2*r)}")
    if j == 0:
        A("s_waitcnt lgkmcnt(4)")
        A(f"s_cmp_gt_i32 s{sUni}, 0")
        A("s_cbranch_scc1 L_qok")
        A(f"v_mov_b32 v{vT}, 0")
        for r in range(32): A(f"v_accvgpr_write_b32 a{aQ+r}, v{vT}")
        L("L_qok")
    if j == 5:
        A(f"v_readfirstlane_b32 s{sT1}, v{vNon}")
    A("s_nop 0")
    for s in range(4):
        A(f"s_waitcnt lgkmcnt({3-s})")
        for qt in range(2):
            c = vr(vM) if s == 0 else vr(S(j,qt))
            A(f"v_mfma_f32_16x16x32_bf16 {vr(S(j,qt))}, {ar(kb+4*s)}, {ar(aQ+(qt*4+s)*4)}, {c}")
    if j == 5:
        A(f"s_cmp_eq_u32 s{sT1}, 0")
        A(f"s_cselect_b32 s{sNonce}, s{sNonce}, s{sT1}")
        if a.fast:
            A(f"s_getreg_b32 s{sT0}, hwreg(HW_REG_XCC_ID)")
            A(f"s_and_b32 s{sTag}, s{sT0}, 7")
            A(f"s_or_b32 s{sT0}, s{sNonce}, s{sTag}")
            A(f"s_lshl_b32 s{sXTg}, s{sGrp}, 7")
            A(f"s_add_u32 s{sXTg}, s{sXTg}, {XT_OFF}")
            A(f"s_lshl_b32 s{sT1}, s{sI}, 2")
            A(f"s_add_u32 s{sT1}, s{sT1}, s{sXTg}")
            A(f"s_cmp_eq_u32 s{sW}, 0")
            A(f"s_cselect_b32 s{sT1}, s{sT1}, 0x80000000")
            A(f"v_mov_b32 v{vT+5}, s{sT0}")
            A(f"v_mov_b32 v{vT+6}, 0")
            A("s_mov_b64 exec, 1")
            A(f"buffer_store_dword v{vT+5}, v{vT+6}, {sr(srdW)}, s{sT1} offen sc1")
            A("s_mov_b64 exec, -1")
    nm = nxt[j]
    if nm[0] == "K": kdma(int(nm[1]))
    else: vdma(int(nm[1]))
    if j in (0, 3, 7): TS(f"k{j}")
for qt in range(2):
    regs = [S(i,qt,r) for i in range(8) for r in range(4)]
    m = vMc+qt
    A(f"v_max3_f32 v{m}, v{regs[0]}, v{regs[1]}, v{regs[2]}")
    k = 3
    while k + 1 < len(regs):
        A(f"v_max3_f32 v{m}, v{m}, v{regs[k]}, v{regs[k+1]}")
        k += 2
    if k < len(regs):
        A(f"v_max_f32 v{m}, v{m}, v{regs[k]}")
for op in ("v_permlane16_swap_b32", "v_permlane32_swap_b32"):
    for qt in range(2): A(f"v_mov_b32 v{vT+qt}, v{vMc+qt}")
    A("s_nop 1")
    for qt in range(2): A(f"{op} v{vMc+qt}, v{vT+qt}")
    for qt in range(2): A(f"v_max_f32 v{vMc+qt}, v{vMc+qt}, v{vT+qt}")
for qt in range(2):
    A(f"ds_write_b32 v{vXw}, v{vMc+qt} offset:{qt*1024}")
A(f"s_lshl_b32 s{sT0}, s{sW}, 2")
A(f"s_add_u32 s{sT0}, s{sT0}, {XN}")
A(f"v_mov_b32 v{vT+2}, s{sT0}")
A(f"v_mov_b32 v{vT+3}, s{sNonce}")
A("s_mov_b64 exec, 1")
A(f"ds_write_b32 v{vT+2}, v{vT+3}")
A("s_mov_b64 exec, -1")
vdma(5)
A("s_waitcnt lgkmcnt(0)")
A("s_barrier")
TS("bar1")
for qt in range(2):
    A(f"ds_read_b128 {vr(vRB+4*qt)}, v{vXr} offset:{qt*1024}")
A(f"v_mov_b32 v{vT+2}, {XN}")
A(f"ds_read_b32 v{vT+3}, v{vT+2}")
A("s_waitcnt lgkmcnt(1)")
for qt in range(2):
    b = vRB+4*qt
    A(f"v_max3_f32 v{vMc+qt}, v{b}, v{b+1}, v{b+2}")
for qt in range(2):
    A(f"v_max_f32 v{vMc+qt}, v{vMc+qt}, v{vRB+4*qt+3}")
for qt in range(2):
    A(f"v_mul_f32 v{vMc+qt}, s{sC}, v{vMc+qt}")
A("s_waitcnt lgkmcnt(0)")
A(f"v_readfirstlane_b32 s{sNonce}, v{vT+3}")
A(f"s_lshl_b32 s{sT0}, s{sW}, 13")
A(f"v_add_u32 v{vT+4}, s{sT0}, v{vPa}")
for p in range(4):
    for qt in range(2):
        for i in (2*p, 2*p+1):
            for r in range(4):
                A(f"v_fma_f32 v{S(i,qt,r)}, v{S(i,qt,r)}, s{sC}, -v{vMc+qt}")
            for r in range(4):
                A(f"v_exp_f32 v{S(i,qt,r)}, v{S(i,qt,r)}")
        d = S(2*p,qt)
        A(f"v_cvt_pk_bf16_f32 v{d}, v{S(2*p,qt,0)}, v{S(2*p,qt,1)}")
        A(f"v_cvt_pk_bf16_f32 v{d+1}, v{S(2*p,qt,2)}, v{S(2*p,qt,3)}")
        A(f"v_cvt_pk_bf16_f32 v{d+2}, v{S(2*p+1,qt,0)}, v{S(2*p+1,qt,1)}")
        A(f"v_cvt_pk_bf16_f32 v{d+3}, v{S(2*p+1,qt,2)}, v{S(2*p+1,qt,3)}")
        A(f"ds_write_b128 v{vT+4}, {vr(d)} offset:{p*2048+qt*1024}")
        if p > 0 or qt > 0:
            pp, pq = (p, 0) if qt == 1 else (p-1, 1)
            c = "0" if pp == 0 else vr(vLsq+4*pq)
            A(f"v_mfma_f32_16x16x32_bf16 {vr(vLsq+4*pq)}, {ar(aOne)}, {vr(S(2*pp,pq))}, {c}")
    if p == 1:
        vdma(6)
        if a.tpf:
            A("s_getpc_b64 s[98:99]")
            L("L_tpf")
            A(f"v_lshlrev_b32 v{vT}, 7, v{vLane}")
            A(f"v_min_u32 v{vT}, L_end-L_tpf, v{vT}")
            A(f"global_load_dword v{vT+1}, v{vT}, s[98:99]")
A("s_nop 1")
A(f"v_mfma_f32_16x16x32_bf16 {vr(vLsq+4)}, {ar(aOne)}, {vr(S(6,1))}, {vr(vLsq+4)}")
A(f"s_lshl_b32 s{sT0}, s{sH}, 5")
A(f"s_lshl_b32 s{sT1}, s{sW}, 12")
A("s_nop 2")
A(f"s_add_u32 s{sT0}, s{sT0}, s{sStart}")
A(f"s_lshl_b32 s{sGrp}, s{sT0}, 14")
A(f"s_add_u32 s{sGrp}, s{sGrp}, s{sT1}")
A("s_nop 3")
A(f"v_add_u32 v{vT+4}, {XL-XMAX}, v{vXw}")
for qt in range(2):
    A(f"ds_write_b32 v{vT+4}, v{vLsq+4*qt} offset:{qt*1024}")
A("s_waitcnt lgkmcnt(0)")
A("s_barrier")
TS("bar2")
if a.fast:
    A(f"v_lshlrev_b32 v{vT+5}, 2, v{vLane}")
    A(f"v_cmp_gt_u32 vcc, s{sN}, v{vLane}")
    A(f"v_mov_b32 v{vT+6}, 0x40000000")
    A("s_nop 0")
    A(f"v_cndmask_b32 v{vT+5}, v{vT+6}, v{vT+5}, vcc")
    A(f"buffer_load_dword v{vTg}, v{vT+5}, {sr(srdW)}, s{sXTg} offen sc1")
for qt in range(2):
    A(f"ds_read_b128 {vr(vRB+4*qt)}, v{vXr} offset:{XL-XMAX+qt*1024}")
A(f"s_mov_b32 s{sP}, 0")
A(f"s_mov_b32 s{sA}, 4096")
for k in range(4): A(f"v_add_u32 v{vTrC+k}, 4096, v{vTr+k}")
A(f"v_mov_b32 v{vPC}, v{vPa}")
A("s_waitcnt lgkmcnt(0)")
for qt in range(2):
    b = vRB+4*qt
    A(f"v_add_f32 v{b}, v{b}, v{b+1}")
    A(f"v_add_f32 v{b+2}, v{b+2}, v{b+3}")
for qt in range(2):
    b = vRB+4*qt
    A(f"v_add_f32 v{b}, v{b}, v{b+2}")
for qt in range(2):
    b = vRB+4*qt
    A(f"v_rcp_f32 v{vRl+qt}, v{b}")
    A(f"v_log_f32 v{b+1}, v{b}")
A("s_nop 0")
for qt in range(2):
    b = vRB+4*qt
    A(f"v_add_f32 v{b+1}, v{b+1}, v{vMc+qt}")
for mt in range(2):
    for qt in range(2):
        A(f"v_mov_b32 v{vGr+(mt*2+qt)*4+2}, v{vRB+4*qt+1}")
for qt in range(2):
    A(f"v_xor_b32 v{vLseN+qt}, s{sNonce}, v{vRB+4*qt+1}")
for r in range(16): A(f"v_mov_b32 v{vO+r}, 0")
A(f"v_lshlrev_b32 v{vOo}, 8, v{vN}")
A(f"v_lshl_add_u32 v{vOo}, v{vG}, 3, v{vOo}")
A(f"s_lshl_b32 s{sT0}, s{sI}, 10")
A(f"s_add_u32 s{sCB}, s{sT0}, s{sGrp}")
A(f"s_add_u32 s{sT1}, s{sI}, s{sN}")
A(f"s_cmp_lt_u32 s{sT1}, 4")
A(f"s_cselect_b32 s{sDual}, 1, 0")
A(f"s_lshl_b32 s{sT2}, s{sT1}, 10")
A(f"s_add_u32 s{sT2}, s{sT2}, s{sGrp}")
A(f"s_sub_u32 s{sT2}, s{sT2}, {4*REC}")
A(f"s_add_u32 s{sT3}, s{sN}, 4")
A(f"s_cmp_lg_u32 s{sDual}, 0")
A(f"s_cselect_b32 s{sT2}, s{sT2}, s{sCB}")
A(f"s_cselect_b32 s{sT3}, s{sT3}, s{sN}")
A(f"s_mov_b32 s{sHiN}, s{sT3}")
for s_ in range(8):
    b = sCB if s_ < 4 else sT2
    n_ = sN if s_ < 4 else sT3
    A(f"s_add_u32 s{sT0}, s{b}, {s_*REC}")
    A(f"s_cmp_gt_u32 s{n_}, {s_}")
    A(f"s_cselect_b32 s{sCO+s_}, s{sT0}, 0x80000000")
    A(f"s_cselect_b32 s{sCN+s_}, s{sNonce}, 0")
if a.sel:
    A(f"s_min_u32 s{sT0}, s{sN}, 4")
    A(f"s_bfm_b32 s{sAct}, s{sT0}, 0")
    A(f"s_min_u32 s{sT0}, s{sT3}, 8")
    A(f"s_bfm_b32 s{sT0}, s{sT0}, 0")
    A(f"s_and_b32 s{sT0}, s{sT0}, 0xf0")
    A(f"s_or_b32 s{sAct}, s{sAct}, s{sT0}")
def outoff(dst, j):
    A(f"s_and_b32 s{sT0}, s{j}, 1")
    A(f"s_lshl_b32 s{sT0}, s{sT0}, 12")
    A(f"s_lshr_b32 s{dst}, s{j}, 1")
    A(f"s_lshl_b32 s{dst}, s{dst}, 5")
    A(f"s_add_u32 s{dst}, s{dst}, s{sT0}")
    A(f"s_lshl_b32 s{sT0}, s{sW}, 6")
    A(f"s_add_u32 s{dst}, s{dst}, s{sT0}")
outoff(sOA, sI)
outoff(sOB, sT1)
A(f"s_mov_b32 s{sRem}, s{sN}")
A(f"s_min_u32 s{sMc}, s{sN}, 8")
A(f"v_mov_b32 v{vCS+4}, v{vNEG}")
A(f"v_mov_b32 v{vCS+5}, 0")
for c in range(4): A(f"v_mov_b32 v{vCS+c}, 0")
L("L_round")
A(f"s_add_u32 s{sT0}, s{sP}, 1")
A(f"s_cmp_eq_u32 s{sT0}, s{sR}")
A("s_cbranch_scc1 L_w0")
A(f"s_cmp_eq_u32 s{sP}, 0")
A("s_cbranch_scc1 L_w20")
A(f"s_cmp_eq_u32 s{sP}, 1")
A("s_cbranch_scc1 L_w12")
A(f"s_waitcnt vmcnt({8+a.tpf+a.fast})")
A("s_branch L_wd")
L("L_w20")
A(f"s_waitcnt vmcnt({20+a.tpf+2*a.fast})")
A("s_branch L_wd")
L("L_w12")
A(f"s_waitcnt vmcnt({12+a.tpf+a.fast})")
A("s_branch L_wd")
L("L_w0")
A("s_waitcnt vmcnt(0)")
L("L_wd")
A("s_barrier")
def rd(w_):
    b = vRB + 16*w_
    for qt in range(2):
        A(f"ds_read_b128 {vr(b+4*qt)}, v{vPC} offset:{w_*8192+qt*1024}")
    for mt in range(2):
        for hh in range(2):
            A(f"ds_read_b64_tr_b16 {vr(b+8+4*mt+2*hh, 2)}, v{vTrC+(w_>>1)*2+mt} offset:{(w_&1)*WREG+hh*4096}")
def mm(w_):
    b = vRB + 16*w_
    for mt in range(2):
        for qt in range(2):
            A(f"v_mfma_f32_16x16x32_bf16 {vr(O(mt,qt))}, {vr(b+8+4*mt)}, {vr(b+4*qt)}, {vr(O(mt,qt))}")
rd(0); rd(1)
A(f"s_cmp_lg_u32 s{sP}, 1")
A("s_cbranch_scc1 L_nov7")
vdma(7)
L("L_nov7")
A("s_waitcnt lgkmcnt(6)")
rd(2); mm(0)
A("s_waitcnt lgkmcnt(6)")
rd(3); mm(1)
A(f"s_add_u32 s{sA}, s{sA}, 8192")
A(f"s_cmp_ge_u32 s{sA}, {WREG}")
A(f"s_cselect_b32 s{sT0}, {WREG}, 0")
A(f"s_sub_u32 s{sA}, s{sA}, s{sT0}")
A("s_waitcnt lgkmcnt(6)")
mm(2)
for k in range(4): A(f"v_add_u32 v{vTrC+k}, s{sA}, v{vTr+k}")
A(f"v_add_u32 v{vPC}, 2048, v{vPC}")
A("s_waitcnt lgkmcnt(0)")
mm(3)
A(f"s_add_u32 s{sP}, s{sP}, 1")
A(f"s_cmp_lt_u32 s{sP}, s{sR}")
A("s_cbranch_scc1 L_round")
TS("pv")
def publish(flags):
    for mt in range(2):
        for qt in range(2):
            o = O(mt,qt); g = vGr+(mt*2+qt)*4
            for r in range(4): A(f"v_mul_f32 v{o+r}, v{o+r}, v{vRl+qt}")
            A(f"v_cvt_pk_bf16_f32 v{g}, v{o}, v{o+1}")
            A(f"v_cvt_pk_bf16_f32 v{g+1}, v{o+2}, v{o+3}")
            A(f"v_bitop3_b32 v{g+3}, v{g}, v{g+1}, v{vLseN+qt} bitop3:0x96")
            A(f"buffer_store_dwordx4 {vr(g)}, v{vL16}, {sr(srdW)}, s{sRec} offen offset:{(mt*2+qt)*1024}{flags}")
if a.fast:
    A(f"s_or_b32 s{sT0}, s{sNonce}, s{sTag}")
    A(f"v_cmp_eq_u32 vcc, s{sT0}, v{vTg}")
    A(f"s_bfm_b64 {sp(sM)}, s{sN}, 0")
    A("s_nop 0")
    A(f"s_cmp_eq_u64 vcc, {sp(sM)}")
    A("s_cbranch_scc0 L_pubslow")
    publish((" " + a.fst) if a.fst else "")
    L("L_pubdone")
else:
    A("s_nop 4")
    publish(ST)
TS("stored")
vAcc = vCS; vMx = vCS+4; vW = vCS+5; vTmp = vCS+6
vSrc = vRB
A(f"s_cmp_eq_u32 s{sN}, 1")
A("s_cbranch_scc1 L_direct")
A(f"s_cmp_ge_u32 s{sI}, 4")
A("s_cbranch_scc1 L_fin")
A(f"s_mov_b32 s{sT2}, {a.spin}")
L("L_poll")
def ladder(lo, hi, bound, tgt, body):
    for s_ in range(lo, hi):
        if a.lad and s_ not in (0, 1):
            A(f"s_cmp_le_u32 s{bound}, {s_}")
            A(f"s_cbranch_scc1 {tgt}")
        body(s_)
def ld_body(s_): A(f"buffer_load_dwordx4 {vr(vSrc+4*s_)}, v{vL16}, {sr(srdW)}, s{sCO+s_} offen{LD}")
ladder(0, 4, sN, "L_i4", ld_body)
L("L_i4")
ladder(4, 8, sHiN, "L_i8", ld_body)
L("L_i8")
if a.ts:
    A(f"s_cmp_eq_u32 s{sT2}, {a.spin}")
    A("s_cbranch_scc0 L_ts1")
    TS("iss1")
    L("L_ts1")
A(f"v_mov_b32 v{vTmp+2}, 0")
A("s_waitcnt vmcnt(0)")
if a.ts:
    A(f"s_cmp_eq_u32 s{sT2}, {a.spin}")
    A("s_cbranch_scc0 L_ts2")
    TS("ld1")
    L("L_ts2")
if not a.sel:
    def ck_body(s_):
        g = vSrc+4*s_
        A(f"v_bitop3_b32 v{vTmp}, v{g}, v{g+1}, v{g+2} bitop3:0x96")
        A(f"v_bitop3_b32 v{vTmp}, v{vTmp}, v{g+3}, s{sCN+s_} bitop3:0x96")
        A(f"v_or_b32 v{vTmp+2}, v{vTmp+2}, v{vTmp}")
    ladder(0, 4, sN, "L_c4", ck_body)
    L("L_c4")
    ladder(4, 8, sHiN, "L_c8", ck_body)
    L("L_c8")
    A(f"v_cmp_eq_u32 vcc, 0, v{vTmp+2}")
    A(f"s_sub_u32 s{sT2}, s{sT2}, 1")
    A("s_cbranch_scc1 L_ok")
    A("s_cmp_eq_u64 vcc, exec")
    if a.sleep:
        A("s_cbranch_scc1 L_ok")
        A(f"s_sleep {a.sleep}")
        A("s_branch L_poll")
    else:
        A("s_cbranch_scc0 L_poll")
else:
    vXs = vRB + 48
    def ck_body(s_):
        g = vSrc+4*s_
        A(f"v_bitop3_b32 v{vTmp}, v{g}, v{g+1}, v{g+2} bitop3:0x96")
        A(f"v_bitop3_b32 v{vXs+s_}, v{vTmp}, v{g+3}, s{sCN+s_} bitop3:0x96")
        A(f"v_or_b32 v{vTmp+2}, v{vTmp+2}, v{vXs+s_}")
    ladder(0, 4, sN, "L_c4", ck_body)
    L("L_c4")
    ladder(4, 8, sHiN, "L_c8", ck_body)
    L("L_c8")
    A(f"v_cmp_eq_u32 vcc, 0, v{vTmp+2}")
    A(f"s_mov_b32 s{sMiss}, 0")
    A("s_cmp_eq_u64 vcc, exec")
    A("s_cbranch_scc1 L_ok")
    for s_ in range(8):
        A(f"v_cmp_ne_u32 vcc, 0, v{vXs+s_}")
        A("s_cmp_lg_u64 vcc, 0")
        A(f"s_cselect_b32 s{sT0}, {1<<s_}, 0")
        A(f"s_or_b32 s{sMiss}, s{sMiss}, s{sT0}")
    A(f"s_and_b32 s{sMiss}, s{sMiss}, s{sAct}")
    L("L_sel")
    for s_ in range(8):
        A(f"s_bitcmp1_b32 s{sMiss}, {s_}")
        A(f"s_cbranch_scc0 L_sl{s_}")
        A(f"buffer_load_dwordx4 {vr(vSrc+4*s_)}, v{vL16}, {sr(srdW)}, s{sCO+s_} offen{LD}")
        L(f"L_sl{s_}")
    A(f"s_sub_u32 s{sT2}, s{sT2}, 1")
    A("s_cbranch_scc1 L_ok")
    A("s_waitcnt vmcnt(0)")
    for s_ in range(8):
        g = vSrc+4*s_
        A(f"s_bitcmp1_b32 s{sMiss}, {s_}")
        A(f"s_cbranch_scc0 L_sc{s_}")
        A(f"v_bitop3_b32 v{vTmp}, v{g}, v{g+1}, v{g+2} bitop3:0x96")
        A(f"v_bitop3_b32 v{vTmp}, v{vTmp}, v{g+3}, s{sCN+s_} bitop3:0x96")
        A(f"v_cmp_ne_u32 vcc, 0, v{vTmp}")
        A("s_cmp_lg_u64 vcc, 0")
        A(f"s_cbranch_scc1 L_sc{s_}")
        A(f"s_bitset0_b32 s{sMiss}, {s_}")
        L(f"L_sc{s_}")
    A(f"s_cmp_lg_u32 s{sMiss}, 0")
    A("s_cbranch_scc1 L_sel")
L("L_ok")
TS("polled")
if a.ts:
    ts_slots.append("npoll")
    A(f"s_sub_u32 s100, {a.spin}, s{sT2}")
    A(f"v_writelane_b32 v63, s100, {len(ts_slots)-1}")
L("L_merge")
A(f"v_mov_b32 v{vTmp}, v{vMx}")
for s in range(8):
    if s:
        A(f"s_cmp_le_u32 s{sMc}, {s}")
        A("s_cbranch_scc1 L_mx")
    A(f"v_max_f32 v{vTmp}, v{vTmp}, v{vSrc+4*s+2}")
L("L_mx")
A(f"v_sub_f32 v{vTmp+1}, v{vMx}, v{vTmp}")
A(f"v_exp_f32 v{vTmp+1}, v{vTmp+1}")
A(f"v_mov_b32 v{vMx}, v{vTmp}")
A(f"v_mul_f32 v{vW}, v{vW}, v{vTmp+1}")
for c in range(4): A(f"v_mul_f32 v{vAcc+c}, v{vAcc+c}, v{vTmp+1}")
for s in range(8):
    if s:
        A(f"s_cmp_le_u32 s{sMc}, {s}")
        A("s_cbranch_scc1 L_mg")
    g = vSrc+4*s
    A(f"v_sub_f32 v{g+2}, v{g+2}, v{vMx}")
    A(f"v_exp_f32 v{g+2}, v{g+2}")
    A(f"v_lshlrev_b32 v{vTmp}, 16, v{g}")
    A(f"v_and_b32 v{g}, 0xffff0000, v{g}")
    A(f"v_lshlrev_b32 v{vTmp+1}, 16, v{g+1}")
    A(f"v_and_b32 v{g+1}, 0xffff0000, v{g+1}")
    A(f"v_add_f32 v{vW}, v{vW}, v{g+2}")
    A(f"v_fma_f32 v{vAcc}, v{g+2}, v{vTmp}, v{vAcc}")
    A(f"v_fma_f32 v{vAcc+1}, v{g+2}, v{g}, v{vAcc+1}")
    A(f"v_fma_f32 v{vAcc+2}, v{g+2}, v{vTmp+1}, v{vAcc+2}")
    A(f"v_fma_f32 v{vAcc+3}, v{g+2}, v{g+1}, v{vAcc+3}")
L("L_mg")
A(f"s_cmp_gt_u32 s{sRem}, 8")
A("s_cbranch_scc1 L_more")
A(f"v_rcp_f32 v{vW}, v{vW}")
A(f"s_cmp_lg_u32 s{sDual}, 0")
for c in range(4): A(f"v_mul_f32 v{vAcc+c}, v{vAcc+c}, v{vW}")
A(f"v_cvt_pk_bf16_f32 v{vAcc}, v{vAcc}, v{vAcc+1}")
A(f"v_cvt_pk_bf16_f32 v{vAcc+1}, v{vAcc+2}, v{vAcc+3}")
A(f"buffer_store_dwordx2 {vr(vAcc,2)}, v{vOo}, {sr(srdO)}, s{sOA} offen{OST}")
A("s_cbranch_scc0 L_fin")
for s in range(3):
    for c in range(4): A(f"v_mov_b32 v{vSrc+4*s+c}, v{vSrc+16+4*s+c}")
A(f"s_mov_b32 s{sDual}, 0")
A(f"s_mov_b32 s{sOA}, s{sOB}")
A(f"v_mov_b32 v{vMx}, v{vNEG}")
A(f"v_mov_b32 v{vW}, 0")
for c in range(4): A(f"v_mov_b32 v{vAcc+c}, 0")
A("s_branch L_merge")
if a.fast:
    L("L_pubslow")
    publish(ST)
    A("s_branch L_pubdone")
L("L_more")
A(f"s_sub_u32 s{sRem}, s{sRem}, 8")
A(f"s_min_u32 s{sMc}, s{sRem}, 8")
A(f"s_mov_b32 s{sHiN}, s{sRem}")
if a.sel:
    A(f"s_bfm_b32 s{sAct}, s{sMc}, 0")
for s in range(8):
    A(f"s_add_u32 s{sT0}, s{sCB}, {(8+s)*REC}")
    A(f"s_cmp_gt_u32 s{sRem}, {s}")
    A(f"s_cselect_b32 s{sCO+s}, s{sT0}, 0x80000000")
    A(f"s_cselect_b32 s{sCN+s}, s{sNonce}, 0")
A(f"s_add_u32 s{sCB}, s{sCB}, {8*REC}")
A(f"s_mov_b32 s{sT2}, {a.spin}")
A("s_branch L_poll")
L("L_direct")
for mt in range(2):
    for qt in range(2):
        g = vGr+(mt*2+qt)*4
        A(f"s_lshl_b32 s{sT0}, s{sW}, 6")
        A(f"s_add_u32 s{sT0}, s{sT0}, {qt*4096+mt*32}")
        A(f"buffer_store_dwordx2 {vr(g,2)}, v{vOo}, {sr(srdO)}, s{sT0} offen{OST}")
L("L_fin")
if a.ts:
    TS("end")
    A("s_waitcnt vmcnt(0)")
    A(f"s_lshl_b32 s{sT0}, s2, 2")
    A(f"s_add_u32 s{sT0}, s{sT0}, s{sW}")
    A(f"s_lshl_b32 s{sT0}, s{sT0}, 7")
    A(f"s_add_u32 s{sT0}, s{sT0}, {TS_OFF}")
    A(f"v_lshlrev_b32 v{vT}, 2, v{vLane}")
    A(f"v_cmp_gt_u32 vcc, 32, v{vLane}")
    A(f"s_and_saveexec_b64 {sp(sM)}, vcc")
    A(f"buffer_store_dword v63, v{vT}, {sr(srdW)}, s{sT0} offen")
L("L_end")
A("s_endpgm")

hdr = open("standalone__paged_block_table_kv_pagedattention__sampling.s.ref").read().split("\n")
comments = [l for l in hdr if l.startswith(";") and "@launch" not in l and not l.startswith("; Override") and not l.startswith("; grid=")]
txt = "\n".join(comments) + "\n"
txt += f"; @launch grid=(256,1,1) block=(256,1,1) lds={LDS_BYTES}\n"
txt += f""".amdgcn_target "amdgcn-amd-amdhsa--gfx950"
.text
.globl {KN}
.p2align 8
.type {KN},@function
"""
txt += "\n".join(out) + "\n"
txt += f""".section .rodata,"a"
.p2align 6
.amdhsa_kernel {KN}
  .amdhsa_next_free_vgpr {256+NAGPR}
  .amdhsa_next_free_sgpr 102
  .amdhsa_accum_offset 256
  .amdhsa_group_segment_fixed_size 0
  .amdhsa_kernarg_size 64
  .amdhsa_user_sgpr_count 2
  .amdhsa_user_sgpr_kernarg_segment_ptr 1
  .amdhsa_system_sgpr_workgroup_id_x 1
.end_amdhsa_kernel
"""
print(txt)
if a.ts:
    sys.stderr.write("TS: " + ",".join(ts_slots) + "\n")
```

```python
import argparse, sys
ap = argparse.ArgumentParser()
ap.add_argument("--ts", type=int, default=0, help="timestamps")
ap.add_argument("--nt", type=str, default="nt")
ap.add_argument("--st", type=str, default="sc1", help="partial store flags")
ap.add_argument("--ld", type=str, default="sc1", help="partial load flags")
ap.add_argument("--ost", type=str, default="", help="out store flags")
ap.add_argument("--rot", type=int, default=0)
ap.add_argument("--cpf", type=int, default=8, help="code prefetch KB")
ap.add_argument("--sleep", type=int, default=0)
ap.add_argument("--rpf", type=int, default=1, help="prefetch own record lines at start")
ap.add_argument("--rst", type=str, default="sc1")
ap.add_argument("--perm", type=str, default="")
ap.add_argument("--lad", type=int, default=1, help="ladder instead of dummy loads in the poll")
ap.add_argument("--fast", type=int, default=1, help="plain stores when the whole group sits on this XCD")
ap.add_argument("--thr", type=str, default="", help="XA,XB,tA,tB,aslow : throttle levels; t in 1/64 of reference work")
ap.add_argument("--fst", type=str, default="", help="fast-path store flags")
ap.add_argument("--sel", type=int, default=0, help="selective re-poll of missing sources")
ap.add_argument("--early", type=int, default=1, help="issue V5,V6 before the softmax")
ap.add_argument("--sched", type=int, default=0, help="1: reversed K order, later V issue")
ap.add_argument("--spec", type=str, default="", help="issue schedule, e.g. P:K7,K6,K5,K4,K3;t0:K2;...")
ap.add_argument("--cpf2", type=int, default=1)
ap.add_argument("--scl", type=int, default=1, help="context_lens through the scalar cache")
ap.add_argument("--tpf", type=int, default=1, help="re-prefetch tail code")
ap.add_argument("--spin", type=int, default=0x40000)
a = ap.parse_args()

SPEC = None
if a.spec:
    a.sched = 1
    SPEC = {}
    for part in a.spec.split(";"):
        k, v = part.split(":")
        SPEC[k] = v.split(",") if v else []
vm = []
def VM(tag, n=1):
    for _ in range(n): vm.append(tag)
def NW(tag):
    idx = max(i for i, t in enumerate(vm) if t == tag)
    return len(vm) - 1 - idx
def issue(point):
    for g in SPEC.get(point, []):
        if g[0] == "K": kdma(int(g[1]))
        else: vdma(int(g[1]))
KN = "standalone__paged_block_table_kv_pagedattention__sampling_kernel"
out = []
def A(s): out.append("    " + s)
def L(s): out.append(s + ":")
def C(s): out.append("    ; " + s)
NT = (" " + a.nt) if a.nt else ""
ST = (" " + a.st) if a.st else ""
LD = (" " + a.ld) if a.ld else ""
OST = (" " + a.ost) if a.ost else ""
RST = (" " + a.rst) if a.rst else ""

KV_BYTES = 1028*16*8*128*2
REC = 16384
XT_OFF = 6 << 20
TS_OFF = 8 << 20
WREG = 28672
PBASE = 4*WREG
XMAX = PBASE + 32768
XL = XMAX + 2048
XN = XL + 2048
QBASE = XN + 64
LDS_BYTES = QBASE + 8192

sW, sH, sSlot, sB, sN, sStart, sI, sCl, sCnt, sLim = 20, 21, 22, 23, 24, 25, 26, 27, 28, 29
sT0, sT1, sT2, sT3 = 30, 31, 32, 33
sUni, sC, sR, sP, sLdsW, sA = 34, 35, 36, 37, 38, 39
sE = 40
sSO = 48
srdK, srdV, srdQ, srdX, srdO, srdD, srdW = 56, 60, 64, 68, 72, 76, 80
sM = 84
sGrp, sNonce, sRec, sJ = 92, 93, 94, 95
sCO = 4
sCN = 12
sCB, sDual, sOA, sOB, sRem, sMc, sHiN = 40, 41, 42, 43, 44, 45, 46
sThr = 0
sMiss, sAct = 47, 1
sXTg, sTag = 95, 3
vLane, vG, vN = 1, 2, 3
vKoff = 4; vVoff = 8; vLds = 12; vTok = 16; vNEG = 20
vT = 21
vMc = 30
vM = 32
vTr = 36
vPa = 40; vXw = 41; vXr = 42; vL16 = 43
vTrC = 44
vPC = 48
vRl = 50
vLsq = 52
vNon = 60
vS = 64
vO = 128
vRB = 144
vGr = 208
vLseN = 224
vTg = 227
vOo = 226
vCS = 228
def S(i, qt, r=0): return vS + i*8 + qt*4 + r
def O(mt, qt): return vO + (mt*2+qt)*4
aQ = 0; aK = 32; aOne = 64
NAGPR = 68
def vr(b, n=4): return f"v[{b}:{b+n-1}]"
def ar(b, n=4): return f"a[{b}:{b+n-1}]"
def sr(b, n=4): return f"s[{b}:{b+n-1}]"
def sp(b): return f"s[{b}:{b+1}]"

ts_slots = []
def TS(name):
    if not a.ts: return
    if a.ts == 3 and name not in ("start", "k0i3", "pv", "end"): return
    idx = len(ts_slots)
    ts_slots.append(name)
    A("s_memrealtime s[100:101]")
    A("s_waitcnt lgkmcnt(0)")
    A(f"v_writelane_b32 v63, s100, {idx}")

def TS2(name):
    if a.ts == 2: TS(name)
def kslot(j): return ((7 - j) % 7) if a.sched else (j % 7)
def vslot(j): return (j + 1) % 7
THR = [int(x) for x in a.thr.split(",")] if a.thr else None
thr_n = [0]
def throttle():
    if not THR: return
    k = thr_n[0]; thr_n[0] += 1
    A(f"s_bitcmp1_b32 s{sThr}, 0")
    A(f"s_cbranch_scc0 L_ta{k}")
    A(f"s_waitcnt vmcnt({THR[0]})")
    L(f"L_ta{k}")
    A(f"s_bitcmp1_b32 s{sThr}, 1")
    A(f"s_cbranch_scc0 L_tb{k}")
    A(f"s_waitcnt vmcnt({THR[1]})")
    L(f"L_tb{k}")
def kdma(j):
    if j >= 2: throttle()
    A(f"s_add_u32 m0, s{sLdsW}, {kslot(j)*4096}")
    A(f"s_lshl_b32 s{sSO+j}, s{sE+j}, 15")
    A(f"s_cmp_gt_u32 s{sCnt}, {j}")
    A(f"s_cselect_b32 s{sSO+j}, s{sSO+j}, 0x80000000")
    for jj in range(4):
        A(f"buffer_load_dwordx4 v{vKoff+jj}, {sr(srdK)}, s{sSO+j} offen offset:{jj*1024}{NT} lds")
    VM(f"K{j}", 4)
def vdma(j):
    throttle()
    A(f"s_add_u32 m0, s{sLdsW}, {vslot(j)*4096}")
    A("s_nop 0")
    for jj in range(4):
        A(f"buffer_load_dwordx4 v{vVoff+jj}, {sr(srdV)}, s{sSO+j} offen offset:{jj*1024}{NT} lds")
    VM(f"V{j}", 4)

L(KN)
vMt = vT+1
vCl = vT+2
vP1 = vT+3
vClm = vT+4
srdBT = sM
vQo = vT+7
def head_of_wg():
    if a.perm:
        A(f"s_and_b32 s{sH}, s2, 7")
        A(f"s_lshl_b32 s{sH}, s{sH}, 2")
        A(f"s_lshr_b32 s{sH}, {a.perm}, s{sH}")
        A(f"s_and_b32 s{sH}, s{sH}, 7")
    elif a.rot:
        A(f"s_add_u32 s{sH}, s2, {a.rot}")
        A(f"s_and_b32 s{sH}, s{sH}, 7")
    else:
        A(f"s_and_b32 s{sH}, s2, 7")
    A(f"s_lshr_b32 s{sSlot}, s2, 3")
def m_table():
    A(f"v_add_u32 v{vT}, 1, v{vLane}")
    A(f"v_cvt_f32_u32 v{vT}, v{vT}")
    A(f"v_rcp_f32 v{vT}, v{vT}")
    A(f"v_lshrrev_b32 v{vG}, 4, v{vLane}")
    A(f"v_mul_f32 v{vT}, 0x47800000, v{vT}")
    A(f"v_cvt_u32_f32 v{vT}, v{vT}")
    A(f"v_add_u32 v{vMt}, 1, v{vT}")
def k_voff():
    for j in range(4):
        A(f"v_add_u32 v{vT+6}, {4*j}, v{vG}")
        A(f"v_xor_b32 v{vT+7}, v{vT+6}, v{vN}")
        A(f"v_lshlrev_b32 v{vT+8}, 11, v{vT+6}")
        if j: A(f"v_subrev_u32 v{vT+8}, {1024*j}, v{vT+8}")
        A(f"v_lshl_add_u32 v{vKoff+j}, v{vT+7}, 4, v{vT+8}")
def v_voff(t0, t1, t2):
    for j in range(4):
        A(f"v_add_u32 v{t0}, {4*j}, v{vG}")
        A(f"v_lshlrev_b32 v{t2}, 11, v{t0}")
        if j: A(f"v_subrev_u32 v{t2}, {1024*j}, v{t2}")
        A(f"v_and_b32 v{t0}, 7, v{t0}")
        A(f"v_lshlrev_b32 v{t0}, 1, v{t0}")
        A(f"v_xor_b32 v{t1}, v{t0}, v{vN}")
        A(f"v_lshl_add_u32 v{vVoff+j}, v{t1}, 4, v{t2}")
def q_voff():
    A(f"s_lshl_b32 s{sT1}, s{sW}, 3")
    for jj in range(2):
        A(f"v_add_u32 v{vT+6}, s{sT1}, v{vG}")
        if jj: A(f"v_add_u32 v{vT+6}, 4, v{vT+6}")
        A(f"v_and_b32 v{vT}, 15, v{vT+6}")
        A(f"v_xor_b32 v{vT}, v{vT}, v{vN}")
        A(f"v_lshlrev_b32 v{vT+6}, 8, v{vT+6}")
        if jj: A(f"v_subrev_u32 v{vT+6}, 1024, v{vT+6}")
        A(f"v_lshl_add_u32 v{vQo+jj}, v{vT}, 4, v{vT+6}")
def lds_consts(t0, t1):
    A(f"v_lshlrev_b32 v{t0}, 8, v{vN}")
    A(f"v_add_u32 v{t0}, s{sLdsW}, v{t0}")
    for s in range(4):
        A(f"v_add_u32 v{t1}, {4*s}, v{vG}")
        A(f"v_xor_b32 v{t1}, v{t1}, v{vN}")
        A(f"v_lshl_add_u32 v{vLds+s}, v{t1}, 4, v{t0}")
    for r in range(4):
        A(f"v_lshl_add_u32 v{vTok+r}, v{vG}, 2, {r}")
    A(f"v_mov_b32 v{vNEG}, 0xf149f2ca")
    A(f"s_mov_b32 s{sC}, 0x3e0293ee")
def srd_kv(reg, lo):
    A(f"s_add_u32 s{reg}, s{lo}, s{sT0}"); A(f"s_addc_u32 s{reg+1}, s{lo+1}, 0"); A(f"s_sub_u32 s{reg+2}, {KV_BYTES}, s{sT0}"); A(f"s_mov_b32 s{reg+3}, 0x20000")
def srd_w():
    A(f"s_mov_b32 s{srdW}, s18"); A(f"s_mov_b32 s{srdW+1}, s19"); A(f"s_mov_b32 s{srdW+2}, 0x10000000"); A(f"s_mov_b32 s{srdW+3}, 0x20000")
if a.ts == 3: A("s_memrealtime s[100:101]")
A("s_cmp_ge_u32 s2, 256")
A("s_cbranch_scc1 L_end")
A("s_load_dwordx16 s[4:19], s[0:1], 0")
if a.cpf:
    A("s_getpc_b64 s[98:99]")
    L("L_pc0")
    if a.cpf2:
        A("v_lshrrev_b32 v62, 6, v0")
        A("v_and_b32 v61, 3, v0")
        A("v_lshl_add_u32 v62, v62, 2, v61")
        A("v_lshlrev_b32 v62, 7, v62")
    else:
        A("v_lshlrev_b32 v62, 7, v0")
        A(f"v_min_u32 v62, L_end-L_pc0, v62")
    A("global_load_dword v58, v62, s[98:99]")
if a.ts:
    A("v_mov_b32 v63, 0")
if a.ts == 3:
    ts_slots.append("start")
else:
    TS("start")
A(f"v_and_b32 v{vLane}, 63, v0")
A(f"v_lshrrev_b32 v{vT}, 6, v0")
A(f"v_min_u32 v{vT+5}, 7, v{vLane}")
A(f"v_readfirstlane_b32 s{sW}, v{vT}")
A(f"v_lshlrev_b32 v{vT+5}, 2, v{vT+5}")
A(f"v_lshlrev_b32 v{vT+6}, 6, v{vLane}")
head_of_wg()
A(f"s_lshl_b32 s{sT0}, s{sH}, 5")
A(f"s_add_u32 s{sT1}, s{sT0}, s{sSlot}")
A(f"s_lshl_b32 s{sRec}, s{sT1}, 14")
A(f"s_lshl_b32 s{sT1}, s{sW}, 12")
A(f"s_add_u32 s{sRec}, s{sRec}, s{sT1}")
A(f"v_add_u32 v{vT+7}, s{sRec}, v{vT+6}")
if a.cpf2:
    A(f"v_lshlrev_b32 v{vT+8}, 5, v{vT+5}")
    A(f"s_lshl_b32 s{sT1}, s{sW}, 10")
    A(f"v_add_u32 v{vT+8}, s{sT1}, v{vT+8}")
TS2("preka")
A("s_waitcnt lgkmcnt(0)")
if a.ts == 3: A("v_writelane_b32 v63, s100, 0")
TS2("ka")
if a.scl:
    A(f"s_load_dwordx8 s[{sE}:{sE+7}], s[12:13], 0")
else:
    A(f"global_load_dword v{vCl}, v{vT+5}, s[12:13]")
if a.cpf2:
    A(f"global_load_dword v59, v{vT+8}, s[10:11]")
else:
    A(f"global_load_dword v59, v{vT+6}, s[10:11]")
if a.rpf == 3:
    A(f"global_load_dword v57, v{vT+7}, s[18:19]")
A(f"v_and_b32 v{vN}, 15, v{vLane}")
m_table()
k_voff()
A(f"s_mul_i32 s{sLdsW}, s{sW}, {WREG}")
A(f"s_lshl_b32 s{sT0}, s{sH}, 8")
srd_kv(srdK, 6)
srd_kv(srdV, 8)
A(f"s_mov_b32 s{srdBT}, s10"); A(f"s_mov_b32 s{srdBT+1}, s11"); A(f"s_mov_b32 s{srdBT+2}, 4096"); A(f"s_mov_b32 s{srdBT+3}, 0x20000")
q_voff()
TS("karg")
if a.scl:
    A("s_waitcnt lgkmcnt(0)")
    for b in range(8):
        A(f"v_writelane_b32 v{vCl}, s{sE+b}, {b}")
else:
    A(f"s_waitcnt vmcnt({2 if a.rpf == 3 else 1})")
TS2("clw")
A(f"v_add_u32 v{vClm}, -1, v{vCl}")
A(f"v_min_u32 v{vClm}, 0x7ff, v{vClm}")
A(f"v_lshrrev_b32 v{vP1}, 4, v{vClm}")
A("s_nop 0")
for b in range(8):
    A(f"v_readlane_b32 s{sE+b}, v{vP1}, {b}")
vAcc = vT+5; vTt = vT+6
A(f"v_mul_u32_u24 v{vAcc}, s{sE}, v{vMt}")
A(f"v_lshrrev_b32 v{vAcc}, 16, v{vAcc}")
for b in range(1, 8):
    A(f"v_mul_u32_u24 v{vTt}, s{sE+b}, v{vMt}")
    A(f"v_add_u32_sdwa v{vAcc}, v{vAcc}, v{vTt} dst_sel:DWORD dst_unused:UNUSED_PAD src0_sel:DWORD src1_sel:WORD_1")
A(f"v_cmp_ge_u32 vcc, 24, v{vAcc}")
A("s_nop 1")
A(f"s_ff1_i32_b64 s{sT0}, vcc")
if THR: A(f"s_add_u32 s{sA}, s{sT0}, 1")
TS2("cf")
A("s_nop 0")
A(f"v_readlane_b32 s{sT1}, v{vMt}, s{sT0}")
A("s_nop 1")
vNb = vAcc; vInc = vTt
A(f"v_mul_u32_u24 v{vNb}, s{sT1}, v{vP1}")
A(f"v_lshrrev_b32 v{vNb}, 16, v{vNb}")
A(f"v_add_u32 v{vNb}, 1, v{vNb}")
A(f"v_mov_b32 v{vInc}, v{vNb}")
for sh in (1, 2, 4):
    A("s_nop 1")
    A(f"v_add_u32_dpp v{vInc}, v{vInc}, v{vInc} row_shr:{sh} row_mask:0xf bank_mask:0xf bound_ctrl:0")
A(f"v_cmp_lt_u32 vcc, s{sSlot}, v{vInc}")
A("s_nop 1")
A("s_and_b32 vcc_lo, vcc_lo, 0xff")
A("s_cbranch_scc0 L_end")
A(f"s_ff1_i32_b32 s{sB}, vcc_lo")
TS2("bf")
A("s_nop 0")
A(f"v_readlane_b32 s{sN}, v{vNb}, s{sB}")
A(f"v_readlane_b32 s{sStart}, v{vInc}, s{sB}")
A(f"v_readlane_b32 s{sT2}, v{vP1}, s{sB}")
A(f"v_readlane_b32 s{sCl}, v{vClm}, s{sB}")
A(f"v_readlane_b32 s{sUni}, v{vCl}, s{sB}")
A(f"s_sub_u32 s{sT0}, s{sN}, 1")
A(f"v_readlane_b32 s{sT1}, v{vMt}, s{sT0}")
A(f"s_sub_u32 s{sStart}, s{sStart}, s{sN}")
A(f"s_sub_u32 s{sI}, s{sSlot}, s{sStart}")
A(f"s_add_u32 s{sT2}, s{sT2}, 1")
A(f"s_mul_i32 s{sT1}, s{sT1}, s{sT2}")
A(f"s_mul_i32 s{sT3}, s{sT1}, s{sI}")
A(f"s_add_u32 s{sT1}, s{sT1}, s{sT3}")
A(f"s_lshr_b32 s{sT3}, s{sT3}, 16")
A(f"s_lshr_b32 s{sT1}, s{sT1}, 16")
A(f"s_cmp_eq_u32 s{sI}, s{sT0}")
A(f"s_cselect_b32 s{sT1}, s{sT2}, s{sT1}")
A(f"s_sub_u32 s{sT1}, s{sT1}, s{sT3}")
if THR:
    A(f"s_lshr_b32 s{sP}, s6, 8")
    A(f"s_add_u32 s{sP}, s{sP}, s{sH}")
    A(f"s_and_b32 s{sP}, s{sP}, 3")
    A(f"s_cmp_eq_u32 s{sP}, 1")
    A(f"s_cselect_b32 s{sP}, {THR[4]}, 8")
    A(f"s_mul_i32 s{sP}, s{sP}, s{sT1}")
    A(f"s_mul_i32 s{sA}, s{sA}, {THR[4]}")
    A(f"s_sub_i32 s{sP}, s{sA}, s{sP}")
    A(f"s_lshl_b32 s{sP}, s{sP}, 6")
    A(f"s_mul_i32 s{sR}, s{sA}, {THR[2]}")
    A(f"s_cmp_ge_i32 s{sP}, s{sR}")
    A(f"s_cselect_b32 s{sThr}, 1, 0")
    A(f"s_mul_i32 s{sR}, s{sA}, {THR[3]}")
    A(f"s_cmp_ge_i32 s{sP}, s{sR}")
    A(f"s_cselect_b32 s{sR}, 2, 0")
    A(f"s_or_b32 s{sThr}, s{sThr}, s{sR}")
A(f"s_add_u32 s{sR}, s{sT1}, 7")
A(f"s_lshr_b32 s{sR}, s{sR}, 3")
A(f"s_lshr_b32 s{sT0}, s{sT1}, 2")
A(f"s_and_b32 s{sT1}, s{sT1}, 3")
A(f"s_mul_i32 s{sT2}, s{sW}, s{sT0}")
A(f"s_add_u32 s{sT3}, s{sT3}, s{sT2}")
A(f"s_min_u32 s{sT2}, s{sW}, s{sT1}")
A(f"s_add_u32 s{sT3}, s{sT3}, s{sT2}")
A(f"s_cmp_lt_u32 s{sW}, s{sT1}")
A(f"s_addc_u32 s{sCnt}, s{sT0}, 0")
A(f"s_lshl_b32 s{sT0}, s{sB}, 7")
A(f"s_add_u32 s{sT0}, s{sT0}, s{sT3}")
A(f"s_lshl_b32 s{sT0}, s{sT0}, 2")
A(f"s_buffer_load_dwordx8 s[{sE}:{sE+7}], {sr(srdBT)}, s{sT0}")
A(f"s_add_u32 s{sCl}, s{sCl}, 1")
A(f"s_lshl_b32 s{sT3}, s{sT3}, 4")
A(f"s_sub_i32 s{sLim}, s{sCl}, s{sT3}")
A(f"s_lshl_b32 s{sT2}, s{sCnt}, 4")
A(f"s_min_i32 s{sLim}, s{sLim}, s{sT2}")
A(f"s_lshl_b32 s{sT0}, s{sB}, 16")
A(f"s_lshl_b32 s{sT1}, s{sH}, 13")
A(f"s_add_u32 s{sT0}, s{sT0}, s{sT1}")
A(f"s_add_u32 s{srdQ}, s4, s{sT0}"); A(f"s_addc_u32 s{srdQ+1}, s5, 0"); A(f"s_mov_b32 s{srdQ+2}, 8192"); A(f"s_mov_b32 s{srdQ+3}, 0x20000")
A(f"s_add_u32 s{srdO}, s14, s{sT0}"); A(f"s_addc_u32 s{srdO+1}, s15, 0"); A(f"s_mov_b32 s{srdO+2}, 8192"); A(f"s_mov_b32 s{srdO+3}, 0x20000")
TS("alloc")
A("s_waitcnt lgkmcnt(0)")
kdma(int(SPEC["P"][0][1]) if SPEC else (7 if a.sched else 0))
TS2("k0i")
if a.ts == 3: TS("k0i3")
A(f"s_lshl_b32 s{sT1}, s{sW}, 11")
A(f"s_add_u32 m0, s{sT1}, {QBASE}")
A("s_nop 0")
for jj in range(2):
    A(f"buffer_load_dwordx4 v{vQo+jj}, {sr(srdQ)}, 0 offen offset:{jj*1024} lds")
VM("Q", 2)
for j in ([int(g[1]) for g in SPEC["P"][1:]] if SPEC else ((6, 5, 4, 3) if a.sched else range(1, 5))): kdma(j)
TS("k4issued")
A("s_memrealtime s[96:97]")
A(f"s_lshl_b32 s{sGrp}, s{sB}, 3")
A(f"s_add_u32 s{sGrp}, s{sGrp}, s{sH}")
A(f"s_lshl_b32 s{sT0}, s{sGrp}, 2")
A(f"s_cmp_eq_u32 s{sW}, 0")
A(f"s_cselect_b32 s{sT0}, s{sT0}, 0x1000")
A(f"s_mov_b32 s{srdD}, s16"); A(f"s_mov_b32 s{srdD+1}, s17"); A(f"s_mov_b32 s{srdD+2}, 256"); A(f"s_mov_b32 s{srdD+3}, 0x20000")
A(f"v_mov_b32 v{vNon+2}, s{sT0}")
A(f"v_mov_b32 v{vNon+1}, 0")
A("s_waitcnt lgkmcnt(0)")
A(f"s_and_b32 s{sNonce}, s96, 0xffffffe0")
A(f"s_or_b32 s{sNonce}, s{sNonce}, 0x10")
A(f"v_mov_b32 v{vNon}, s{sNonce}")
A("s_mov_b64 exec, 1")
A(f"buffer_atomic_cmpswap v[{vNon}:{vNon+1}], v{vNon+2}, {sr(srdD)}, 0 offen sc0 sc1")
VM("A")
A("s_mov_b64 exec, -1")
if a.cpf and a.cpf2:
    A(f"v_and_b32 v56, 15, v{vLane}")
    A(f"s_lshl_b32 s{sT1}, s{sW}, 4")
    A(f"v_add_u32 v56, s{sT1}, v56")
    A(f"v_lshlrev_b32 v56, 7, v56")
    A(f"v_add_u32 v56, 2048, v56")
    A(f"v_min_u32 v56, L_end-L_pc0, v56")
    A(f"global_load_dword v58, v56, s[98:99]")
    VM("CP")
srd_w()
A(f"v_lshlrev_b32 v{vL16}, 4, v{vLane}")
v_voff(vT, vT+1, vT+2)
lds_consts(vT, vT+1)
A(f"v_lshrrev_b32 v{vT}, 2, v{vLane}")
A(f"v_and_b32 v{vT+1}, 7, v{vT}")
A(f"v_lshlrev_b32 v{vT+1}, 1, v{vT+1}")
A(f"v_bfe_u32 v{vT+2}, v{vLane}, 1, 1")
A(f"s_lshl_b32 s{sT0}, s{sW}, 2")
A(f"v_add_u32 v{vT+2}, s{sT0}, v{vT+2}")
A(f"v_and_b32 v{vT+3}, 1, v{vLane}")
A(f"v_lshlrev_b32 v{vT+3}, 3, v{vT+3}")
A(f"v_lshl_add_u32 v{vT+3}, v{vT}, 8, v{vT+3}")
for mt in range(2):
    A(f"v_add_u32 v{vT+4}, {2*mt}, v{vT+2}")
    A(f"v_xor_b32 v{vT+4}, v{vT+4}, v{vT+1}")
    A(f"v_lshl_add_u32 v{vTr+mt}, v{vT+4}, 4, v{vT+3}")
    A(f"v_add_u32 v{vTr+2+mt}, {2*WREG}, v{vTr+mt}")
A(f"v_add_u32 v{vPa}, {PBASE}, v{vL16}")
A(f"s_lshl_b32 s{sT0}, s{sW}, 2")
A(f"s_add_u32 s{sT0}, s{sT0}, {XMAX}")
A(f"v_add_u32 v{vXw}, s{sT0}, v{vL16}")
A(f"v_add_u32 v{vXr}, {XMAX}, v{vL16}")
A(f"v_mov_b32 v{vT}, 0x3f803f80")
for r in range(4): A(f"v_accvgpr_write_b32 a{aOne+r}, v{vT}")
A(f"s_sub_u32 s{sT0}, {QBASE}, s{sLdsW}")
for s in range(4): A(f"v_add_u32 v{vT+s}, s{sT0}, v{vLds+s}")

if a.sched:
    nxt = ["K2", "K1", "K0", "V0", "V1", "V2", None, None]
    kwait = [17, 17, 17, 17, 17, 16, 16 + a.fast, 12 + a.fast]
else:
    nxt = ["K5", "K6", "K7", "V0", "V1", "V2", "V3", "V4"]
    kwait = [17, 17, 17, 17, 17, 16, 16 + a.fast, 16 + a.fast]
NSTEP = 5
for t in range(8):
    j = (7 - t) if a.sched else t
    kb = aK + (t & 1)*16
    if SPEC:
        w_ = min(NW(f"K{j}"), NW("Q")) if t == 0 else NW(f"K{j}")
        if t == NSTEP: w_ = min(w_, NW("A"))
        A(f"s_waitcnt vmcnt({w_})")
    else:
        A(f"s_waitcnt vmcnt({kwait[t]})")
    if t == 0:
        A("s_barrier")
        for qt in range(2):
            for s in range(4):
                A(f"ds_read_b128 {ar(aQ+(qt*4+s)*4)}, v{vT+s} offset:{qt*4096}")
    for s in range(4):
        A(f"ds_read_b128 {ar(kb+4*s)}, v{vLds+s} offset:{kslot(j)*4096}")
    A(f"s_sub_i32 s{sT0}, s{sLim}, {16*j}")
    for r in range(4):
        A(f"v_cmp_gt_i32 {sp(sM+2*r)}, s{sT0}, v{vTok+r}")
    for r in range(4):
        A(f"v_cndmask_b32 v{vM+r}, v{vNEG}, 0, {sp(sM+2*r)}")
    if t == 0:
        A("s_waitcnt lgkmcnt(4)")
        A(f"s_cmp_gt_i32 s{sUni}, 0")
        A("s_cbranch_scc1 L_qok")
        A(f"v_mov_b32 v{vT}, 0")
        for r in range(32): A(f"v_accvgpr_write_b32 a{aQ+r}, v{vT}")
        L("L_qok")
    if t == 5:
        A(f"v_readfirstlane_b32 s{sT1}, v{vNon}")
    A("s_nop 0")
    for s in range(4):
        A(f"s_waitcnt lgkmcnt({3-s})")
        for qt in range(2):
            c = vr(vM) if s == 0 else vr(S(j,qt))
            A(f"v_mfma_f32_16x16x32_bf16 {vr(S(j,qt))}, {ar(kb+4*s)}, {ar(aQ+(qt*4+s)*4)}, {c}")
    if t == 5:
        A(f"s_cmp_eq_u32 s{sT1}, 0")
        A(f"s_cselect_b32 s{sNonce}, s{sNonce}, s{sT1}")
        if a.fast:
            A(f"s_getreg_b32 s{sT0}, hwreg(HW_REG_XCC_ID)")
            A(f"s_and_b32 s{sTag}, s{sT0}, 7")
            A(f"s_or_b32 s{sT0}, s{sNonce}, s{sTag}")
            A(f"s_lshl_b32 s{sXTg}, s{sGrp}, 7")
            A(f"s_add_u32 s{sXTg}, s{sXTg}, {XT_OFF}")
            A(f"s_lshl_b32 s{sT1}, s{sI}, 2")
            A(f"s_add_u32 s{sT1}, s{sT1}, s{sXTg}")
            A(f"s_cmp_eq_u32 s{sW}, 0")
            A(f"s_cselect_b32 s{sT1}, s{sT1}, 0x80000000")
            A(f"v_mov_b32 v{vT+5}, s{sT0}")
            A(f"v_mov_b32 v{vT+6}, 0")
            A("s_mov_b64 exec, 1")
            A(f"buffer_store_dword v{vT+5}, v{vT+6}, {sr(srdW)}, s{sT1} offen sc1")
            VM("T")
            A("s_mov_b64 exec, -1")
    nm = None if SPEC else nxt[t]
    if SPEC: issue(f"t{t}")
    if nm is not None:
        if nm[0] == "K": kdma(int(nm[1]))
        else: vdma(int(nm[1]))
    if t == 7 and a.early and not a.sched:
        vdma(5); vdma(6)
    if t in (0, 3, 7): TS(f"k{t}")
for qt in range(2):
    regs = [S(i,qt,r) for i in (range(7,-1,-1) if a.sched else range(8)) for r in range(4)]
    m = vMc+qt
    A(f"v_max3_f32 v{m}, v{regs[0]}, v{regs[1]}, v{regs[2]}")
    k = 3
    while k + 1 < len(regs):
        A(f"v_max3_f32 v{m}, v{m}, v{regs[k]}, v{regs[k+1]}")
        k += 2
    if k < len(regs):
        A(f"v_max_f32 v{m}, v{m}, v{regs[k]}")
for op in ("v_permlane16_swap_b32", "v_permlane32_swap_b32"):
    for qt in range(2): A(f"v_mov_b32 v{vT+qt}, v{vMc+qt}")
    A("s_nop 1")
    for qt in range(2): A(f"{op} v{vMc+qt}, v{vT+qt}")
    for qt in range(2): A(f"v_max_f32 v{vMc+qt}, v{vMc+qt}, v{vT+qt}")
for qt in range(2):
    A(f"ds_write_b32 v{vXw}, v{vMc+qt} offset:{qt*1024}")
A(f"s_lshl_b32 s{sT0}, s{sW}, 2")
A(f"s_add_u32 s{sT0}, s{sT0}, {XN}")
A(f"v_mov_b32 v{vT+2}, s{sT0}")
A(f"v_mov_b32 v{vT+3}, s{sNonce}")
A("s_mov_b64 exec, 1")
A(f"ds_write_b32 v{vT+2}, v{vT+3}")
A("s_mov_b64 exec, -1")
if SPEC: issue("B1")
elif a.sched: vdma(3)
elif not a.early: vdma(5)
A("s_waitcnt lgkmcnt(0)")
A("s_barrier")
TS("bar1")
for qt in range(2):
    A(f"ds_read_b128 {vr(vRB+4*qt)}, v{vXr} offset:{qt*1024}")
A(f"v_mov_b32 v{vT+2}, {XN}")
A(f"ds_read_b32 v{vT+3}, v{vT+2}")
A("s_waitcnt lgkmcnt(1)")
for qt in range(2):
    b = vRB+4*qt
    A(f"v_max3_f32 v{vMc+qt}, v{b}, v{b+1}, v{b+2}")
for qt in range(2):
    A(f"v_max_f32 v{vMc+qt}, v{vMc+qt}, v{vRB+4*qt+3}")
for qt in range(2):
    A(f"v_mul_f32 v{vMc+qt}, s{sC}, v{vMc+qt}")
A("s_waitcnt lgkmcnt(0)")
A(f"v_readfirstlane_b32 s{sNonce}, v{vT+3}")
A(f"s_lshl_b32 s{sT0}, s{sW}, 13")
A(f"v_add_u32 v{vT+4}, s{sT0}, v{vPa}")
for p in range(4):
    for qt in range(2):
        for i in (2*p, 2*p+1):
            for r in range(4):
                A(f"v_fma_f32 v{S(i,qt,r)}, v{S(i,qt,r)}, s{sC}, -v{vMc+qt}")
            for r in range(4):
                A(f"v_exp_f32 v{S(i,qt,r)}, v{S(i,qt,r)}")
        d = S(2*p,qt)
        A(f"v_cvt_pk_bf16_f32 v{d}, v{S(2*p,qt,0)}, v{S(2*p,qt,1)}")
        A(f"v_cvt_pk_bf16_f32 v{d+1}, v{S(2*p,qt,2)}, v{S(2*p,qt,3)}")
        A(f"v_cvt_pk_bf16_f32 v{d+2}, v{S(2*p+1,qt,0)}, v{S(2*p+1,qt,1)}")
        A(f"v_cvt_pk_bf16_f32 v{d+3}, v{S(2*p+1,qt,2)}, v{S(2*p+1,qt,3)}")
        A(f"ds_write_b128 v{vT+4}, {vr(d)} offset:{p*2048+qt*1024}")
        if p > 0 or qt > 0:
            pp, pq = (p, 0) if qt == 1 else (p-1, 1)
            c = "0" if pp == 0 else vr(vLsq+4*pq)
            A(f"v_mfma_f32_16x16x32_bf16 {vr(vLsq+4*pq)}, {ar(aOne)}, {vr(S(2*pp,pq))}, {c}")
    if SPEC: issue(f"E{p}")
    if p == 1:
        if SPEC: pass
        elif a.sched: vdma(4)
        elif not a.early: vdma(6)
        if a.tpf:
            A("s_getpc_b64 s[98:99]")
            L("L_tpf")
            A(f"v_lshlrev_b32 v{vT}, 7, v{vLane}")
            A(f"v_min_u32 v{vT}, L_end-L_tpf, v{vT}")
            A(f"global_load_dword v{vT+1}, v{vT}, s[98:99]")
            VM("PF")
A("s_nop 1")
A(f"v_mfma_f32_16x16x32_bf16 {vr(vLsq+4)}, {ar(aOne)}, {vr(S(6,1))}, {vr(vLsq+4)}")
A(f"s_lshl_b32 s{sT0}, s{sH}, 5")
A(f"s_lshl_b32 s{sT1}, s{sW}, 12")
A("s_nop 2")
A(f"s_add_u32 s{sT0}, s{sT0}, s{sStart}")
A(f"s_lshl_b32 s{sGrp}, s{sT0}, 14")
A(f"s_add_u32 s{sGrp}, s{sGrp}, s{sT1}")
A("s_nop 3")
A(f"v_add_u32 v{vT+4}, {XL-XMAX}, v{vXw}")
for qt in range(2):
    A(f"ds_write_b32 v{vT+4}, v{vLsq+4*qt} offset:{qt*1024}")
A("s_waitcnt lgkmcnt(0)")
A("s_barrier")
TS("bar2")
if a.fast:
    A(f"v_lshlrev_b32 v{vT+5}, 2, v{vLane}")
    A(f"v_cmp_gt_u32 vcc, s{sN}, v{vLane}")
    A(f"v_mov_b32 v{vT+6}, 0x40000000")
    A("s_nop 0")
    A(f"v_cndmask_b32 v{vT+5}, v{vT+6}, v{vT+5}, vcc")
    A(f"buffer_load_dword v{vTg}, v{vT+5}, {sr(srdW)}, s{sXTg} offen sc1")
    VM("G")
for qt in range(2):
    A(f"ds_read_b128 {vr(vRB+4*qt)}, v{vXr} offset:{XL-XMAX+qt*1024}")
A(f"s_mov_b32 s{sP}, 0")
A(f"s_mov_b32 s{sA}, 4096")
for k in range(4): A(f"v_add_u32 v{vTrC+k}, 4096, v{vTr+k}")
A(f"v_mov_b32 v{vPC}, v{vPa}")
A("s_waitcnt lgkmcnt(0)")
for qt in range(2):
    b = vRB+4*qt
    A(f"v_add_f32 v{b}, v{b}, v{b+1}")
    A(f"v_add_f32 v{b+2}, v{b+2}, v{b+3}")
for qt in range(2):
    b = vRB+4*qt
    A(f"v_add_f32 v{b}, v{b}, v{b+2}")
for qt in range(2):
    b = vRB+4*qt
    A(f"v_rcp_f32 v{vRl+qt}, v{b}")
    A(f"v_log_f32 v{b+1}, v{b}")
A("s_nop 0")
for qt in range(2):
    b = vRB+4*qt
    A(f"v_add_f32 v{b+1}, v{b+1}, v{vMc+qt}")
for mt in range(2):
    for qt in range(2):
        A(f"v_mov_b32 v{vGr+(mt*2+qt)*4+2}, v{vRB+4*qt+1}")
for qt in range(2):
    A(f"v_xor_b32 v{vLseN+qt}, s{sNonce}, v{vRB+4*qt+1}")
for r in range(16): A(f"v_mov_b32 v{vO+r}, 0")
A(f"v_lshlrev_b32 v{vOo}, 8, v{vN}")
A(f"v_lshl_add_u32 v{vOo}, v{vG}, 3, v{vOo}")
A(f"s_lshl_b32 s{sT0}, s{sI}, 10")
A(f"s_add_u32 s{sCB}, s{sT0}, s{sGrp}")
A(f"s_add_u32 s{sT1}, s{sI}, s{sN}")
A(f"s_cmp_lt_u32 s{sT1}, 4")
A(f"s_cselect_b32 s{sDual}, 1, 0")
A(f"s_lshl_b32 s{sT2}, s{sT1}, 10")
A(f"s_add_u32 s{sT2}, s{sT2}, s{sGrp}")
A(f"s_sub_u32 s{sT2}, s{sT2}, {4*REC}")
A(f"s_add_u32 s{sT3}, s{sN}, 4")
A(f"s_cmp_lg_u32 s{sDual}, 0")
A(f"s_cselect_b32 s{sT2}, s{sT2}, s{sCB}")
A(f"s_cselect_b32 s{sT3}, s{sT3}, s{sN}")
A(f"s_mov_b32 s{sHiN}, s{sT3}")
for s_ in range(8):
    b = sCB if s_ < 4 else sT2
    n_ = sN if s_ < 4 else sT3
    A(f"s_add_u32 s{sT0}, s{b}, {s_*REC}")
    A(f"s_cmp_gt_u32 s{n_}, {s_}")
    A(f"s_cselect_b32 s{sCO+s_}, s{sT0}, 0x80000000")
    A(f"s_cselect_b32 s{sCN+s_}, s{sNonce}, 0")
if a.sel:
    A(f"s_min_u32 s{sT0}, s{sN}, 4")
    A(f"s_bfm_b32 s{sAct}, s{sT0}, 0")
    A(f"s_min_u32 s{sT0}, s{sT3}, 8")
    A(f"s_bfm_b32 s{sT0}, s{sT0}, 0")
    A(f"s_and_b32 s{sT0}, s{sT0}, 0xf0")
    A(f"s_or_b32 s{sAct}, s{sAct}, s{sT0}")
def outoff(dst, j):
    A(f"s_and_b32 s{sT0}, s{j}, 1")
    A(f"s_lshl_b32 s{sT0}, s{sT0}, 12")
    A(f"s_lshr_b32 s{dst}, s{j}, 1")
    A(f"s_lshl_b32 s{dst}, s{dst}, 5")
    A(f"s_add_u32 s{dst}, s{dst}, s{sT0}")
    A(f"s_lshl_b32 s{sT0}, s{sW}, 6")
    A(f"s_add_u32 s{dst}, s{dst}, s{sT0}")
outoff(sOA, sI)
outoff(sOB, sT1)
A(f"s_mov_b32 s{sRem}, s{sN}")
A(f"s_min_u32 s{sMc}, s{sN}, 8")
A(f"v_mov_b32 v{vCS+4}, v{vNEG}")
A(f"v_mov_b32 v{vCS+5}, 0")
for c in range(4): A(f"v_mov_b32 v{vCS+c}, 0")
L("L_round")
if SPEC:
    base_vm = list(vm)
    w0 = NW("V1")
    vm.extend(sum([[g]*4 for g in SPEC.get("R0", [])], []))
    w1 = NW("V3")
    vm.extend(sum([[g]*4 for g in SPEC.get("R1", [])], []))
    w2 = NW("V5")
    vm[:] = base_vm
else:
    w2 = 8 if a.sched else 8+a.tpf+a.fast
    w0 = (12 if a.sched else 20)+a.tpf+2*a.fast
    w1 = 12+a.tpf+a.fast
A(f"s_add_u32 s{sT0}, s{sP}, 1")
A(f"s_cmp_eq_u32 s{sT0}, s{sR}")
A("s_cbranch_scc1 L_w0")
A(f"s_cmp_eq_u32 s{sP}, 0")
A("s_cbranch_scc1 L_w20")
A(f"s_cmp_eq_u32 s{sP}, 1")
A("s_cbranch_scc1 L_w12")
A(f"s_waitcnt vmcnt({w2})")
A("s_branch L_wd")
L("L_w20")
A(f"s_waitcnt vmcnt({w0})")
A("s_branch L_wd")
L("L_w12")
A(f"s_waitcnt vmcnt({w1})")
A("s_branch L_wd")
L("L_w0")
A("s_waitcnt vmcnt(0)")
L("L_wd")
A("s_barrier")
def rd(w_):
    b = vRB + 16*w_
    for qt in range(2):
        A(f"ds_read_b128 {vr(b+4*qt)}, v{vPC} offset:{w_*8192+qt*1024}")
    for mt in range(2):
        for hh in range(2):
            A(f"ds_read_b64_tr_b16 {vr(b+8+4*mt+2*hh, 2)}, v{vTrC+(w_>>1)*2+mt} offset:{(w_&1)*WREG+hh*4096}")
def mm(w_):
    b = vRB + 16*w_
    for mt in range(2):
        for qt in range(2):
            A(f"v_mfma_f32_16x16x32_bf16 {vr(O(mt,qt))}, {vr(b+8+4*mt)}, {vr(b+4*qt)}, {vr(O(mt,qt))}")
rd(0); rd(1)
if SPEC:
    if SPEC.get("R0"):
        A(f"s_cmp_lg_u32 s{sP}, 0")
        A("s_cbranch_scc1 L_nov5")
        issue("R0")
        L("L_nov5")
    A(f"s_cmp_lg_u32 s{sP}, 1")
    A("s_cbranch_scc1 L_nov7")
    issue("R1")
    L("L_nov7")
else:
    if a.sched:
        A(f"s_cmp_lg_u32 s{sP}, 0")
        A("s_cbranch_scc1 L_nov5")
        vdma(5); vdma(6)
        L("L_nov5")
    A(f"s_cmp_lg_u32 s{sP}, 1")
    A("s_cbranch_scc1 L_nov7")
    vdma(7)
    L("L_nov7")
A("s_waitcnt lgkmcnt(6)")
rd(2); mm(0)
A("s_waitcnt lgkmcnt(6)")
rd(3); mm(1)
A(f"s_add_u32 s{sA}, s{sA}, 8192")
A(f"s_cmp_ge_u32 s{sA}, {WREG}")
A(f"s_cselect_b32 s{sT0}, {WREG}, 0")
A(f"s_sub_u32 s{sA}, s{sA}, s{sT0}")
A("s_waitcnt lgkmcnt(6)")
mm(2)
for k in range(4): A(f"v_add_u32 v{vTrC+k}, s{sA}, v{vTr+k}")
A(f"v_add_u32 v{vPC}, 2048, v{vPC}")
A("s_waitcnt lgkmcnt(0)")
mm(3)
A(f"s_add_u32 s{sP}, s{sP}, 1")
A(f"s_cmp_lt_u32 s{sP}, s{sR}")
A("s_cbranch_scc1 L_round")
TS("pv")
def publish(flags):
    for mt in range(2):
        for qt in range(2):
            o = O(mt,qt); g = vGr+(mt*2+qt)*4
            for r in range(4): A(f"v_mul_f32 v{o+r}, v{o+r}, v{vRl+qt}")
            A(f"v_cvt_pk_bf16_f32 v{g}, v{o}, v{o+1}")
            A(f"v_cvt_pk_bf16_f32 v{g+1}, v{o+2}, v{o+3}")
            A(f"v_bitop3_b32 v{g+3}, v{g}, v{g+1}, v{vLseN+qt} bitop3:0x96")
            A(f"buffer_store_dwordx4 {vr(g)}, v{vL16}, {sr(srdW)}, s{sRec} offen offset:{(mt*2+qt)*1024}{flags}")
if a.fast:
    A(f"s_or_b32 s{sT0}, s{sNonce}, s{sTag}")
    A(f"v_cmp_eq_u32 vcc, s{sT0}, v{vTg}")
    A(f"s_bfm_b64 {sp(sM)}, s{sN}, 0")
    A("s_nop 0")
    A(f"s_cmp_eq_u64 vcc, {sp(sM)}")
    A("s_cbranch_scc0 L_pubslow")
    publish((" " + a.fst) if a.fst else "")
    L("L_pubdone")
else:
    A("s_nop 4")
    publish(ST)
TS("stored")
vAcc = vCS; vMx = vCS+4; vW = vCS+5; vTmp = vCS+6
vSrc = vRB
A(f"s_cmp_eq_u32 s{sN}, 1")
A("s_cbranch_scc1 L_direct")
A(f"s_cmp_ge_u32 s{sI}, 4")
A("s_cbranch_scc1 L_fin")
A(f"s_mov_b32 s{sT2}, {a.spin}")
L("L_poll")
def ladder(lo, hi, bound, tgt, body):
    for s_ in range(lo, hi):
        if a.lad and s_ not in (0, 1):
            A(f"s_cmp_le_u32 s{bound}, {s_}")
            A(f"s_cbranch_scc1 {tgt}")
        body(s_)
def ld_body(s_): A(f"buffer_load_dwordx4 {vr(vSrc+4*s_)}, v{vL16}, {sr(srdW)}, s{sCO+s_} offen{LD}")
ladder(0, 4, sN, "L_i4", ld_body)
L("L_i4")
ladder(4, 8, sHiN, "L_i8", ld_body)
L("L_i8")
if a.ts in (1, 2):
    A(f"s_cmp_eq_u32 s{sT2}, {a.spin}")
    A("s_cbranch_scc0 L_ts1")
    TS("iss1")
    L("L_ts1")
A(f"v_mov_b32 v{vTmp+2}, 0")
A("s_waitcnt vmcnt(0)")
if a.ts in (1, 2):
    A(f"s_cmp_eq_u32 s{sT2}, {a.spin}")
    A("s_cbranch_scc0 L_ts2")
    TS("ld1")
    L("L_ts2")
if not a.sel:
    def ck_body(s_):
        g = vSrc+4*s_
        A(f"v_bitop3_b32 v{vTmp}, v{g}, v{g+1}, v{g+2} bitop3:0x96")
        A(f"v_bitop3_b32 v{vTmp}, v{vTmp}, v{g+3}, s{sCN+s_} bitop3:0x96")
        A(f"v_or_b32 v{vTmp+2}, v{vTmp+2}, v{vTmp}")
    ladder(0, 4, sN, "L_c4", ck_body)
    L("L_c4")
    ladder(4, 8, sHiN, "L_c8", ck_body)
    L("L_c8")
    A(f"v_cmp_eq_u32 vcc, 0, v{vTmp+2}")
    A(f"s_sub_u32 s{sT2}, s{sT2}, 1")
    A("s_cbranch_scc1 L_ok")
    A("s_cmp_eq_u64 vcc, exec")
    if a.sleep:
        A("s_cbranch_scc1 L_ok")
        A(f"s_sleep {a.sleep}")
        A("s_branch L_poll")
    else:
        A("s_cbranch_scc0 L_poll")
else:
    vXs = vRB + 48
    def ck_body(s_):
        g = vSrc+4*s_
        A(f"v_bitop3_b32 v{vTmp}, v{g}, v{g+1}, v{g+2} bitop3:0x96")
        A(f"v_bitop3_b32 v{vXs+s_}, v{vTmp}, v{g+3}, s{sCN+s_} bitop3:0x96")
        A(f"v_or_b32 v{vTmp+2}, v{vTmp+2}, v{vXs+s_}")
    ladder(0, 4, sN, "L_c4", ck_body)
    L("L_c4")
    ladder(4, 8, sHiN, "L_c8", ck_body)
    L("L_c8")
    A(f"v_cmp_eq_u32 vcc, 0, v{vTmp+2}")
    A(f"s_mov_b32 s{sMiss}, 0")
    A("s_cmp_eq_u64 vcc, exec")
    A("s_cbranch_scc1 L_ok")
    for s_ in range(8):
        A(f"v_cmp_ne_u32 vcc, 0, v{vXs+s_}")
        A("s_cmp_lg_u64 vcc, 0")
        A(f"s_cselect_b32 s{sT0}, {1<<s_}, 0")
        A(f"s_or_b32 s{sMiss}, s{sMiss}, s{sT0}")
    A(f"s_and_b32 s{sMiss}, s{sMiss}, s{sAct}")
    L("L_sel")
    for s_ in range(8):
        A(f"s_bitcmp1_b32 s{sMiss}, {s_}")
        A(f"s_cbranch_scc0 L_sl{s_}")
        A(f"buffer_load_dwordx4 {vr(vSrc+4*s_)}, v{vL16}, {sr(srdW)}, s{sCO+s_} offen{LD}")
        L(f"L_sl{s_}")
    A(f"s_sub_u32 s{sT2}, s{sT2}, 1")
    A("s_cbranch_scc1 L_ok")
    A("s_waitcnt vmcnt(0)")
    for s_ in range(8):
        g = vSrc+4*s_
        A(f"s_bitcmp1_b32 s{sMiss}, {s_}")
        A(f"s_cbranch_scc0 L_sc{s_}")
        A(f"v_bitop3_b32 v{vTmp}, v{g}, v{g+1}, v{g+2} bitop3:0x96")
        A(f"v_bitop3_b32 v{vTmp}, v{vTmp}, v{g+3}, s{sCN+s_} bitop3:0x96")
        A(f"v_cmp_ne_u32 vcc, 0, v{vTmp}")
        A("s_cmp_lg_u64 vcc, 0")
        A(f"s_cbranch_scc1 L_sc{s_}")
        A(f"s_bitset0_b32 s{sMiss}, {s_}")
        L(f"L_sc{s_}")
    A(f"s_cmp_lg_u32 s{sMiss}, 0")
    A("s_cbranch_scc1 L_sel")
L("L_ok")
TS("polled")
if a.ts in (1, 2):
    ts_slots.append("npoll")
    A(f"s_sub_u32 s100, {a.spin}, s{sT2}")
    A(f"v_writelane_b32 v63, s100, {len(ts_slots)-1}")
L("L_merge")
A(f"v_mov_b32 v{vTmp}, v{vMx}")
for s in range(8):
    if s:
        A(f"s_cmp_le_u32 s{sMc}, {s}")
        A("s_cbranch_scc1 L_mx")
    A(f"v_max_f32 v{vTmp}, v{vTmp}, v{vSrc+4*s+2}")
L("L_mx")
A(f"v_sub_f32 v{vTmp+1}, v{vMx}, v{vTmp}")
A(f"v_exp_f32 v{vTmp+1}, v{vTmp+1}")
A(f"v_mov_b32 v{vMx}, v{vTmp}")
A(f"v_mul_f32 v{vW}, v{vW}, v{vTmp+1}")
for c in range(4): A(f"v_mul_f32 v{vAcc+c}, v{vAcc+c}, v{vTmp+1}")
for s in range(8):
    if s:
        A(f"s_cmp_le_u32 s{sMc}, {s}")
        A("s_cbranch_scc1 L_mg")
    g = vSrc+4*s
    A(f"v_sub_f32 v{g+2}, v{g+2}, v{vMx}")
    A(f"v_exp_f32 v{g+2}, v{g+2}")
    A(f"v_lshlrev_b32 v{vTmp}, 16, v{g}")
    A(f"v_and_b32 v{g}, 0xffff0000, v{g}")
    A(f"v_lshlrev_b32 v{vTmp+1}, 16, v{g+1}")
    A(f"v_and_b32 v{g+1}, 0xffff0000, v{g+1}")
    A(f"v_add_f32 v{vW}, v{vW}, v{g+2}")
    A(f"v_fma_f32 v{vAcc}, v{g+2}, v{vTmp}, v{vAcc}")
    A(f"v_fma_f32 v{vAcc+1}, v{g+2}, v{g}, v{vAcc+1}")
    A(f"v_fma_f32 v{vAcc+2}, v{g+2}, v{vTmp+1}, v{vAcc+2}")
    A(f"v_fma_f32 v{vAcc+3}, v{g+2}, v{g+1}, v{vAcc+3}")
L("L_mg")
A(f"s_cmp_gt_u32 s{sRem}, 8")
A("s_cbranch_scc1 L_more")
A(f"v_rcp_f32 v{vW}, v{vW}")
A(f"s_cmp_lg_u32 s{sDual}, 0")
for c in range(4): A(f"v_mul_f32 v{vAcc+c}, v{vAcc+c}, v{vW}")
A(f"v_cvt_pk_bf16_f32 v{vAcc}, v{vAcc}, v{vAcc+1}")
A(f"v_cvt_pk_bf16_f32 v{vAcc+1}, v{vAcc+2}, v{vAcc+3}")
A(f"buffer_store_dwordx2 {vr(vAcc,2)}, v{vOo}, {sr(srdO)}, s{sOA} offen{OST}")
A("s_cbranch_scc0 L_fin")
for s in range(3):
    for c in range(4): A(f"v_mov_b32 v{vSrc+4*s+c}, v{vSrc+16+4*s+c}")
A(f"s_mov_b32 s{sDual}, 0")
A(f"s_mov_b32 s{sOA}, s{sOB}")
A(f"v_mov_b32 v{vMx}, v{vNEG}")
A(f"v_mov_b32 v{vW}, 0")
for c in range(4): A(f"v_mov_b32 v{vAcc+c}, 0")
A("s_branch L_merge")
if a.fast:
    L("L_pubslow")
    publish(ST)
    A("s_branch L_pubdone")
L("L_more")
A(f"s_sub_u32 s{sRem}, s{sRem}, 8")
A(f"s_min_u32 s{sMc}, s{sRem}, 8")
A(f"s_mov_b32 s{sHiN}, s{sRem}")
if a.sel:
    A(f"s_bfm_b32 s{sAct}, s{sMc}, 0")
for s in range(8):
    A(f"s_add_u32 s{sT0}, s{sCB}, {(8+s)*REC}")
    A(f"s_cmp_gt_u32 s{sRem}, {s}")
    A(f"s_cselect_b32 s{sCO+s}, s{sT0}, 0x80000000")
    A(f"s_cselect_b32 s{sCN+s}, s{sNonce}, 0")
A(f"s_add_u32 s{sCB}, s{sCB}, {8*REC}")
A(f"s_mov_b32 s{sT2}, {a.spin}")
A("s_branch L_poll")
L("L_direct")
for mt in range(2):
    for qt in range(2):
        g = vGr+(mt*2+qt)*4
        A(f"s_lshl_b32 s{sT0}, s{sW}, 6")
        A(f"s_add_u32 s{sT0}, s{sT0}, {qt*4096+mt*32}")
        A(f"buffer_store_dwordx2 {vr(g,2)}, v{vOo}, {sr(srdO)}, s{sT0} offen{OST}")
L("L_fin")
if a.ts:
    TS("end")
    A("s_waitcnt vmcnt(0)")
    A(f"s_lshl_b32 s{sT0}, s2, 2")
    A(f"s_add_u32 s{sT0}, s{sT0}, s{sW}")
    A(f"s_lshl_b32 s{sT0}, s{sT0}, 7")
    A(f"s_add_u32 s{sT0}, s{sT0}, {TS_OFF}")
    A(f"v_lshlrev_b32 v{vT}, 2, v{vLane}")
    A(f"v_cmp_gt_u32 vcc, 32, v{vLane}")
    A(f"s_and_saveexec_b64 {sp(sM)}, vcc")
    A(f"buffer_store_dword v63, v{vT}, {sr(srdW)}, s{sT0} offen")
L("L_end")
A("s_endpgm")

hdr = open("standalone__paged_block_table_kv_pagedattention__sampling.s.ref").read().split("\n")
comments = [l for l in hdr if l.startswith(";") and "@launch" not in l and not l.startswith("; Override") and not l.startswith("; grid=")]
txt = "\n".join(comments) + "\n"
txt += f"; @launch grid=(256,1,1) block=(256,1,1) lds={LDS_BYTES}\n"
txt += f""".amdgcn_target "amdgcn-amd-amdhsa--gfx950"
.text
.globl {KN}
.p2align 8
.type {KN},@function
"""
txt += "\n".join(out) + "\n"
txt += f""".section .rodata,"a"
.p2align 6
.amdhsa_kernel {KN}
  .amdhsa_next_free_vgpr {256+NAGPR}
  .amdhsa_next_free_sgpr 102
  .amdhsa_accum_offset 256
  .amdhsa_group_segment_fixed_size 0
  .amdhsa_kernarg_size 64
  .amdhsa_user_sgpr_count 2
  .amdhsa_user_sgpr_kernarg_segment_ptr 1
  .amdhsa_system_sgpr_workgroup_id_x 1
.end_amdhsa_kernel
"""
print(txt)
if a.ts:
    sys.stderr.write("TS: " + ",".join(ts_slots) + "\n")
```

```python
import argparse, sys
ap = argparse.ArgumentParser()
ap.add_argument("--ts", type=int, default=0, help="timestamps")
ap.add_argument("--nt", type=str, default="nt")
ap.add_argument("--st", type=str, default="sc1", help="partial store flags")
ap.add_argument("--ld", type=str, default="sc1", help="partial load flags")
ap.add_argument("--ost", type=str, default="", help="out store flags")
ap.add_argument("--rot", type=int, default=0)
ap.add_argument("--cpf", type=int, default=8, help="code prefetch KB")
ap.add_argument("--sleep", type=int, default=0)
ap.add_argument("--rpf", type=int, default=1, help="prefetch own record lines at start")
ap.add_argument("--rst", type=str, default="sc1")
ap.add_argument("--perm", type=str, default="")
ap.add_argument("--lad", type=int, default=1, help="ladder instead of dummy loads in the poll")
ap.add_argument("--fast", type=int, default=1, help="plain stores when the whole group sits on this XCD")
ap.add_argument("--thr", type=str, default="", help="XA,XB,tA,tB,aslow : throttle levels; t in 1/64 of reference work")
ap.add_argument("--fst", type=str, default="", help="fast-path store flags")
ap.add_argument("--sel", type=int, default=0, help="selective re-poll of missing sources")
ap.add_argument("--early", type=int, default=1, help="issue V5,V6 before the softmax")
ap.add_argument("--sched", type=int, default=0, help="1: reversed K order, later V issue")
ap.add_argument("--spec", type=str, default="", help="issue schedule, e.g. P:K7,K6,K5,K4,K3;t0:K2;...")
ap.add_argument("--cpf2", type=int, default=1)
ap.add_argument("--scl", type=int, default=1, help="context_lens through the scalar cache")
ap.add_argument("--mg2", type=int, default=0, help="leaner merge")
ap.add_argument("--fin", type=int, default=0, help="short final round, fast check before the last barrier, packed multiplies")
ap.add_argument("--tpf", type=int, default=1, help="re-prefetch tail code")
ap.add_argument("--spin", type=int, default=0x40000)
a = ap.parse_args()

SPEC = None
if a.spec:
    a.sched = 1
    SPEC = {}
    for part in a.spec.split(";"):
        k, v = part.split(":")
        SPEC[k] = v.split(",") if v else []
vm = []
def VM(tag, n=1):
    for _ in range(n): vm.append(tag)
def NW(tag):
    idx = max(i for i, t in enumerate(vm) if t == tag)
    return len(vm) - 1 - idx
def issue(point):
    for g in SPEC.get(point, []):
        if g[0] == "K": kdma(int(g[1]))
        else: vdma(int(g[1]))
KN = "standalone__paged_block_table_kv_pagedattention__sampling_kernel"
out = []
def A(s): out.append("    " + s)
def L(s): out.append(s + ":")
def C(s): out.append("    ; " + s)
NT = (" " + a.nt) if a.nt else ""
ST = (" " + a.st) if a.st else ""
LD = (" " + a.ld) if a.ld else ""
OST = (" " + a.ost) if a.ost else ""
RST = (" " + a.rst) if a.rst else ""

KV_BYTES = 1028*16*8*128*2
REC = 16384
XT_OFF = 6 << 20
TS_OFF = 8 << 20
WREG = 28672
PBASE = 4*WREG
XMAX = PBASE + 32768
XL = XMAX + 2048
XN = XL + 2048
QBASE = XN + 64
LDS_BYTES = QBASE + 8192

sW, sH, sSlot, sB, sN, sStart, sI, sCl, sCnt, sLim = 20, 21, 22, 23, 24, 25, 26, 27, 28, 29
sT0, sT1, sT2, sT3 = 30, 31, 32, 33
sUni, sC, sR, sP, sLdsW, sA = 34, 35, 36, 37, 38, 39
sE = 40
sSO = 48
srdK, srdV, srdQ, srdX, srdO, srdD, srdW = 56, 60, 64, 68, 72, 76, 80
sM = 84
sGrp, sNonce, sRec, sJ = 92, 93, 94, 95
sCO = 4
sCN = 12
sCB, sDual, sOA, sOB, sRem, sMc, sHiN = 40, 41, 42, 43, 44, 45, 46
sThr = 0
sNv, sNvC, sFast = 88, 89, 90
sNb, sNr = 70, 71
sMiss, sAct = 47, 1
sHiM, sChk = 47, 1
sXTg, sTag = 95, 3
vLane, vG, vN = 1, 2, 3
vKoff = 4; vVoff = 8; vLds = 12; vTok = 16; vNEG = 20
vT = 21
vMc = 30
vM = 32
vTr = 36
vPa = 40; vXw = 41; vXr = 42; vL16 = 43
vTrC = 44
vPC = 48
vRl = 50
vLsq = 52
vNon = 60
vS = 64
vO = 128
vRB = 144
vGr = 208
vLseN = 224
vTg = 227
vOo = 226
vCS = 228
def S(i, qt, r=0): return vS + i*8 + qt*4 + r
def O(mt, qt): return vO + (mt*2+qt)*4
aQ = 0; aK = 32; aOne = 64
NAGPR = 68
def vr(b, n=4): return f"v[{b}:{b+n-1}]"
def ar(b, n=4): return f"a[{b}:{b+n-1}]"
def sr(b, n=4): return f"s[{b}:{b+n-1}]"
def sp(b): return f"s[{b}:{b+1}]"

ts_slots = []
ts4 = []
def TS(name):
    if not a.ts: return
    if a.ts == 4:
        names = {"start": None, "pv": 48, "stored": 50, "iss1": 52, "ld1": 54, "polled": 64, "end": 66, "lastbar": 68}
        if name in names and names[name] is not None:
            A(f"s_memrealtime s[{names[name]}:{names[name]+1}]")
            ts4.append((name, names[name]))
        return
    if a.ts == 3 and name not in ("start", "k0i3", "pv", "end"): return
    idx = len(ts_slots)
    ts_slots.append(name)
    A("s_memrealtime s[100:101]")
    A("s_waitcnt lgkmcnt(0)")
    A(f"v_writelane_b32 v63, s100, {idx}")

def TS2(name):
    if a.ts == 2: TS(name)
def kslot(j): return ((7 - j) % 7) if a.sched else (j % 7)
def vslot(j): return (j + 1) % 7
THR = [int(x) for x in a.thr.split(",")] if a.thr else None
thr_n = [0]
def throttle():
    if not THR: return
    k = thr_n[0]; thr_n[0] += 1
    A(f"s_bitcmp1_b32 s{sThr}, 0")
    A(f"s_cbranch_scc0 L_ta{k}")
    A(f"s_waitcnt vmcnt({THR[0]})")
    L(f"L_ta{k}")
    A(f"s_bitcmp1_b32 s{sThr}, 1")
    A(f"s_cbranch_scc0 L_tb{k}")
    A(f"s_waitcnt vmcnt({THR[1]})")
    L(f"L_tb{k}")
def kdma(j):
    if j >= 2: throttle()
    A(f"s_add_u32 m0, s{sLdsW}, {kslot(j)*4096}")
    A(f"s_lshl_b32 s{sSO+j}, s{sE+j}, 15")
    A(f"s_cmp_gt_u32 s{sCnt}, {j}")
    A(f"s_cselect_b32 s{sSO+j}, s{sSO+j}, 0x80000000")
    for jj in range(4):
        A(f"buffer_load_dwordx4 v{vKoff+jj}, {sr(srdK)}, s{sSO+j} offen offset:{jj*1024}{NT} lds")
    VM(f"K{j}", 4)
def vdma(j):
    throttle()
    A(f"s_add_u32 m0, s{sLdsW}, {vslot(j)*4096}")
    A("s_nop 0")
    for jj in range(4):
        A(f"buffer_load_dwordx4 v{vVoff+jj}, {sr(srdV)}, s{sSO+j} offen offset:{jj*1024}{NT} lds")
    VM(f"V{j}", 4)

L(KN)
vMt = vT+1
vCl = vT+2
vP1 = vT+3
vClm = vT+4
srdBT = sM
vQo = vT+7
def head_of_wg():
    if a.perm:
        A(f"s_and_b32 s{sH}, s2, 7")
        A(f"s_lshl_b32 s{sH}, s{sH}, 2")
        A(f"s_lshr_b32 s{sH}, {a.perm}, s{sH}")
        A(f"s_and_b32 s{sH}, s{sH}, 7")
    elif a.rot:
        A(f"s_add_u32 s{sH}, s2, {a.rot}")
        A(f"s_and_b32 s{sH}, s{sH}, 7")
    else:
        A(f"s_and_b32 s{sH}, s2, 7")
    A(f"s_lshr_b32 s{sSlot}, s2, 3")
def m_table():
    A(f"v_add_u32 v{vT}, 1, v{vLane}")
    A(f"v_cvt_f32_u32 v{vT}, v{vT}")
    A(f"v_rcp_f32 v{vT}, v{vT}")
    A(f"v_lshrrev_b32 v{vG}, 4, v{vLane}")
    A(f"v_mul_f32 v{vT}, 0x47800000, v{vT}")
    A(f"v_cvt_u32_f32 v{vT}, v{vT}")
    A(f"v_add_u32 v{vMt}, 1, v{vT}")
def k_voff():
    for j in range(4):
        A(f"v_add_u32 v{vT+6}, {4*j}, v{vG}")
        A(f"v_xor_b32 v{vT+7}, v{vT+6}, v{vN}")
        A(f"v_lshlrev_b32 v{vT+8}, 11, v{vT+6}")
        if j: A(f"v_subrev_u32 v{vT+8}, {1024*j}, v{vT+8}")
        A(f"v_lshl_add_u32 v{vKoff+j}, v{vT+7}, 4, v{vT+8}")
def v_voff(t0, t1, t2):
    for j in range(4):
        A(f"v_add_u32 v{t0}, {4*j}, v{vG}")
        A(f"v_lshlrev_b32 v{t2}, 11, v{t0}")
        if j: A(f"v_subrev_u32 v{t2}, {1024*j}, v{t2}")
        A(f"v_and_b32 v{t0}, 7, v{t0}")
        A(f"v_lshlrev_b32 v{t0}, 1, v{t0}")
        A(f"v_xor_b32 v{t1}, v{t0}, v{vN}")
        A(f"v_lshl_add_u32 v{vVoff+j}, v{t1}, 4, v{t2}")
def q_voff():
    A(f"s_lshl_b32 s{sT1}, s{sW}, 3")
    for jj in range(2):
        A(f"v_add_u32 v{vT+6}, s{sT1}, v{vG}")
        if jj: A(f"v_add_u32 v{vT+6}, 4, v{vT+6}")
        A(f"v_and_b32 v{vT}, 15, v{vT+6}")
        A(f"v_xor_b32 v{vT}, v{vT}, v{vN}")
        A(f"v_lshlrev_b32 v{vT+6}, 8, v{vT+6}")
        if jj: A(f"v_subrev_u32 v{vT+6}, 1024, v{vT+6}")
        A(f"v_lshl_add_u32 v{vQo+jj}, v{vT}, 4, v{vT+6}")
def lds_consts(t0, t1):
    A(f"v_lshlrev_b32 v{t0}, 8, v{vN}")
    A(f"v_add_u32 v{t0}, s{sLdsW}, v{t0}")
    for s in range(4):
        A(f"v_add_u32 v{t1}, {4*s}, v{vG}")
        A(f"v_xor_b32 v{t1}, v{t1}, v{vN}")
        A(f"v_lshl_add_u32 v{vLds+s}, v{t1}, 4, v{t0}")
    for r in range(4):
        A(f"v_lshl_add_u32 v{vTok+r}, v{vG}, 2, {r}")
    A(f"v_mov_b32 v{vNEG}, 0xf149f2ca")
    A(f"s_mov_b32 s{sC}, 0x3e0293ee")
def srd_kv(reg, lo):
    A(f"s_add_u32 s{reg}, s{lo}, s{sT0}"); A(f"s_addc_u32 s{reg+1}, s{lo+1}, 0"); A(f"s_sub_u32 s{reg+2}, {KV_BYTES}, s{sT0}"); A(f"s_mov_b32 s{reg+3}, 0x20000")
def srd_w():
    A(f"s_mov_b32 s{srdW}, s18"); A(f"s_mov_b32 s{srdW+1}, s19"); A(f"s_mov_b32 s{srdW+2}, 0x10000000"); A(f"s_mov_b32 s{srdW+3}, 0x20000")
if a.ts in (3, 4): A("s_memrealtime s[100:101]")
A("s_cmp_ge_u32 s2, 256")
A("s_cbranch_scc1 L_end")
A("s_load_dwordx16 s[4:19], s[0:1], 0")
if a.cpf:
    A("s_getpc_b64 s[98:99]")
    L("L_pc0")
    if a.cpf2:
        A("v_lshrrev_b32 v62, 6, v0")
        A("v_and_b32 v61, 3, v0")
        A("v_lshl_add_u32 v62, v62, 2, v61")
        A("v_lshlrev_b32 v62, 7, v62")
    else:
        A("v_lshlrev_b32 v62, 7, v0")
        A(f"v_min_u32 v62, L_end-L_pc0, v62")
    A("global_load_dword v58, v62, s[98:99]")
if a.ts:
    A("v_mov_b32 v63, 0")
if a.ts in (3, 4):
    ts_slots.append("start")
else:
    TS("start")
A(f"v_and_b32 v{vLane}, 63, v0")
A(f"v_lshrrev_b32 v{vT}, 6, v0")
A(f"v_min_u32 v{vT+5}, 7, v{vLane}")
A(f"v_readfirstlane_b32 s{sW}, v{vT}")
A(f"v_lshlrev_b32 v{vT+5}, 2, v{vT+5}")
A(f"v_lshlrev_b32 v{vT+6}, 6, v{vLane}")
head_of_wg()
A(f"s_lshl_b32 s{sT0}, s{sH}, 5")
A(f"s_add_u32 s{sT1}, s{sT0}, s{sSlot}")
A(f"s_lshl_b32 s{sRec}, s{sT1}, 14")
A(f"s_lshl_b32 s{sT1}, s{sW}, 12")
A(f"s_add_u32 s{sRec}, s{sRec}, s{sT1}")
A(f"v_add_u32 v{vT+7}, s{sRec}, v{vT+6}")
if a.cpf2:
    A(f"v_lshlrev_b32 v{vT+8}, 5, v{vT+5}")
    A(f"s_lshl_b32 s{sT1}, s{sW}, 10")
    A(f"v_add_u32 v{vT+8}, s{sT1}, v{vT+8}")
TS2("preka")
A("s_waitcnt lgkmcnt(0)")
if a.ts in (3, 4): A("v_writelane_b32 v63, s100, 0")
TS2("ka")
if a.scl:
    A(f"s_load_dwordx8 s[{sE}:{sE+7}], s[12:13], 0")
else:
    A(f"global_load_dword v{vCl}, v{vT+5}, s[12:13]")
if a.cpf2:
    A(f"global_load_dword v59, v{vT+8}, s[10:11]")
else:
    A(f"global_load_dword v59, v{vT+6}, s[10:11]")
if a.rpf == 3:
    A(f"global_load_dword v57, v{vT+7}, s[18:19]")
A(f"v_and_b32 v{vN}, 15, v{vLane}")
m_table()
k_voff()
A(f"s_mul_i32 s{sLdsW}, s{sW}, {WREG}")
A(f"s_lshl_b32 s{sT0}, s{sH}, 8")
srd_kv(srdK, 6)
srd_kv(srdV, 8)
A(f"s_mov_b32 s{srdBT}, s10"); A(f"s_mov_b32 s{srdBT+1}, s11"); A(f"s_mov_b32 s{srdBT+2}, 4096"); A(f"s_mov_b32 s{srdBT+3}, 0x20000")
q_voff()
TS("karg")
if a.scl:
    A("s_waitcnt lgkmcnt(0)")
    for b in range(8):
        A(f"v_writelane_b32 v{vCl}, s{sE+b}, {b}")
else:
    A(f"s_waitcnt vmcnt({2 if a.rpf == 3 else 1})")
TS2("clw")
A(f"v_add_u32 v{vClm}, -1, v{vCl}")
A(f"v_min_u32 v{vClm}, 0x7ff, v{vClm}")
A(f"v_lshrrev_b32 v{vP1}, 4, v{vClm}")
A("s_nop 0")
for b in range(8):
    A(f"v_readlane_b32 s{sE+b}, v{vP1}, {b}")
vAcc = vT+5; vTt = vT+6
A(f"v_mul_u32_u24 v{vAcc}, s{sE}, v{vMt}")
A(f"v_lshrrev_b32 v{vAcc}, 16, v{vAcc}")
for b in range(1, 8):
    A(f"v_mul_u32_u24 v{vTt}, s{sE+b}, v{vMt}")
    A(f"v_add_u32_sdwa v{vAcc}, v{vAcc}, v{vTt} dst_sel:DWORD dst_unused:UNUSED_PAD src0_sel:DWORD src1_sel:WORD_1")
A(f"v_cmp_ge_u32 vcc, 24, v{vAcc}")
A("s_nop 1")
A(f"s_ff1_i32_b64 s{sT0}, vcc")
if THR: A(f"s_add_u32 s{sA}, s{sT0}, 1")
TS2("cf")
A("s_nop 0")
A(f"v_readlane_b32 s{sT1}, v{vMt}, s{sT0}")
A("s_nop 1")
vNb = vAcc; vInc = vTt
A(f"v_mul_u32_u24 v{vNb}, s{sT1}, v{vP1}")
A(f"v_lshrrev_b32 v{vNb}, 16, v{vNb}")
A(f"v_add_u32 v{vNb}, 1, v{vNb}")
A(f"v_mov_b32 v{vInc}, v{vNb}")
for sh in (1, 2, 4):
    A("s_nop 1")
    A(f"v_add_u32_dpp v{vInc}, v{vInc}, v{vInc} row_shr:{sh} row_mask:0xf bank_mask:0xf bound_ctrl:0")
A(f"v_cmp_lt_u32 vcc, s{sSlot}, v{vInc}")
A("s_nop 1")
A("s_and_b32 vcc_lo, vcc_lo, 0xff")
A("s_cbranch_scc0 L_end")
A(f"s_ff1_i32_b32 s{sB}, vcc_lo")
TS2("bf")
A("s_nop 0")
A(f"v_readlane_b32 s{sN}, v{vNb}, s{sB}")
A(f"v_readlane_b32 s{sStart}, v{vInc}, s{sB}")
A(f"v_readlane_b32 s{sT2}, v{vP1}, s{sB}")
A(f"v_readlane_b32 s{sCl}, v{vClm}, s{sB}")
A(f"v_readlane_b32 s{sUni}, v{vCl}, s{sB}")
A(f"s_sub_u32 s{sT0}, s{sN}, 1")
A(f"v_readlane_b32 s{sT1}, v{vMt}, s{sT0}")
A(f"s_sub_u32 s{sStart}, s{sStart}, s{sN}")
A(f"s_sub_u32 s{sI}, s{sSlot}, s{sStart}")
A(f"s_add_u32 s{sT2}, s{sT2}, 1")
A(f"s_mul_i32 s{sT1}, s{sT1}, s{sT2}")
A(f"s_mul_i32 s{sT3}, s{sT1}, s{sI}")
A(f"s_add_u32 s{sT1}, s{sT1}, s{sT3}")
A(f"s_lshr_b32 s{sT3}, s{sT3}, 16")
A(f"s_lshr_b32 s{sT1}, s{sT1}, 16")
A(f"s_cmp_eq_u32 s{sI}, s{sT0}")
A(f"s_cselect_b32 s{sT1}, s{sT2}, s{sT1}")
A(f"s_sub_u32 s{sT1}, s{sT1}, s{sT3}")
if THR:
    A(f"s_lshr_b32 s{sP}, s6, 8")
    A(f"s_add_u32 s{sP}, s{sP}, s{sH}")
    A(f"s_and_b32 s{sP}, s{sP}, 3")
    A(f"s_cmp_eq_u32 s{sP}, 1")
    A(f"s_cselect_b32 s{sP}, {THR[4]}, 8")
    A(f"s_mul_i32 s{sP}, s{sP}, s{sT1}")
    A(f"s_mul_i32 s{sA}, s{sA}, {THR[4]}")
    A(f"s_sub_i32 s{sP}, s{sA}, s{sP}")
    A(f"s_lshl_b32 s{sP}, s{sP}, 6")
    A(f"s_mul_i32 s{sR}, s{sA}, {THR[2]}")
    A(f"s_cmp_ge_i32 s{sP}, s{sR}")
    A(f"s_cselect_b32 s{sThr}, 1, 0")
    A(f"s_mul_i32 s{sR}, s{sA}, {THR[3]}")
    A(f"s_cmp_ge_i32 s{sP}, s{sR}")
    A(f"s_cselect_b32 s{sR}, 2, 0")
    A(f"s_or_b32 s{sThr}, s{sThr}, s{sR}")
A(f"s_add_u32 s{sR}, s{sT1}, 7")
A(f"s_lshr_b32 s{sR}, s{sR}, 3")
A(f"s_lshr_b32 s{sT0}, s{sT1}, 2")
A(f"s_and_b32 s{sT1}, s{sT1}, 3")
if a.fin:
    A(f"s_mov_b32 s{sNb}, s{sT0}")
    A(f"s_mov_b32 s{sNr}, s{sT1}")
A(f"s_mul_i32 s{sT2}, s{sW}, s{sT0}")
A(f"s_add_u32 s{sT3}, s{sT3}, s{sT2}")
A(f"s_min_u32 s{sT2}, s{sW}, s{sT1}")
A(f"s_add_u32 s{sT3}, s{sT3}, s{sT2}")
A(f"s_cmp_lt_u32 s{sW}, s{sT1}")
A(f"s_addc_u32 s{sCnt}, s{sT0}, 0")
A(f"s_lshl_b32 s{sT0}, s{sB}, 7")
A(f"s_add_u32 s{sT0}, s{sT0}, s{sT3}")
A(f"s_lshl_b32 s{sT0}, s{sT0}, 2")
A(f"s_buffer_load_dwordx8 s[{sE}:{sE+7}], {sr(srdBT)}, s{sT0}")
A(f"s_add_u32 s{sCl}, s{sCl}, 1")
A(f"s_lshl_b32 s{sT3}, s{sT3}, 4")
A(f"s_sub_i32 s{sLim}, s{sCl}, s{sT3}")
A(f"s_lshl_b32 s{sT2}, s{sCnt}, 4")
A(f"s_min_i32 s{sLim}, s{sLim}, s{sT2}")
A(f"s_lshl_b32 s{sT0}, s{sB}, 16")
A(f"s_lshl_b32 s{sT1}, s{sH}, 13")
A(f"s_add_u32 s{sT0}, s{sT0}, s{sT1}")
A(f"s_add_u32 s{srdQ}, s4, s{sT0}"); A(f"s_addc_u32 s{srdQ+1}, s5, 0"); A(f"s_mov_b32 s{srdQ+2}, 8192"); A(f"s_mov_b32 s{srdQ+3}, 0x20000")
A(f"s_add_u32 s{srdO}, s14, s{sT0}"); A(f"s_addc_u32 s{srdO+1}, s15, 0"); A(f"s_mov_b32 s{srdO+2}, 8192"); A(f"s_mov_b32 s{srdO+3}, 0x20000")
TS("alloc")
A("s_waitcnt lgkmcnt(0)")
kdma(int(SPEC["P"][0][1]) if SPEC else (7 if a.sched else 0))
TS2("k0i")
if a.ts == 3: TS("k0i3")
A(f"s_lshl_b32 s{sT1}, s{sW}, 11")
A(f"s_add_u32 m0, s{sT1}, {QBASE}")
A("s_nop 0")
for jj in range(2):
    A(f"buffer_load_dwordx4 v{vQo+jj}, {sr(srdQ)}, 0 offen offset:{jj*1024} lds")
VM("Q", 2)
for j in ([int(g[1]) for g in SPEC["P"][1:]] if SPEC else ((6, 5, 4, 3) if a.sched else range(1, 5))): kdma(j)
TS("k4issued")
A("s_memrealtime s[96:97]")
A(f"s_lshl_b32 s{sGrp}, s{sB}, 3")
A(f"s_add_u32 s{sGrp}, s{sGrp}, s{sH}")
A(f"s_lshl_b32 s{sT0}, s{sGrp}, 2")
A(f"s_cmp_eq_u32 s{sW}, 0")
A(f"s_cselect_b32 s{sT0}, s{sT0}, 0x1000")
A(f"s_mov_b32 s{srdD}, s16"); A(f"s_mov_b32 s{srdD+1}, s17"); A(f"s_mov_b32 s{srdD+2}, 256"); A(f"s_mov_b32 s{srdD+3}, 0x20000")
A(f"v_mov_b32 v{vNon+2}, s{sT0}")
A(f"v_mov_b32 v{vNon+1}, 0")
A("s_waitcnt lgkmcnt(0)")
A(f"s_and_b32 s{sNonce}, s96, 0xffffffe0")
A(f"s_or_b32 s{sNonce}, s{sNonce}, 0x10")
A(f"v_mov_b32 v{vNon}, s{sNonce}")
A("s_mov_b64 exec, 1")
A(f"buffer_atomic_cmpswap v[{vNon}:{vNon+1}], v{vNon+2}, {sr(srdD)}, 0 offen sc0 sc1")
VM("A")
A("s_mov_b64 exec, -1")
if a.cpf and a.cpf2:
    A(f"v_and_b32 v56, 15, v{vLane}")
    A(f"s_lshl_b32 s{sT1}, s{sW}, 4")
    A(f"v_add_u32 v56, s{sT1}, v56")
    A(f"v_lshlrev_b32 v56, 7, v56")
    A(f"v_add_u32 v56, 2048, v56")
    A(f"v_min_u32 v56, L_end-L_pc0, v56")
    A(f"global_load_dword v58, v56, s[98:99]")
    VM("CP")
srd_w()
A(f"v_lshlrev_b32 v{vL16}, 4, v{vLane}")
v_voff(vT, vT+1, vT+2)
lds_consts(vT, vT+1)
A(f"v_lshrrev_b32 v{vT}, 2, v{vLane}")
A(f"v_and_b32 v{vT+1}, 7, v{vT}")
A(f"v_lshlrev_b32 v{vT+1}, 1, v{vT+1}")
A(f"v_bfe_u32 v{vT+2}, v{vLane}, 1, 1")
A(f"s_lshl_b32 s{sT0}, s{sW}, 2")
A(f"v_add_u32 v{vT+2}, s{sT0}, v{vT+2}")
A(f"v_and_b32 v{vT+3}, 1, v{vLane}")
A(f"v_lshlrev_b32 v{vT+3}, 3, v{vT+3}")
A(f"v_lshl_add_u32 v{vT+3}, v{vT}, 8, v{vT+3}")
for mt in range(2):
    A(f"v_add_u32 v{vT+4}, {2*mt}, v{vT+2}")
    A(f"v_xor_b32 v{vT+4}, v{vT+4}, v{vT+1}")
    A(f"v_lshl_add_u32 v{vTr+mt}, v{vT+4}, 4, v{vT+3}")
    A(f"v_add_u32 v{vTr+2+mt}, {2*WREG}, v{vTr+mt}")
A(f"v_add_u32 v{vPa}, {PBASE}, v{vL16}")
A(f"s_lshl_b32 s{sT0}, s{sW}, 2")
A(f"s_add_u32 s{sT0}, s{sT0}, {XMAX}")
A(f"v_add_u32 v{vXw}, s{sT0}, v{vL16}")
A(f"v_add_u32 v{vXr}, {XMAX}, v{vL16}")
A(f"v_mov_b32 v{vT}, 0x3f803f80")
for r in range(4): A(f"v_accvgpr_write_b32 a{aOne+r}, v{vT}")
A(f"s_sub_u32 s{sT0}, {QBASE}, s{sLdsW}")
for s in range(4): A(f"v_add_u32 v{vT+s}, s{sT0}, v{vLds+s}")

if a.sched:
    nxt = ["K2", "K1", "K0", "V0", "V1", "V2", None, None]
    kwait = [17, 17, 17, 17, 17, 16, 16 + a.fast, 12 + a.fast]
else:
    nxt = ["K5", "K6", "K7", "V0", "V1", "V2", "V3", "V4"]
    kwait = [17, 17, 17, 17, 17, 16, 16 + a.fast, 16 + a.fast]
NSTEP = 5
for t in range(8):
    j = (7 - t) if a.sched else t
    kb = aK + (t & 1)*16
    if SPEC:
        w_ = min(NW(f"K{j}"), NW("Q")) if t == 0 else NW(f"K{j}")
        if t == NSTEP: w_ = min(w_, NW("A"))
        A(f"s_waitcnt vmcnt({w_})")
    else:
        A(f"s_waitcnt vmcnt({kwait[t]})")
    if t == 0:
        A("s_barrier")
        for qt in range(2):
            for s in range(4):
                A(f"ds_read_b128 {ar(aQ+(qt*4+s)*4)}, v{vT+s} offset:{qt*4096}")
    for s in range(4):
        A(f"ds_read_b128 {ar(kb+4*s)}, v{vLds+s} offset:{kslot(j)*4096}")
    A(f"s_sub_i32 s{sT0}, s{sLim}, {16*j}")
    for r in range(4):
        A(f"v_cmp_gt_i32 {sp(sM+2*r)}, s{sT0}, v{vTok+r}")
    for r in range(4):
        A(f"v_cndmask_b32 v{vM+r}, v{vNEG}, 0, {sp(sM+2*r)}")
    if t == 0:
        A("s_waitcnt lgkmcnt(4)")
        A(f"s_cmp_gt_i32 s{sUni}, 0")
        A("s_cbranch_scc1 L_qok")
        A(f"v_mov_b32 v{vT}, 0")
        for r in range(32): A(f"v_accvgpr_write_b32 a{aQ+r}, v{vT}")
        L("L_qok")
    if t == 5:
        A(f"v_readfirstlane_b32 s{sT1}, v{vNon}")
    A("s_nop 0")
    for s in range(4):
        A(f"s_waitcnt lgkmcnt({3-s})")
        for qt in range(2):
            c = vr(vM) if s == 0 else vr(S(j,qt))
            A(f"v_mfma_f32_16x16x32_bf16 {vr(S(j,qt))}, {ar(kb+4*s)}, {ar(aQ+(qt*4+s)*4)}, {c}")
    if t == 5:
        A(f"s_cmp_eq_u32 s{sT1}, 0")
        A(f"s_cselect_b32 s{sNonce}, s{sNonce}, s{sT1}")
        if a.fast:
            A(f"s_getreg_b32 s{sT0}, hwreg(HW_REG_XCC_ID)")
            A(f"s_and_b32 s{sTag}, s{sT0}, 7")
            A(f"s_or_b32 s{sT0}, s{sNonce}, s{sTag}")
            A(f"s_lshl_b32 s{sXTg}, s{sGrp}, 7")
            A(f"s_add_u32 s{sXTg}, s{sXTg}, {XT_OFF}")
            A(f"s_lshl_b32 s{sT1}, s{sI}, 2")
            A(f"s_add_u32 s{sT1}, s{sT1}, s{sXTg}")
            A(f"s_cmp_eq_u32 s{sW}, 0")
            A(f"s_cselect_b32 s{sT1}, s{sT1}, 0x80000000")
            A(f"v_mov_b32 v{vT+5}, s{sT0}")
            A(f"v_mov_b32 v{vT+6}, 0")
            A("s_mov_b64 exec, 1")
            A(f"buffer_store_dword v{vT+5}, v{vT+6}, {sr(srdW)}, s{sT1} offen sc1")
            VM("T")
            A("s_mov_b64 exec, -1")
    nm = None if SPEC else nxt[t]
    if SPEC: issue(f"t{t}")
    if nm is not None:
        if nm[0] == "K": kdma(int(nm[1]))
        else: vdma(int(nm[1]))
    if t == 7 and a.early and not a.sched:
        vdma(5); vdma(6)
    if t in (0, 3, 7): TS(f"k{t}")
for qt in range(2):
    regs = [S(i,qt,r) for i in (range(7,-1,-1) if a.sched else range(8)) for r in range(4)]
    m = vMc+qt
    A(f"v_max3_f32 v{m}, v{regs[0]}, v{regs[1]}, v{regs[2]}")
    k = 3
    while k + 1 < len(regs):
        A(f"v_max3_f32 v{m}, v{m}, v{regs[k]}, v{regs[k+1]}")
        k += 2
    if k < len(regs):
        A(f"v_max_f32 v{m}, v{m}, v{regs[k]}")
for op in ("v_permlane16_swap_b32", "v_permlane32_swap_b32"):
    for qt in range(2): A(f"v_mov_b32 v{vT+qt}, v{vMc+qt}")
    A("s_nop 1")
    for qt in range(2): A(f"{op} v{vMc+qt}, v{vT+qt}")
    for qt in range(2): A(f"v_max_f32 v{vMc+qt}, v{vMc+qt}, v{vT+qt}")
for qt in range(2):
    A(f"ds_write_b32 v{vXw}, v{vMc+qt} offset:{qt*1024}")
A(f"s_lshl_b32 s{sT0}, s{sW}, 2")
A(f"s_add_u32 s{sT0}, s{sT0}, {XN}")
A(f"v_mov_b32 v{vT+2}, s{sT0}")
A(f"v_mov_b32 v{vT+3}, s{sNonce}")
A("s_mov_b64 exec, 1")
A(f"ds_write_b32 v{vT+2}, v{vT+3}")
A("s_mov_b64 exec, -1")
if SPEC: issue("B1")
elif a.sched: vdma(3)
elif not a.early: vdma(5)
A("s_waitcnt lgkmcnt(0)")
A("s_barrier")
TS("bar1")
for qt in range(2):
    A(f"ds_read_b128 {vr(vRB+4*qt)}, v{vXr} offset:{qt*1024}")
A(f"v_mov_b32 v{vT+2}, {XN}")
A(f"ds_read_b32 v{vT+3}, v{vT+2}")
A("s_waitcnt lgkmcnt(1)")
for qt in range(2):
    b = vRB+4*qt
    A(f"v_max3_f32 v{vMc+qt}, v{b}, v{b+1}, v{b+2}")
for qt in range(2):
    A(f"v_max_f32 v{vMc+qt}, v{vMc+qt}, v{vRB+4*qt+3}")
for qt in range(2):
    A(f"v_mul_f32 v{vMc+qt}, s{sC}, v{vMc+qt}")
A("s_waitcnt lgkmcnt(0)")
A(f"v_readfirstlane_b32 s{sNonce}, v{vT+3}")
A(f"s_lshl_b32 s{sT0}, s{sW}, 13")
A(f"v_add_u32 v{vT+4}, s{sT0}, v{vPa}")
for p in range(4):
    for qt in range(2):
        for i in (2*p, 2*p+1):
            for r in range(4):
                A(f"v_fma_f32 v{S(i,qt,r)}, v{S(i,qt,r)}, s{sC}, -v{vMc+qt}")
            for r in range(4):
                A(f"v_exp_f32 v{S(i,qt,r)}, v{S(i,qt,r)}")
        d = S(2*p,qt)
        A(f"v_cvt_pk_bf16_f32 v{d}, v{S(2*p,qt,0)}, v{S(2*p,qt,1)}")
        A(f"v_cvt_pk_bf16_f32 v{d+1}, v{S(2*p,qt,2)}, v{S(2*p,qt,3)}")
        A(f"v_cvt_pk_bf16_f32 v{d+2}, v{S(2*p+1,qt,0)}, v{S(2*p+1,qt,1)}")
        A(f"v_cvt_pk_bf16_f32 v{d+3}, v{S(2*p+1,qt,2)}, v{S(2*p+1,qt,3)}")
        A(f"ds_write_b128 v{vT+4}, {vr(d)} offset:{p*2048+qt*1024}")
        if p > 0 or qt > 0:
            pp, pq = (p, 0) if qt == 1 else (p-1, 1)
            c = "0" if pp == 0 else vr(vLsq+4*pq)
            A(f"v_mfma_f32_16x16x32_bf16 {vr(vLsq+4*pq)}, {ar(aOne)}, {vr(S(2*pp,pq))}, {c}")
    if SPEC: issue(f"E{p}")
    if p == 1:
        if SPEC: pass
        elif a.sched: vdma(4)
        elif not a.early: vdma(6)
        if a.tpf:
            A("s_getpc_b64 s[98:99]")
            L("L_tpf")
            A(f"v_lshlrev_b32 v{vT}, 7, v{vLane}")
            A(f"v_min_u32 v{vT}, L_end-L_tpf, v{vT}")
            A(f"global_load_dword v{vT+1}, v{vT}, s[98:99]")
            VM("PF")
A("s_nop 1")
A(f"v_mfma_f32_16x16x32_bf16 {vr(vLsq+4)}, {ar(aOne)}, {vr(S(6,1))}, {vr(vLsq+4)}")
A(f"s_lshl_b32 s{sT0}, s{sH}, 5")
A(f"s_lshl_b32 s{sT1}, s{sW}, 12")
A("s_nop 2")
A(f"s_add_u32 s{sT0}, s{sT0}, s{sStart}")
A(f"s_lshl_b32 s{sGrp}, s{sT0}, 14")
A(f"s_add_u32 s{sGrp}, s{sGrp}, s{sT1}")
A("s_nop 3")
A(f"v_add_u32 v{vT+4}, {XL-XMAX}, v{vXw}")
for qt in range(2):
    A(f"ds_write_b32 v{vT+4}, v{vLsq+4*qt} offset:{qt*1024}")
A("s_waitcnt lgkmcnt(0)")
A("s_barrier")
TS("bar2")
if a.fast:
    A(f"v_lshlrev_b32 v{vT+5}, 2, v{vLane}")
    A(f"v_cmp_gt_u32 vcc, s{sN}, v{vLane}")
    A(f"v_mov_b32 v{vT+6}, 0x40000000")
    A("s_nop 0")
    A(f"v_cndmask_b32 v{vT+5}, v{vT+6}, v{vT+5}, vcc")
    A(f"buffer_load_dword v{vTg}, v{vT+5}, {sr(srdW)}, s{sXTg} offen sc1")
    VM("G")
for qt in range(2):
    A(f"ds_read_b128 {vr(vRB+4*qt)}, v{vXr} offset:{XL-XMAX+qt*1024}")
A(f"s_mov_b32 s{sP}, 0")
if a.fin:
    A(f"s_lshl_b32 s{sNv}, s{sR}, 1")
    A(f"s_sub_u32 s{sNv}, s{sNv}, 2")
    A(f"s_cmp_gt_u32 s{sNb}, s{sNv}")
    A(f"s_cselect_b32 s{sNv}, 4, s{sNr}")
    A(f"s_mov_b32 s{sNvC}, 4")
A(f"s_mov_b32 s{sA}, 4096")
for k in range(4): A(f"v_add_u32 v{vTrC+k}, 4096, v{vTr+k}")
A(f"v_mov_b32 v{vPC}, v{vPa}")
A("s_waitcnt lgkmcnt(0)")
for qt in range(2):
    b = vRB+4*qt
    A(f"v_add_f32 v{b}, v{b}, v{b+1}")
    A(f"v_add_f32 v{b+2}, v{b+2}, v{b+3}")
for qt in range(2):
    b = vRB+4*qt
    A(f"v_add_f32 v{b}, v{b}, v{b+2}")
for qt in range(2):
    b = vRB+4*qt
    A(f"v_rcp_f32 v{vRl+qt}, v{b}")
    A(f"v_log_f32 v{b+1}, v{b}")
A("s_nop 0")
for qt in range(2):
    b = vRB+4*qt
    A(f"v_add_f32 v{b+1}, v{b+1}, v{vMc+qt}")
for mt in range(2):
    for qt in range(2):
        A(f"v_mov_b32 v{vGr+(mt*2+qt)*4+2}, v{vRB+4*qt+1}")
for qt in range(2):
    A(f"v_xor_b32 v{vLseN+qt}, s{sNonce}, v{vRB+4*qt+1}")
for r in range(16): A(f"v_mov_b32 v{vO+r}, 0")
A(f"v_lshlrev_b32 v{vOo}, 8, v{vN}")
A(f"v_lshl_add_u32 v{vOo}, v{vG}, 3, v{vOo}")
A(f"s_lshl_b32 s{sT0}, s{sI}, 10")
A(f"s_add_u32 s{sCB}, s{sT0}, s{sGrp}")
A(f"s_add_u32 s{sT1}, s{sI}, s{sN}")
A(f"s_cmp_lt_u32 s{sT1}, 4")
A(f"s_cselect_b32 s{sDual}, 1, 0")
A(f"s_lshl_b32 s{sT2}, s{sT1}, 10")
A(f"s_add_u32 s{sT2}, s{sT2}, s{sGrp}")
A(f"s_sub_u32 s{sT2}, s{sT2}, {4*REC}")
A(f"s_add_u32 s{sT3}, s{sN}, 4")
A(f"s_cmp_lg_u32 s{sDual}, 0")
A(f"s_cselect_b32 s{sT2}, s{sT2}, s{sCB}")
A(f"s_cselect_b32 s{sT3}, s{sT3}, s{sN}")
A(f"s_mov_b32 s{sHiN}, s{sT3}")
for s_ in range(8):
    b = sCB if s_ < 4 else sT2
    n_ = sN if s_ < 4 else sT3
    A(f"s_add_u32 s{sT0}, s{b}, {s_*REC}")
    A(f"s_cmp_gt_u32 s{n_}, {s_}")
    A(f"s_cselect_b32 s{sCO+s_}, s{sT0}, 0x80000000")
    A(f"s_cselect_b32 s{sCN+s_}, s{sNonce}, 0")
if a.sel:
    A(f"s_min_u32 s{sT0}, s{sN}, 4")
    A(f"s_bfm_b32 s{sAct}, s{sT0}, 0")
    A(f"s_min_u32 s{sT0}, s{sT3}, 8")
    A(f"s_bfm_b32 s{sT0}, s{sT0}, 0")
    A(f"s_and_b32 s{sT0}, s{sT0}, 0xf0")
    A(f"s_or_b32 s{sAct}, s{sAct}, s{sT0}")
def outoff(dst, j):
    A(f"s_and_b32 s{sT0}, s{j}, 1")
    A(f"s_lshl_b32 s{sT0}, s{sT0}, 12")
    A(f"s_lshr_b32 s{dst}, s{j}, 1")
    A(f"s_lshl_b32 s{dst}, s{dst}, 5")
    A(f"s_add_u32 s{dst}, s{dst}, s{sT0}")
    A(f"s_lshl_b32 s{sT0}, s{sW}, 6")
    A(f"s_add_u32 s{dst}, s{dst}, s{sT0}")
outoff(sOA, sI)
outoff(sOB, sT1)
A(f"s_mov_b32 s{sRem}, s{sN}")
A(f"s_min_u32 s{sMc}, s{sN}, 8")
if a.mg2:
    for s_ in range(8): A(f"v_mov_b32 v{vS+4*s_+2}, v{vNEG}")
    A(f"s_mov_b32 s{sHiM}, 0xffff0000")
    A(f"s_mov_b32 s{sChk}, 0")
else:
    A(f"v_mov_b32 v{vCS+4}, v{vNEG}")
    A(f"v_mov_b32 v{vCS+5}, 0")
    for c in range(4): A(f"v_mov_b32 v{vCS+c}, 0")
L("L_round")
if SPEC:
    base_vm = list(vm)
    w0 = NW("V1")
    vm.extend(sum([[g]*4 for g in SPEC.get("R0", [])], []))
    w1 = NW("V3")
    vm.extend(sum([[g]*4 for g in SPEC.get("R1", [])], []))
    w2 = NW("V5")
    vm[:] = base_vm
else:
    w2 = 8 if a.sched else 8+a.tpf+a.fast
    w0 = (12 if a.sched else 20)+a.tpf+2*a.fast
    w1 = 12+a.tpf+a.fast
A(f"s_add_u32 s{sT0}, s{sP}, 1")
A(f"s_cmp_eq_u32 s{sT0}, s{sR}")
A("s_cbranch_scc1 L_w0")
A(f"s_cmp_eq_u32 s{sP}, 0")
A("s_cbranch_scc1 L_w20")
A(f"s_cmp_eq_u32 s{sP}, 1")
A("s_cbranch_scc1 L_w12")
A(f"s_waitcnt vmcnt({w2})")
A("s_branch L_wd")
L("L_w20")
A(f"s_waitcnt vmcnt({w0})")
A("s_branch L_wd")
L("L_w12")
A(f"s_waitcnt vmcnt({w1})")
A("s_branch L_wd")
L("L_w0")
A("s_waitcnt vmcnt(0)")
if a.fin:
    A(f"s_mov_b32 s{sNvC}, s{sNv}")
    if a.fast:
        A(f"s_or_b32 s{sT0}, s{sNonce}, s{sTag}")
        A(f"v_cmp_eq_u32 vcc, s{sT0}, v{vTg}")
        A(f"s_bfm_b64 {sp(sM)}, s{sN}, 0")
        A("s_nop 0")
        A(f"s_cmp_eq_u64 vcc, {sp(sM)}")
        A(f"s_cselect_b32 s{sFast}, 1, 0")
L("L_wd")
A("s_barrier")
TS("lastbar")
def rd(w_):
    b = vRB + 16*w_
    for qt in range(2):
        A(f"ds_read_b128 {vr(b+4*qt)}, v{vPC} offset:{w_*8192+qt*1024}")
    for mt in range(2):
        for hh in range(2):
            A(f"ds_read_b64_tr_b16 {vr(b+8+4*mt+2*hh, 2)}, v{vTrC+(w_>>1)*2+mt} offset:{(w_&1)*WREG+hh*4096}")
def mm(w_):
    b = vRB + 16*w_
    for mt in range(2):
        for qt in range(2):
            A(f"v_mfma_f32_16x16x32_bf16 {vr(O(mt,qt))}, {vr(b+8+4*mt)}, {vr(b+4*qt)}, {vr(O(mt,qt))}")
rd(0); rd(1)
if SPEC:
    if SPEC.get("R0"):
        A(f"s_cmp_lg_u32 s{sP}, 0")
        A("s_cbranch_scc1 L_nov5")
        issue("R0")
        L("L_nov5")
    A(f"s_cmp_lg_u32 s{sP}, 1")
    A("s_cbranch_scc1 L_nov7")
    issue("R1")
    L("L_nov7")
else:
    if a.sched:
        A(f"s_cmp_lg_u32 s{sP}, 0")
        A("s_cbranch_scc1 L_nov5")
        vdma(5); vdma(6)
        L("L_nov5")
    A(f"s_cmp_lg_u32 s{sP}, 1")
    A("s_cbranch_scc1 L_nov7")
    vdma(7)
    L("L_nov7")
if a.fin:
    A(f"s_cmp_gt_u32 s{sNvC}, 2")
    A("s_cbranch_scc1 L_long")
    A("s_waitcnt lgkmcnt(6)")
    mm(0)
    A("s_waitcnt lgkmcnt(0)")
    mm(1)
    A("s_nop 2")
    A("s_branch L_exit")
    L("L_long")
A("s_waitcnt lgkmcnt(6)")
rd(2); mm(0)
A("s_waitcnt lgkmcnt(6)")
rd(3); mm(1)
A(f"s_add_u32 s{sA}, s{sA}, 8192")
A(f"s_cmp_ge_u32 s{sA}, {WREG}")
A(f"s_cselect_b32 s{sT0}, {WREG}, 0")
A(f"s_sub_u32 s{sA}, s{sA}, s{sT0}")
A("s_waitcnt lgkmcnt(6)")
mm(2)
for k in range(4): A(f"v_add_u32 v{vTrC+k}, s{sA}, v{vTr+k}")
A(f"v_add_u32 v{vPC}, 2048, v{vPC}")
A("s_waitcnt lgkmcnt(0)")
mm(3)
A(f"s_add_u32 s{sP}, s{sP}, 1")
A(f"s_cmp_lt_u32 s{sP}, s{sR}")
A("s_cbranch_scc1 L_round")
if a.fin: L("L_exit")
TS("pv")
def publish(flags):
    for mt in range(2):
        for qt in range(2):
            o = O(mt,qt); g = vGr+(mt*2+qt)*4
            if a.fin:
                sel = "op_sel_hi:[1,0]" if qt == 0 else "op_sel:[0,1] op_sel_hi:[1,1]"
                A(f"v_pk_mul_f32 {vr(o,2)}, {vr(o,2)}, {vr(vRl,2)} {sel}")
                A(f"v_pk_mul_f32 {vr(o+2,2)}, {vr(o+2,2)}, {vr(vRl,2)} {sel}")
            else:
                for r in range(4): A(f"v_mul_f32 v{o+r}, v{o+r}, v{vRl+qt}")
            A(f"v_cvt_pk_bf16_f32 v{g}, v{o}, v{o+1}")
            A(f"v_cvt_pk_bf16_f32 v{g+1}, v{o+2}, v{o+3}")
            A(f"v_bitop3_b32 v{g+3}, v{g}, v{g+1}, v{vLseN+qt} bitop3:0x96")
            A(f"buffer_store_dwordx4 {vr(g)}, v{vL16}, {sr(srdW)}, s{sRec} offen offset:{(mt*2+qt)*1024}{flags}")
if a.fast and a.fin:
    A(f"s_cmp_lg_u32 s{sFast}, 0")
    A("s_cbranch_scc0 L_pubslow")
    A("s_nop 1")
    publish((" " + a.fst) if a.fst else "")
    L("L_pubdone")
elif a.fast:
    A(f"s_or_b32 s{sT0}, s{sNonce}, s{sTag}")
    A(f"v_cmp_eq_u32 vcc, s{sT0}, v{vTg}")
    A(f"s_bfm_b64 {sp(sM)}, s{sN}, 0")
    A("s_nop 0")
    A(f"s_cmp_eq_u64 vcc, {sp(sM)}")
    A("s_cbranch_scc0 L_pubslow")
    publish((" " + a.fst) if a.fst else "")
    L("L_pubdone")
else:
    A("s_nop 4")
    publish(ST)
TS("stored")
vAcc = vCS; vMx = vCS+4; vW = vCS+5; vTmp = vCS+6
vSrc = vS if a.mg2 else vRB
A(f"s_cmp_eq_u32 s{sN}, 1")
A("s_cbranch_scc1 L_direct")
A(f"s_cmp_ge_u32 s{sI}, 4")
A("s_cbranch_scc1 L_fin")
A(f"s_mov_b32 s{sT2}, {a.spin}")
L("L_poll")
def ladder(lo, hi, bound, tgt, body):
    for s_ in range(lo, hi):
        if a.lad and s_ not in (0, 1):
            A(f"s_cmp_le_u32 s{bound}, {s_}")
            A(f"s_cbranch_scc1 {tgt}")
        body(s_)
def ld_body(s_): A(f"buffer_load_dwordx4 {vr(vSrc+4*s_)}, v{vL16}, {sr(srdW)}, s{sCO+s_} offen{LD}")
ladder(0, 4, sN, "L_i4", ld_body)
L("L_i4")
ladder(4, 8, sHiN, "L_i8", ld_body)
L("L_i8")
if a.ts in (1, 2, 4):
    A(f"s_cmp_eq_u32 s{sT2}, {a.spin}")
    A("s_cbranch_scc0 L_ts1")
    TS("iss1")
    L("L_ts1")
A(f"v_mov_b32 v{vTmp+2}, 0")
A("s_waitcnt vmcnt(0)")
if a.ts in (1, 2, 4):
    A(f"s_cmp_eq_u32 s{sT2}, {a.spin}")
    A("s_cbranch_scc0 L_ts2")
    TS("ld1")
    L("L_ts2")
if not a.sel:
    def ck_body(s_):
        g = vSrc+4*s_
        A(f"v_bitop3_b32 v{vTmp}, v{g}, v{g+1}, v{g+2} bitop3:0x96")
        A(f"v_bitop3_b32 v{vTmp}, v{vTmp}, v{g+3}, s{sCN+s_} bitop3:0x96")
        A(f"v_or_b32 v{vTmp+2}, v{vTmp+2}, v{vTmp}")
    ladder(0, 4, sN, "L_c4", ck_body)
    L("L_c4")
    ladder(4, 8, sHiN, "L_c8", ck_body)
    L("L_c8")
    A(f"v_cmp_eq_u32 vcc, 0, v{vTmp+2}")
    A(f"s_sub_u32 s{sT2}, s{sT2}, 1")
    A("s_cbranch_scc1 L_ok")
    A("s_cmp_eq_u64 vcc, exec")
    if a.sleep:
        A("s_cbranch_scc1 L_ok")
        A(f"s_sleep {a.sleep}")
        A("s_branch L_poll")
    else:
        A("s_cbranch_scc0 L_poll")
else:
    vXs = vRB + 48
    def ck_body(s_):
        g = vSrc+4*s_
        A(f"v_bitop3_b32 v{vTmp}, v{g}, v{g+1}, v{g+2} bitop3:0x96")
        A(f"v_bitop3_b32 v{vXs+s_}, v{vTmp}, v{g+3}, s{sCN+s_} bitop3:0x96")
        A(f"v_or_b32 v{vTmp+2}, v{vTmp+2}, v{vXs+s_}")
    ladder(0, 4, sN, "L_c4", ck_body)
    L("L_c4")
    ladder(4, 8, sHiN, "L_c8", ck_body)
    L("L_c8")
    A(f"v_cmp_eq_u32 vcc, 0, v{vTmp+2}")
    A(f"s_mov_b32 s{sMiss}, 0")
    A("s_cmp_eq_u64 vcc, exec")
    A("s_cbranch_scc1 L_ok")
    for s_ in range(8):
        A(f"v_cmp_ne_u32 vcc, 0, v{vXs+s_}")
        A("s_cmp_lg_u64 vcc, 0")
        A(f"s_cselect_b32 s{sT0}, {1<<s_}, 0")
        A(f"s_or_b32 s{sMiss}, s{sMiss}, s{sT0}")
    A(f"s_and_b32 s{sMiss}, s{sMiss}, s{sAct}")
    if a.sel == 1:
        L("L_sel")
        for s_ in range(8):
            A(f"s_bitcmp1_b32 s{sMiss}, {s_}")
            A(f"s_cbranch_scc0 L_sl{s_}")
            A(f"buffer_load_dwordx4 {vr(vSrc+4*s_)}, v{vL16}, {sr(srdW)}, s{sCO+s_} offen{LD}")
            L(f"L_sl{s_}")
        A(f"s_sub_u32 s{sT2}, s{sT2}, 1")
        A("s_cbranch_scc1 L_ok")
        A("s_waitcnt vmcnt(0)")
        for s_ in range(8):
            g = vSrc+4*s_
            A(f"s_bitcmp1_b32 s{sMiss}, {s_}")
            A(f"s_cbranch_scc0 L_sc{s_}")
            A(f"v_bitop3_b32 v{vTmp}, v{g}, v{g+1}, v{g+2} bitop3:0x96")
            A(f"v_bitop3_b32 v{vTmp}, v{vTmp}, v{g+3}, s{sCN+s_} bitop3:0x96")
            A(f"v_cmp_ne_u32 vcc, 0, v{vTmp}")
            A("s_cmp_lg_u64 vcc, 0")
            A(f"s_cbranch_scc1 L_sc{s_}")
            A(f"s_bitset0_b32 s{sMiss}, {s_}")
            L(f"L_sc{s_}")
        A(f"s_cmp_lg_u32 s{sMiss}, 0")
        A("s_cbranch_scc1 L_sel")
    else:
        for s_ in range(8):
            g = vSrc+4*s_
            A(f"s_bitcmp1_b32 s{sMiss}, {s_}")
            A(f"s_cbranch_scc0 L_sn{s_}")
            L(f"L_sp{s_}")
            if a.sleep: A(f"s_sleep {a.sleep}")
            A(f"buffer_load_dwordx4 {vr(g)}, v{vL16}, {sr(srdW)}, s{sCO+s_} offen{LD}")
            A(f"s_sub_u32 s{sT2}, s{sT2}, 1")
            A("s_cbranch_scc1 L_ok")
            A("s_waitcnt vmcnt(0)")
            A(f"v_bitop3_b32 v{vTmp}, v{g}, v{g+1}, v{g+2} bitop3:0x96")
            A(f"v_bitop3_b32 v{vTmp}, v{vTmp}, v{g+3}, s{sCN+s_} bitop3:0x96")
            A(f"v_cmp_ne_u32 vcc, 0, v{vTmp}")
            A("s_cmp_lg_u64 vcc, 0")
            A(f"s_cbranch_scc1 L_sp{s_}")
            L(f"L_sn{s_}")
L("L_ok")
TS("polled")
if a.ts in (1, 2):
    ts_slots.append("npoll")
    A(f"s_sub_u32 s100, {a.spin}, s{sT2}")
    A(f"v_writelane_b32 v63, s100, {len(ts_slots)-1}")
if not a.mg2:
    L("L_merge")
    A(f"v_mov_b32 v{vTmp}, v{vMx}")
    for s in range(8):
        if s:
            A(f"s_cmp_le_u32 s{sMc}, {s}")
            A("s_cbranch_scc1 L_mx")
        A(f"v_max_f32 v{vTmp}, v{vTmp}, v{vSrc+4*s+2}")
    L("L_mx")
    A(f"v_sub_f32 v{vTmp+1}, v{vMx}, v{vTmp}")
    A(f"v_exp_f32 v{vTmp+1}, v{vTmp+1}")
    A(f"v_mov_b32 v{vMx}, v{vTmp}")
    A(f"v_mul_f32 v{vW}, v{vW}, v{vTmp+1}")
    for c in range(4): A(f"v_mul_f32 v{vAcc+c}, v{vAcc+c}, v{vTmp+1}")
    for s in range(8):
        if s:
            A(f"s_cmp_le_u32 s{sMc}, {s}")
            A("s_cbranch_scc1 L_mg")
        g = vSrc+4*s
        A(f"v_sub_f32 v{g+2}, v{g+2}, v{vMx}")
        A(f"v_exp_f32 v{g+2}, v{g+2}")
        A(f"v_lshlrev_b32 v{vTmp}, 16, v{g}")
        A(f"v_and_b32 v{g}, 0xffff0000, v{g}")
        A(f"v_lshlrev_b32 v{vTmp+1}, 16, v{g+1}")
        A(f"v_and_b32 v{g+1}, 0xffff0000, v{g+1}")
        A(f"v_add_f32 v{vW}, v{vW}, v{g+2}")
        A(f"v_fma_f32 v{vAcc}, v{g+2}, v{vTmp}, v{vAcc}")
        A(f"v_fma_f32 v{vAcc+1}, v{g+2}, v{g}, v{vAcc+1}")
        A(f"v_fma_f32 v{vAcc+2}, v{g+2}, v{vTmp+1}, v{vAcc+2}")
        A(f"v_fma_f32 v{vAcc+3}, v{g+2}, v{g+1}, v{vAcc+3}")
    L("L_mg")
    A(f"s_cmp_gt_u32 s{sRem}, 8")
    A("s_cbranch_scc1 L_more")
    A(f"v_rcp_f32 v{vW}, v{vW}")
    A(f"s_cmp_lg_u32 s{sDual}, 0")
    for c in range(4): A(f"v_mul_f32 v{vAcc+c}, v{vAcc+c}, v{vW}")
    A(f"v_cvt_pk_bf16_f32 v{vAcc}, v{vAcc}, v{vAcc+1}")
    A(f"v_cvt_pk_bf16_f32 v{vAcc+1}, v{vAcc+2}, v{vAcc+3}")
    A(f"buffer_store_dwordx2 {vr(vAcc,2)}, v{vOo}, {sr(srdO)}, s{sOA} offen{OST}")
    A("s_cbranch_scc0 L_fin")
    for s in range(3):
        for c in range(4): A(f"v_mov_b32 v{vSrc+4*s+c}, v{vSrc+16+4*s+c}")
    A(f"s_mov_b32 s{sDual}, 0")
    A(f"s_mov_b32 s{sOA}, s{sOB}")
    A(f"v_mov_b32 v{vMx}, v{vNEG}")
    A(f"v_mov_b32 v{vW}, 0")
    for c in range(4): A(f"v_mov_b32 v{vAcc+c}, 0")
    A("s_branch L_merge")
else:
    def src_weight(s_):
        g = vSrc+4*s_
        A(f"v_sub_f32 v{g+2}, v{g+2}, v{vMx}")
        A(f"v_exp_f32 v{g+2}, v{g+2}")
        A(f"v_lshlrev_b32 v{vTmp}, 16, v{g}")
        A(f"v_and_b32 v{vTmp+1}, s{sHiM}, v{g}")
        A(f"v_lshlrev_b32 v{vTmp+2}, 16, v{g+1}")
        A(f"v_and_b32 v{vTmp+3}, s{sHiM}, v{g+1}")
    def src_fma(s_):
        g = vSrc+4*s_
        src_weight(s_)
        A(f"v_add_f32 v{vW}, v{vW}, v{g+2}")
        A(f"v_pk_fma_f32 {vr(vAcc,2)}, {vr(vTmp,2)}, {vr(g+2,2)}, {vr(vAcc,2)} op_sel_hi:[1,0,1]")
        A(f"v_pk_fma_f32 {vr(vAcc+2,2)}, {vr(vTmp+2,2)}, {vr(g+2,2)}, {vr(vAcc+2,2)} op_sel_hi:[1,0,1]")
    A(f"s_cmp_lg_u32 s{sChk}, 0")
    A("s_cbranch_scc1 L_fix")
    L("L_merge")
    A(f"v_max3_f32 v{vMx}, v{vSrc+2}, v{vSrc+6}, v{vSrc+10}")
    A(f"s_cmp_lg_u32 s{sDual}, 0")
    A(f"v_max_f32 v{vMx}, v{vMx}, v{vSrc+14}")
    A("s_cbranch_scc1 L_mx")
    A(f"v_max3_f32 v{vMx}, v{vMx}, v{vSrc+18}, v{vSrc+22}")
    A(f"v_max3_f32 v{vMx}, v{vMx}, v{vSrc+26}, v{vSrc+30}")
    L("L_mx")
    src_weight(0)
    A(f"v_mov_b32 v{vW}, v{vSrc+2}")
    A(f"v_pk_mul_f32 {vr(vAcc,2)}, {vr(vTmp,2)}, {vr(vSrc+2,2)} op_sel_hi:[1,0]")
    A(f"v_pk_mul_f32 {vr(vAcc+2,2)}, {vr(vTmp+2,2)}, {vr(vSrc+2,2)} op_sel_hi:[1,0]")
    L("L_acc1")
    for s_ in range(1, 8):
        A(f"s_cmp_le_u32 s{sMc}, {s_}")
        A("s_cbranch_scc1 L_mg")
        src_fma(s_)
    L("L_mg")
    A(f"s_cmp_gt_u32 s{sRem}, 8")
    A("s_cbranch_scc1 L_more")
    A(f"v_rcp_f32 v{vW}, v{vW}")
    A(f"s_cmp_lg_u32 s{sDual}, 0")
    A(f"v_pk_mul_f32 {vr(vAcc,2)}, {vr(vAcc,2)}, {vr(vMx,2)} op_sel:[0,1] op_sel_hi:[1,1]")
    A(f"v_pk_mul_f32 {vr(vAcc+2,2)}, {vr(vAcc+2,2)}, {vr(vMx,2)} op_sel:[0,1] op_sel_hi:[1,1]")
    A(f"v_cvt_pk_bf16_f32 v{vAcc}, v{vAcc}, v{vAcc+1}")
    A(f"v_cvt_pk_bf16_f32 v{vAcc+1}, v{vAcc+2}, v{vAcc+3}")
    A(f"buffer_store_dwordx2 {vr(vAcc,2)}, v{vOo}, {sr(srdO)}, s{sOA} offen{OST}")
    A("s_cbranch_scc0 L_fin")
    for s_ in range(3):
        for c in range(4): A(f"v_mov_b32 v{vSrc+4*s_+c}, v{vSrc+16+4*s_+c}")
    A(f"s_mov_b32 s{sOA}, s{sOB}")
    A(f"s_mov_b32 s{sDual}, 0")
    for s_ in range(4, 8): A(f"v_mov_b32 v{vSrc+4*s_+2}, v{vNEG}")
    A("s_branch L_merge")
    L("L_fix")
    for s_ in range(1, 8):
        A(f"s_cmp_gt_u32 s{sMc}, {s_}")
        A(f"s_cbranch_scc1 L_fx{s_}")
        A(f"v_mov_b32 v{vSrc+4*s_+2}, v{vNEG}")
        L(f"L_fx{s_}")
    A(f"v_max3_f32 v{vTmp}, v{vMx}, v{vSrc+2}, v{vSrc+6}")
    A(f"v_max3_f32 v{vTmp}, v{vTmp}, v{vSrc+10}, v{vSrc+14}")
    A(f"v_max3_f32 v{vTmp}, v{vTmp}, v{vSrc+18}, v{vSrc+22}")
    A(f"v_max3_f32 v{vTmp}, v{vTmp}, v{vSrc+26}, v{vSrc+30}")
    A(f"v_sub_f32 v{vTmp+1}, v{vMx}, v{vTmp}")
    A(f"v_exp_f32 v{vTmp+1}, v{vTmp+1}")
    A(f"v_mov_b32 v{vMx}, v{vTmp}")
    A(f"v_mul_f32 v{vW}, v{vW}, v{vTmp+1}")
    for c in range(4): A(f"v_mul_f32 v{vAcc+c}, v{vAcc+c}, v{vTmp+1}")
    src_fma(0)
    A("s_branch L_acc1")
if a.fast:
    L("L_pubslow")
    if a.fin: A("s_nop 1")
    publish(ST)
    A("s_branch L_pubdone")
L("L_more")
A(f"s_sub_u32 s{sRem}, s{sRem}, 8")
A(f"s_min_u32 s{sMc}, s{sRem}, 8")
A(f"s_mov_b32 s{sHiN}, s{sRem}")
if a.mg2: A(f"s_mov_b32 s{sChk}, 1")
if a.sel:
    A(f"s_bfm_b32 s{sAct}, s{sMc}, 0")
for s in range(8):
    A(f"s_add_u32 s{sT0}, s{sCB}, {(8+s)*REC}")
    A(f"s_cmp_gt_u32 s{sRem}, {s}")
    A(f"s_cselect_b32 s{sCO+s}, s{sT0}, 0x80000000")
    A(f"s_cselect_b32 s{sCN+s}, s{sNonce}, 0")
A(f"s_add_u32 s{sCB}, s{sCB}, {8*REC}")
A(f"s_mov_b32 s{sT2}, {a.spin}")
A("s_branch L_poll")
L("L_direct")
for mt in range(2):
    for qt in range(2):
        g = vGr+(mt*2+qt)*4
        A(f"s_lshl_b32 s{sT0}, s{sW}, 6")
        A(f"s_add_u32 s{sT0}, s{sT0}, {qt*4096+mt*32}")
        A(f"buffer_store_dwordx2 {vr(g,2)}, v{vOo}, {sr(srdO)}, s{sT0} offen{OST}")
L("L_fin")
if a.ts:
    TS("end")
    A("s_waitcnt vmcnt(0) lgkmcnt(0)")
    if a.ts == 4:
        order = ["lastbar", "pv", "stored", "iss1", "ld1", "polled", "end"]
        d = dict(ts4)
        for k, nm in enumerate(order):
            A(f"v_writelane_b32 v63, s{d[nm]}, {k+1}")
    A(f"s_lshl_b32 s{sT0}, s2, 2")
    A(f"s_add_u32 s{sT0}, s{sT0}, s{sW}")
    A(f"s_lshl_b32 s{sT0}, s{sT0}, 7")
    A(f"s_add_u32 s{sT0}, s{sT0}, {TS_OFF}")
    A(f"v_lshlrev_b32 v{vT}, 2, v{vLane}")
    A(f"v_cmp_gt_u32 vcc, 32, v{vLane}")
    A(f"s_and_saveexec_b64 {sp(sM)}, vcc")
    A(f"buffer_store_dword v63, v{vT}, {sr(srdW)}, s{sT0} offen")
L("L_end")
A("s_endpgm")

hdr = open("standalone__paged_block_table_kv_pagedattention__sampling.s.ref").read().split("\n")
comments = [l for l in hdr if l.startswith(";") and "@launch" not in l and not l.startswith("; Override") and not l.startswith("; grid=")]
txt = "\n".join(comments) + "\n"
txt += f"; @launch grid=(256,1,1) block=(256,1,1) lds={LDS_BYTES}\n"
txt += f""".amdgcn_target "amdgcn-amd-amdhsa--gfx950"
.text
.globl {KN}
.p2align 8
.type {KN},@function
"""
txt += "\n".join(out) + "\n"
txt += f""".section .rodata,"a"
.p2align 6
.amdhsa_kernel {KN}
  .amdhsa_next_free_vgpr {256+NAGPR}
  .amdhsa_next_free_sgpr 102
  .amdhsa_accum_offset 256
  .amdhsa_group_segment_fixed_size 0
  .amdhsa_kernarg_size 64
  .amdhsa_user_sgpr_count 2
  .amdhsa_user_sgpr_kernarg_segment_ptr 1
  .amdhsa_system_sgpr_workgroup_id_x 1
.end_amdhsa_kernel
"""
print(txt)
if a.ts:
    sys.stderr.write("TS: " + ",".join(ts_slots) + "\n")
```

```python
import argparse, sys
ap = argparse.ArgumentParser()
ap.add_argument("--ts", type=int, default=0, help="timestamps")
ap.add_argument("--nt", type=str, default="nt")
ap.add_argument("--st", type=str, default="sc1", help="partial store flags")
ap.add_argument("--ld", type=str, default="sc1", help="partial load flags")
ap.add_argument("--ost", type=str, default="", help="out store flags")
ap.add_argument("--rot", type=int, default=0)
ap.add_argument("--cpf", type=int, default=8, help="code prefetch KB")
ap.add_argument("--sleep", type=int, default=0)
ap.add_argument("--rpf", type=int, default=1, help="prefetch own record lines at start")
ap.add_argument("--rst", type=str, default="sc1")
ap.add_argument("--perm", type=str, default="")
ap.add_argument("--lad", type=int, default=1, help="ladder instead of dummy loads in the poll")
ap.add_argument("--fast", type=int, default=1, help="plain stores when the whole group sits on this XCD")
ap.add_argument("--thr", type=str, default="", help="XA,XB,tA,tB,aslow : throttle levels; t in 1/64 of reference work")
ap.add_argument("--fst", type=str, default="", help="fast-path store flags")
ap.add_argument("--sel", type=int, default=0, help="selective re-poll of missing sources")
ap.add_argument("--early", type=int, default=1, help="issue V5,V6 before the softmax")
ap.add_argument("--sched", type=int, default=0, help="1: reversed K order, later V issue")
ap.add_argument("--spec", type=str, default="", help="issue schedule, e.g. P:K7,K6,K5,K4,K3;t0:K2;...")
ap.add_argument("--cpf2", type=int, default=1)
ap.add_argument("--scl", type=int, default=1, help="context_lens through the scalar cache")
ap.add_argument("--mg2", type=int, default=0, help="leaner merge")
ap.add_argument("--fin", type=int, default=0, help="short final round, fast check before the last barrier, packed multiplies")
ap.add_argument("--tpf", type=int, default=1, help="re-prefetch tail code")
ap.add_argument("--spin", type=int, default=0x40000)
a = ap.parse_args()

SPEC = None
if a.spec:
    a.sched = 1
    SPEC = {}
    for part in a.spec.split(";"):
        k, v = part.split(":")
        SPEC[k] = v.split(",") if v else []
vm = []
def VM(tag, n=1):
    for _ in range(n): vm.append(tag)
def NW(tag):
    idx = max(i for i, t in enumerate(vm) if t == tag)
    return len(vm) - 1 - idx
def issue(point):
    for g in SPEC.get(point, []):
        if g[0] == "K": kdma(int(g[1]))
        else: vdma(int(g[1]))
KN = "standalone__paged_block_table_kv_pagedattention__sampling_kernel"
out = []
def A(s): out.append("    " + s)
def L(s): out.append(s + ":")
def C(s): out.append("    ; " + s)
NT = (" " + a.nt) if a.nt else ""
ST = (" " + a.st) if a.st else ""
LD = (" " + a.ld) if a.ld else ""
OST = (" " + a.ost) if a.ost else ""
RST = (" " + a.rst) if a.rst else ""

KV_BYTES = 1028*16*8*128*2
REC = 16384
XT_OFF = 6 << 20
TS_OFF = 8 << 20
WREG = 28672
PBASE = 4*WREG
XMAX = PBASE + 32768
XL = XMAX + 2048
XN = XL + 2048
QBASE = XN + 64
LDS_BYTES = QBASE + 8192

sW, sH, sSlot, sB, sN, sStart, sI, sCl, sCnt, sLim = 20, 21, 22, 23, 24, 25, 26, 27, 28, 29
sT0, sT1, sT2, sT3 = 30, 31, 32, 33
sUni, sC, sR, sP, sLdsW, sA = 34, 35, 36, 37, 38, 39
sE = 40
sSO = 48
srdK, srdV, srdQ, srdX, srdO, srdD, srdW = 56, 60, 64, 68, 72, 76, 80
sM = 84
sGrp, sNonce, sRec, sJ = 92, 93, 94, 95
sCO = 4
sCN = 12
sCB, sDual, sOA, sOB, sRem, sMc, sHiN = 40, 41, 42, 43, 44, 45, 46
sThr = 0
sNv, sNvC, sFast = 88, 89, 90
sNb, sNr = 70, 71
sMiss, sAct = 47, 1
sHiM, sChk = 47, 1
sXTg, sTag = 95, 3
vLane, vG, vN = 1, 2, 3
vKoff = 4; vVoff = 8; vLds = 12; vTok = 16; vNEG = 20
vT = 21
vMc = 30
vM = 32
vTr = 36
vPa = 40; vXw = 41; vXr = 42; vL16 = 43
vTrC = 44
vPC = 48
vRl = 50
vLsq = 52
vNon = 60
vS = 64
vO = 128
vRB = 144
vGr = 208
vLseN = 224
vTg = 227
vOo = 226
vCS = 228
def S(i, qt, r=0): return vS + i*8 + qt*4 + r
def O(mt, qt): return vO + (mt*2+qt)*4
aQ = 0; aK = 32; aOne = 64
NAGPR = 68
def vr(b, n=4): return f"v[{b}:{b+n-1}]"
def ar(b, n=4): return f"a[{b}:{b+n-1}]"
def sr(b, n=4): return f"s[{b}:{b+n-1}]"
def sp(b): return f"s[{b}:{b+1}]"

ts_slots = []
ts4 = []
def TS(name):
    if not a.ts: return
    if a.ts == 4:
        names = {"start": None, "pv": 48, "stored": 50, "iss1": 52, "ld1": 54, "polled": 64, "end": 66, "lastbar": 68}
        if name in names and names[name] is not None:
            A(f"s_memrealtime s[{names[name]}:{names[name]+1}]")
            ts4.append((name, names[name]))
        return
    if a.ts == 3 and name not in ("start", "k0i3", "pv", "end"): return
    idx = len(ts_slots)
    ts_slots.append(name)
    A("s_memrealtime s[100:101]")
    A("s_waitcnt lgkmcnt(0)")
    A(f"v_writelane_b32 v63, s100, {idx}")

def TS2(name):
    if a.ts == 2: TS(name)
if SPEC:
    KORD = [int(g[1]) for pt in ["P"] + [f"t{t}" for t in range(8)] for g in SPEC.get(pt, []) if g[0] == "K"]
    assert sorted(KORD) == list(range(8))
else:
    KORD = list(range(7, -1, -1)) if a.sched else list(range(8))
def kslot(j): return KORD.index(j) % 7
def vslot(j): return (j + 1) % 7
THR = [int(x) for x in a.thr.split(",")] if a.thr else None
thr_n = [0]
def throttle():
    if not THR: return
    k = thr_n[0]; thr_n[0] += 1
    A(f"s_bitcmp1_b32 s{sThr}, 0")
    A(f"s_cbranch_scc0 L_ta{k}")
    A(f"s_waitcnt vmcnt({THR[0]})")
    L(f"L_ta{k}")
    A(f"s_bitcmp1_b32 s{sThr}, 1")
    A(f"s_cbranch_scc0 L_tb{k}")
    A(f"s_waitcnt vmcnt({THR[1]})")
    L(f"L_tb{k}")
def kdma(j):
    if j >= 2: throttle()
    A(f"s_add_u32 m0, s{sLdsW}, {kslot(j)*4096}")
    A(f"s_lshl_b32 s{sSO+j}, s{sE+j}, 15")
    A(f"s_cmp_gt_u32 s{sCnt}, {j}")
    A(f"s_cselect_b32 s{sSO+j}, s{sSO+j}, 0x80000000")
    for jj in range(4):
        A(f"buffer_load_dwordx4 v{vKoff+jj}, {sr(srdK)}, s{sSO+j} offen offset:{jj*1024}{NT} lds")
    VM(f"K{j}", 4)
def vdma(j):
    throttle()
    A(f"s_add_u32 m0, s{sLdsW}, {vslot(j)*4096}")
    A("s_nop 0")
    for jj in range(4):
        A(f"buffer_load_dwordx4 v{vVoff+jj}, {sr(srdV)}, s{sSO+j} offen offset:{jj*1024}{NT} lds")
    VM(f"V{j}", 4)

L(KN)
vMt = vT+1
vCl = vT+2
vP1 = vT+3
vClm = vT+4
srdBT = sM
vQo = vT+7
def head_of_wg():
    if a.perm:
        A(f"s_and_b32 s{sH}, s2, 7")
        A(f"s_lshl_b32 s{sH}, s{sH}, 2")
        A(f"s_lshr_b32 s{sH}, {a.perm}, s{sH}")
        A(f"s_and_b32 s{sH}, s{sH}, 7")
    elif a.rot:
        A(f"s_add_u32 s{sH}, s2, {a.rot}")
        A(f"s_and_b32 s{sH}, s{sH}, 7")
    else:
        A(f"s_and_b32 s{sH}, s2, 7")
    A(f"s_lshr_b32 s{sSlot}, s2, 3")
def m_table():
    A(f"v_add_u32 v{vT}, 1, v{vLane}")
    A(f"v_cvt_f32_u32 v{vT}, v{vT}")
    A(f"v_rcp_f32 v{vT}, v{vT}")
    A(f"v_lshrrev_b32 v{vG}, 4, v{vLane}")
    A(f"v_mul_f32 v{vT}, 0x47800000, v{vT}")
    A(f"v_cvt_u32_f32 v{vT}, v{vT}")
    A(f"v_add_u32 v{vMt}, 1, v{vT}")
def k_voff():
    for j in range(4):
        A(f"v_add_u32 v{vT+6}, {4*j}, v{vG}")
        A(f"v_xor_b32 v{vT+7}, v{vT+6}, v{vN}")
        A(f"v_lshlrev_b32 v{vT+8}, 11, v{vT+6}")
        if j: A(f"v_subrev_u32 v{vT+8}, {1024*j}, v{vT+8}")
        A(f"v_lshl_add_u32 v{vKoff+j}, v{vT+7}, 4, v{vT+8}")
def v_voff(t0, t1, t2):
    for j in range(4):
        A(f"v_add_u32 v{t0}, {4*j}, v{vG}")
        A(f"v_lshlrev_b32 v{t2}, 11, v{t0}")
        if j: A(f"v_subrev_u32 v{t2}, {1024*j}, v{t2}")
        A(f"v_and_b32 v{t0}, 7, v{t0}")
        A(f"v_lshlrev_b32 v{t0}, 1, v{t0}")
        A(f"v_xor_b32 v{t1}, v{t0}, v{vN}")
        A(f"v_lshl_add_u32 v{vVoff+j}, v{t1}, 4, v{t2}")
def q_voff():
    A(f"s_lshl_b32 s{sT1}, s{sW}, 3")
    for jj in range(2):
        A(f"v_add_u32 v{vT+6}, s{sT1}, v{vG}")
        if jj: A(f"v_add_u32 v{vT+6}, 4, v{vT+6}")
        A(f"v_and_b32 v{vT}, 15, v{vT+6}")
        A(f"v_xor_b32 v{vT}, v{vT}, v{vN}")
        A(f"v_lshlrev_b32 v{vT+6}, 8, v{vT+6}")
        if jj: A(f"v_subrev_u32 v{vT+6}, 1024, v{vT+6}")
        A(f"v_lshl_add_u32 v{vQo+jj}, v{vT}, 4, v{vT+6}")
def lds_consts(t0, t1):
    A(f"v_lshlrev_b32 v{t0}, 8, v{vN}")
    A(f"v_add_u32 v{t0}, s{sLdsW}, v{t0}")
    for s in range(4):
        A(f"v_add_u32 v{t1}, {4*s}, v{vG}")
        A(f"v_xor_b32 v{t1}, v{t1}, v{vN}")
        A(f"v_lshl_add_u32 v{vLds+s}, v{t1}, 4, v{t0}")
    for r in range(4):
        A(f"v_lshl_add_u32 v{vTok+r}, v{vG}, 2, {r}")
    A(f"v_mov_b32 v{vNEG}, 0xf149f2ca")
    A(f"s_mov_b32 s{sC}, 0x3e0293ee")
def srd_kv(reg, lo):
    A(f"s_add_u32 s{reg}, s{lo}, s{sT0}"); A(f"s_addc_u32 s{reg+1}, s{lo+1}, 0"); A(f"s_sub_u32 s{reg+2}, {KV_BYTES}, s{sT0}"); A(f"s_mov_b32 s{reg+3}, 0x20000")
def srd_w():
    A(f"s_mov_b32 s{srdW}, s18"); A(f"s_mov_b32 s{srdW+1}, s19"); A(f"s_mov_b32 s{srdW+2}, 0x10000000"); A(f"s_mov_b32 s{srdW+3}, 0x20000")
if a.ts in (3, 4): A("s_memrealtime s[100:101]")
A("s_cmp_ge_u32 s2, 256")
A("s_cbranch_scc1 L_end")
A("s_load_dwordx16 s[4:19], s[0:1], 0")
if a.cpf:
    A("s_getpc_b64 s[98:99]")
    L("L_pc0")
    if a.cpf2:
        A("v_lshrrev_b32 v62, 6, v0")
        A("v_and_b32 v61, 3, v0")
        A("v_lshl_add_u32 v62, v62, 2, v61")
        A("v_lshlrev_b32 v62, 7, v62")
    else:
        A("v_lshlrev_b32 v62, 7, v0")
        A(f"v_min_u32 v62, L_end-L_pc0, v62")
    A("global_load_dword v58, v62, s[98:99]")
if a.ts:
    A("v_mov_b32 v63, 0")
if a.ts in (3, 4):
    ts_slots.append("start")
else:
    TS("start")
A(f"v_and_b32 v{vLane}, 63, v0")
A(f"v_lshrrev_b32 v{vT}, 6, v0")
A(f"v_min_u32 v{vT+5}, 7, v{vLane}")
A(f"v_readfirstlane_b32 s{sW}, v{vT}")
A(f"v_lshlrev_b32 v{vT+5}, 2, v{vT+5}")
A(f"v_lshlrev_b32 v{vT+6}, 6, v{vLane}")
head_of_wg()
A(f"s_lshl_b32 s{sT0}, s{sH}, 5")
A(f"s_add_u32 s{sT1}, s{sT0}, s{sSlot}")
A(f"s_lshl_b32 s{sRec}, s{sT1}, 14")
A(f"s_lshl_b32 s{sT1}, s{sW}, 12")
A(f"s_add_u32 s{sRec}, s{sRec}, s{sT1}")
A(f"v_add_u32 v{vT+7}, s{sRec}, v{vT+6}")
if a.cpf2:
    A(f"v_lshlrev_b32 v{vT+8}, 5, v{vT+5}")
    A(f"s_lshl_b32 s{sT1}, s{sW}, 10")
    A(f"v_add_u32 v{vT+8}, s{sT1}, v{vT+8}")
TS2("preka")
A("s_waitcnt lgkmcnt(0)")
if a.ts in (3, 4): A("v_writelane_b32 v63, s100, 0")
TS2("ka")
if a.scl:
    A(f"s_load_dwordx8 s[{sE}:{sE+7}], s[12:13], 0")
else:
    A(f"global_load_dword v{vCl}, v{vT+5}, s[12:13]")
if a.cpf2:
    A(f"global_load_dword v59, v{vT+8}, s[10:11]")
else:
    A(f"global_load_dword v59, v{vT+6}, s[10:11]")
if a.rpf == 3:
    A(f"global_load_dword v57, v{vT+7}, s[18:19]")
if a.cpf and a.cpf2 == 2:
    A(f"v_and_b32 v56, 15, v{vLane}")
    A(f"s_lshl_b32 s{sT1}, s{sW}, 4")
    A(f"v_add_u32 v56, s{sT1}, v56")
    A(f"v_lshlrev_b32 v56, 7, v56")
    A(f"v_add_u32 v56, 2048, v56")
    A(f"v_min_u32 v56, L_end-L_pc0, v56")
    A(f"global_load_dword v58, v56, s[98:99]")
A(f"v_and_b32 v{vN}, 15, v{vLane}")
m_table()
k_voff()
A(f"s_mul_i32 s{sLdsW}, s{sW}, {WREG}")
A(f"s_lshl_b32 s{sT0}, s{sH}, 8")
srd_kv(srdK, 6)
srd_kv(srdV, 8)
A(f"s_mov_b32 s{srdBT}, s10"); A(f"s_mov_b32 s{srdBT+1}, s11"); A(f"s_mov_b32 s{srdBT+2}, 4096"); A(f"s_mov_b32 s{srdBT+3}, 0x20000")
q_voff()
TS("karg")
if a.scl:
    A("s_waitcnt lgkmcnt(0)")
    for b in range(8):
        A(f"v_writelane_b32 v{vCl}, s{sE+b}, {b}")
else:
    A(f"s_waitcnt vmcnt({2 if a.rpf == 3 else 1})")
TS2("clw")
A(f"v_add_u32 v{vClm}, -1, v{vCl}")
A(f"v_min_u32 v{vClm}, 0x7ff, v{vClm}")
A(f"v_lshrrev_b32 v{vP1}, 4, v{vClm}")
A("s_nop 0")
for b in range(8):
    A(f"v_readlane_b32 s{sE+b}, v{vP1}, {b}")
vAcc = vT+5; vTt = vT+6
A(f"v_mul_u32_u24 v{vAcc}, s{sE}, v{vMt}")
A(f"v_lshrrev_b32 v{vAcc}, 16, v{vAcc}")
for b in range(1, 8):
    A(f"v_mul_u32_u24 v{vTt}, s{sE+b}, v{vMt}")
    A(f"v_add_u32_sdwa v{vAcc}, v{vAcc}, v{vTt} dst_sel:DWORD dst_unused:UNUSED_PAD src0_sel:DWORD src1_sel:WORD_1")
A(f"v_cmp_ge_u32 vcc, 24, v{vAcc}")
A("s_nop 1")
A(f"s_ff1_i32_b64 s{sT0}, vcc")
if THR: A(f"s_add_u32 s{sA}, s{sT0}, 1")
TS2("cf")
A("s_nop 0")
A(f"v_readlane_b32 s{sT1}, v{vMt}, s{sT0}")
A("s_nop 1")
vNb = vAcc; vInc = vTt
A(f"v_mul_u32_u24 v{vNb}, s{sT1}, v{vP1}")
A(f"v_lshrrev_b32 v{vNb}, 16, v{vNb}")
A(f"v_add_u32 v{vNb}, 1, v{vNb}")
A(f"v_mov_b32 v{vInc}, v{vNb}")
for sh in (1, 2, 4):
    A("s_nop 1")
    A(f"v_add_u32_dpp v{vInc}, v{vInc}, v{vInc} row_shr:{sh} row_mask:0xf bank_mask:0xf bound_ctrl:0")
A(f"v_cmp_lt_u32 vcc, s{sSlot}, v{vInc}")
A("s_nop 1")
A("s_and_b32 vcc_lo, vcc_lo, 0xff")
A("s_cbranch_scc0 L_end")
A(f"s_ff1_i32_b32 s{sB}, vcc_lo")
TS2("bf")
A("s_nop 0")
A(f"v_readlane_b32 s{sN}, v{vNb}, s{sB}")
A(f"v_readlane_b32 s{sStart}, v{vInc}, s{sB}")
A(f"v_readlane_b32 s{sT2}, v{vP1}, s{sB}")
A(f"v_readlane_b32 s{sCl}, v{vClm}, s{sB}")
A(f"v_readlane_b32 s{sUni}, v{vCl}, s{sB}")
A(f"s_sub_u32 s{sT0}, s{sN}, 1")
A(f"v_readlane_b32 s{sT1}, v{vMt}, s{sT0}")
A(f"s_sub_u32 s{sStart}, s{sStart}, s{sN}")
A(f"s_sub_u32 s{sI}, s{sSlot}, s{sStart}")
A(f"s_add_u32 s{sT2}, s{sT2}, 1")
A(f"s_mul_i32 s{sT1}, s{sT1}, s{sT2}")
A(f"s_mul_i32 s{sT3}, s{sT1}, s{sI}")
A(f"s_add_u32 s{sT1}, s{sT1}, s{sT3}")
A(f"s_lshr_b32 s{sT3}, s{sT3}, 16")
A(f"s_lshr_b32 s{sT1}, s{sT1}, 16")
A(f"s_cmp_eq_u32 s{sI}, s{sT0}")
A(f"s_cselect_b32 s{sT1}, s{sT2}, s{sT1}")
A(f"s_sub_u32 s{sT1}, s{sT1}, s{sT3}")
if THR:
    A(f"s_lshr_b32 s{sP}, s6, 8")
    A(f"s_add_u32 s{sP}, s{sP}, s{sH}")
    A(f"s_and_b32 s{sP}, s{sP}, 3")
    A(f"s_cmp_eq_u32 s{sP}, 1")
    A(f"s_cselect_b32 s{sP}, {THR[4]}, 8")
    A(f"s_mul_i32 s{sP}, s{sP}, s{sT1}")
    A(f"s_mul_i32 s{sA}, s{sA}, {THR[4]}")
    A(f"s_sub_i32 s{sP}, s{sA}, s{sP}")
    A(f"s_lshl_b32 s{sP}, s{sP}, 6")
    A(f"s_mul_i32 s{sR}, s{sA}, {THR[2]}")
    A(f"s_cmp_ge_i32 s{sP}, s{sR}")
    A(f"s_cselect_b32 s{sThr}, 1, 0")
    A(f"s_mul_i32 s{sR}, s{sA}, {THR[3]}")
    A(f"s_cmp_ge_i32 s{sP}, s{sR}")
    A(f"s_cselect_b32 s{sR}, 2, 0")
    A(f"s_or_b32 s{sThr}, s{sThr}, s{sR}")
A(f"s_add_u32 s{sR}, s{sT1}, 7")
A(f"s_lshr_b32 s{sR}, s{sR}, 3")
A(f"s_lshr_b32 s{sT0}, s{sT1}, 2")
A(f"s_and_b32 s{sT1}, s{sT1}, 3")
if a.fin:
    A(f"s_mov_b32 s{sNb}, s{sT0}")
    A(f"s_mov_b32 s{sNr}, s{sT1}")
A(f"s_mul_i32 s{sT2}, s{sW}, s{sT0}")
A(f"s_add_u32 s{sT3}, s{sT3}, s{sT2}")
A(f"s_min_u32 s{sT2}, s{sW}, s{sT1}")
A(f"s_add_u32 s{sT3}, s{sT3}, s{sT2}")
A(f"s_cmp_lt_u32 s{sW}, s{sT1}")
A(f"s_addc_u32 s{sCnt}, s{sT0}, 0")
A(f"s_lshl_b32 s{sT0}, s{sB}, 7")
A(f"s_add_u32 s{sT0}, s{sT0}, s{sT3}")
A(f"s_lshl_b32 s{sT0}, s{sT0}, 2")
A(f"s_buffer_load_dwordx8 s[{sE}:{sE+7}], {sr(srdBT)}, s{sT0}")
A(f"s_add_u32 s{sCl}, s{sCl}, 1")
A(f"s_lshl_b32 s{sT3}, s{sT3}, 4")
A(f"s_sub_i32 s{sLim}, s{sCl}, s{sT3}")
A(f"s_lshl_b32 s{sT2}, s{sCnt}, 4")
A(f"s_min_i32 s{sLim}, s{sLim}, s{sT2}")
A(f"s_lshl_b32 s{sT0}, s{sB}, 16")
A(f"s_lshl_b32 s{sT1}, s{sH}, 13")
A(f"s_add_u32 s{sT0}, s{sT0}, s{sT1}")
A(f"s_add_u32 s{srdQ}, s4, s{sT0}"); A(f"s_addc_u32 s{srdQ+1}, s5, 0"); A(f"s_mov_b32 s{srdQ+2}, 8192"); A(f"s_mov_b32 s{srdQ+3}, 0x20000")
A(f"s_add_u32 s{srdO}, s14, s{sT0}"); A(f"s_addc_u32 s{srdO+1}, s15, 0"); A(f"s_mov_b32 s{srdO+2}, 8192"); A(f"s_mov_b32 s{srdO+3}, 0x20000")
TS("alloc")
A("s_waitcnt lgkmcnt(0)")
kdma(int(SPEC["P"][0][1]) if SPEC else (7 if a.sched else 0))
TS2("k0i")
if a.ts == 3: TS("k0i3")
A(f"s_lshl_b32 s{sT1}, s{sW}, 11")
A(f"s_add_u32 m0, s{sT1}, {QBASE}")
A("s_nop 0")
for jj in range(2):
    A(f"buffer_load_dwordx4 v{vQo+jj}, {sr(srdQ)}, 0 offen offset:{jj*1024} lds")
VM("Q", 2)
for j in ([int(g[1]) for g in SPEC["P"][1:]] if SPEC else ((6, 5, 4, 3) if a.sched else range(1, 5))): kdma(j)
TS("k4issued")
A("s_memrealtime s[96:97]")
A(f"s_lshl_b32 s{sGrp}, s{sB}, 3")
A(f"s_add_u32 s{sGrp}, s{sGrp}, s{sH}")
A(f"s_lshl_b32 s{sT0}, s{sGrp}, 2")
A(f"s_cmp_eq_u32 s{sW}, 0")
A(f"s_cselect_b32 s{sT0}, s{sT0}, 0x1000")
A(f"s_mov_b32 s{srdD}, s16"); A(f"s_mov_b32 s{srdD+1}, s17"); A(f"s_mov_b32 s{srdD+2}, 256"); A(f"s_mov_b32 s{srdD+3}, 0x20000")
A(f"v_mov_b32 v{vNon+2}, s{sT0}")
A(f"v_mov_b32 v{vNon+1}, 0")
A("s_waitcnt lgkmcnt(0)")
A(f"s_and_b32 s{sNonce}, s96, 0xffffffe0")
A(f"s_or_b32 s{sNonce}, s{sNonce}, 0x10")
A(f"v_mov_b32 v{vNon}, s{sNonce}")
A("s_mov_b64 exec, 1")
A(f"buffer_atomic_cmpswap v[{vNon}:{vNon+1}], v{vNon+2}, {sr(srdD)}, 0 offen sc0 sc1")
VM("A")
A("s_mov_b64 exec, -1")
if a.cpf and a.cpf2 == 1:
    A(f"v_and_b32 v56, 15, v{vLane}")
    A(f"s_lshl_b32 s{sT1}, s{sW}, 4")
    A(f"v_add_u32 v56, s{sT1}, v56")
    A(f"v_lshlrev_b32 v56, 7, v56")
    A(f"v_add_u32 v56, 2048, v56")
    A(f"v_min_u32 v56, L_end-L_pc0, v56")
    A(f"global_load_dword v58, v56, s[98:99]")
    VM("CP")
srd_w()
A(f"v_lshlrev_b32 v{vL16}, 4, v{vLane}")
v_voff(vT, vT+1, vT+2)
lds_consts(vT, vT+1)
A(f"v_lshrrev_b32 v{vT}, 2, v{vLane}")
A(f"v_and_b32 v{vT+1}, 7, v{vT}")
A(f"v_lshlrev_b32 v{vT+1}, 1, v{vT+1}")
A(f"v_bfe_u32 v{vT+2}, v{vLane}, 1, 1")
A(f"s_lshl_b32 s{sT0}, s{sW}, 2")
A(f"v_add_u32 v{vT+2}, s{sT0}, v{vT+2}")
A(f"v_and_b32 v{vT+3}, 1, v{vLane}")
A(f"v_lshlrev_b32 v{vT+3}, 3, v{vT+3}")
A(f"v_lshl_add_u32 v{vT+3}, v{vT}, 8, v{vT+3}")
for mt in range(2):
    A(f"v_add_u32 v{vT+4}, {2*mt}, v{vT+2}")
    A(f"v_xor_b32 v{vT+4}, v{vT+4}, v{vT+1}")
    A(f"v_lshl_add_u32 v{vTr+mt}, v{vT+4}, 4, v{vT+3}")
    A(f"v_add_u32 v{vTr+2+mt}, {2*WREG}, v{vTr+mt}")
A(f"v_add_u32 v{vPa}, {PBASE}, v{vL16}")
A(f"s_lshl_b32 s{sT0}, s{sW}, 2")
A(f"s_add_u32 s{sT0}, s{sT0}, {XMAX}")
A(f"v_add_u32 v{vXw}, s{sT0}, v{vL16}")
A(f"v_add_u32 v{vXr}, {XMAX}, v{vL16}")
A(f"v_mov_b32 v{vT}, 0x3f803f80")
for r in range(4): A(f"v_accvgpr_write_b32 a{aOne+r}, v{vT}")
A(f"s_sub_u32 s{sT0}, {QBASE}, s{sLdsW}")
for s in range(4): A(f"v_add_u32 v{vT+s}, s{sT0}, v{vLds+s}")

if a.sched:
    nxt = ["K2", "K1", "K0", "V0", "V1", "V2", None, None]
    kwait = [17, 17, 17, 17, 17, 16, 16 + a.fast, 12 + a.fast]
else:
    nxt = ["K5", "K6", "K7", "V0", "V1", "V2", "V3", "V4"]
    kwait = [17, 17, 17, 17, 17, 16, 16 + a.fast, 16 + a.fast]
NSTEP = 5
for t in range(8):
    j = KORD[t]
    kb = aK + (t & 1)*16
    if SPEC:
        w_ = min(NW(f"K{j}"), NW("Q")) if t == 0 else NW(f"K{j}")
        if t == NSTEP: w_ = min(w_, NW("A"))
        A(f"s_waitcnt vmcnt({w_})")
    else:
        A(f"s_waitcnt vmcnt({kwait[t]})")
    if t == 0:
        A("s_barrier")
        for qt in range(2):
            for s in range(4):
                A(f"ds_read_b128 {ar(aQ+(qt*4+s)*4)}, v{vT+s} offset:{qt*4096}")
    for s in range(4):
        A(f"ds_read_b128 {ar(kb+4*s)}, v{vLds+s} offset:{kslot(j)*4096}")
    A(f"s_sub_i32 s{sT0}, s{sLim}, {16*j}")
    for r in range(4):
        A(f"v_cmp_gt_i32 {sp(sM+2*r)}, s{sT0}, v{vTok+r}")
    for r in range(4):
        A(f"v_cndmask_b32 v{vM+r}, v{vNEG}, 0, {sp(sM+2*r)}")
    if t == 0:
        A("s_waitcnt lgkmcnt(4)")
        A(f"s_cmp_gt_i32 s{sUni}, 0")
        A("s_cbranch_scc1 L_qok")
        A(f"v_mov_b32 v{vT}, 0")
        for r in range(32): A(f"v_accvgpr_write_b32 a{aQ+r}, v{vT}")
        L("L_qok")
    if t == 5:
        A(f"v_readfirstlane_b32 s{sT1}, v{vNon}")
    A("s_nop 0")
    for s in range(4):
        A(f"s_waitcnt lgkmcnt({3-s})")
        for qt in range(2):
            c = vr(vM) if s == 0 else vr(S(j,qt))
            A(f"v_mfma_f32_16x16x32_bf16 {vr(S(j,qt))}, {ar(kb+4*s)}, {ar(aQ+(qt*4+s)*4)}, {c}")
    if t == 5:
        A(f"s_cmp_eq_u32 s{sT1}, 0")
        A(f"s_cselect_b32 s{sNonce}, s{sNonce}, s{sT1}")
        if a.fast:
            A(f"s_getreg_b32 s{sT0}, hwreg(HW_REG_XCC_ID)")
            A(f"s_and_b32 s{sTag}, s{sT0}, 7")
            A(f"s_or_b32 s{sT0}, s{sNonce}, s{sTag}")
            A(f"s_lshl_b32 s{sXTg}, s{sGrp}, 7")
            A(f"s_add_u32 s{sXTg}, s{sXTg}, {XT_OFF}")
            A(f"s_lshl_b32 s{sT1}, s{sI}, 2")
            A(f"s_add_u32 s{sT1}, s{sT1}, s{sXTg}")
            A(f"s_cmp_eq_u32 s{sW}, 0")
            A(f"s_cselect_b32 s{sT1}, s{sT1}, 0x80000000")
            A(f"v_mov_b32 v{vT+5}, s{sT0}")
            A(f"v_mov_b32 v{vT+6}, 0")
            A("s_mov_b64 exec, 1")
            A(f"buffer_store_dword v{vT+5}, v{vT+6}, {sr(srdW)}, s{sT1} offen sc1")
            VM("T")
            A("s_mov_b64 exec, -1")
    nm = None if SPEC else nxt[t]
    if SPEC: issue(f"t{t}")
    if nm is not None:
        if nm[0] == "K": kdma(int(nm[1]))
        else: vdma(int(nm[1]))
    if t == 7 and a.early and not a.sched:
        vdma(5); vdma(6)
    if t in (0, 3, 7): TS(f"k{t}")
for qt in range(2):
    regs = [S(i,qt,r) for i in KORD for r in range(4)]
    m = vMc+qt
    A(f"v_max3_f32 v{m}, v{regs[0]}, v{regs[1]}, v{regs[2]}")
    k = 3
    while k + 1 < len(regs):
        A(f"v_max3_f32 v{m}, v{m}, v{regs[k]}, v{regs[k+1]}")
        k += 2
    if k < len(regs):
        A(f"v_max_f32 v{m}, v{m}, v{regs[k]}")
for op in ("v_permlane16_swap_b32", "v_permlane32_swap_b32"):
    for qt in range(2): A(f"v_mov_b32 v{vT+qt}, v{vMc+qt}")
    A("s_nop 1")
    for qt in range(2): A(f"{op} v{vMc+qt}, v{vT+qt}")
    for qt in range(2): A(f"v_max_f32 v{vMc+qt}, v{vMc+qt}, v{vT+qt}")
for qt in range(2):
    A(f"ds_write_b32 v{vXw}, v{vMc+qt} offset:{qt*1024}")
A(f"s_lshl_b32 s{sT0}, s{sW}, 2")
A(f"s_add_u32 s{sT0}, s{sT0}, {XN}")
A(f"v_mov_b32 v{vT+2}, s{sT0}")
A(f"v_mov_b32 v{vT+3}, s{sNonce}")
A("s_mov_b64 exec, 1")
A(f"ds_write_b32 v{vT+2}, v{vT+3}")
A("s_mov_b64 exec, -1")
if SPEC: issue("B1")
elif a.sched: vdma(3)
elif not a.early: vdma(5)
A("s_waitcnt lgkmcnt(0)")
A("s_barrier")
TS("bar1")
for qt in range(2):
    A(f"ds_read_b128 {vr(vRB+4*qt)}, v{vXr} offset:{qt*1024}")
A(f"v_mov_b32 v{vT+2}, {XN}")
A(f"ds_read_b32 v{vT+3}, v{vT+2}")
A("s_waitcnt lgkmcnt(1)")
for qt in range(2):
    b = vRB+4*qt
    A(f"v_max3_f32 v{vMc+qt}, v{b}, v{b+1}, v{b+2}")
for qt in range(2):
    A(f"v_max_f32 v{vMc+qt}, v{vMc+qt}, v{vRB+4*qt+3}")
for qt in range(2):
    A(f"v_mul_f32 v{vMc+qt}, s{sC}, v{vMc+qt}")
A("s_waitcnt lgkmcnt(0)")
A(f"v_readfirstlane_b32 s{sNonce}, v{vT+3}")
A(f"s_lshl_b32 s{sT0}, s{sW}, 13")
A(f"v_add_u32 v{vT+4}, s{sT0}, v{vPa}")
for p in range(4):
    for qt in range(2):
        for i in (2*p, 2*p+1):
            for r in range(4):
                A(f"v_fma_f32 v{S(i,qt,r)}, v{S(i,qt,r)}, s{sC}, -v{vMc+qt}")
            for r in range(4):
                A(f"v_exp_f32 v{S(i,qt,r)}, v{S(i,qt,r)}")
        d = S(2*p,qt)
        A(f"v_cvt_pk_bf16_f32 v{d}, v{S(2*p,qt,0)}, v{S(2*p,qt,1)}")
        A(f"v_cvt_pk_bf16_f32 v{d+1}, v{S(2*p,qt,2)}, v{S(2*p,qt,3)}")
        A(f"v_cvt_pk_bf16_f32 v{d+2}, v{S(2*p+1,qt,0)}, v{S(2*p+1,qt,1)}")
        A(f"v_cvt_pk_bf16_f32 v{d+3}, v{S(2*p+1,qt,2)}, v{S(2*p+1,qt,3)}")
        A(f"ds_write_b128 v{vT+4}, {vr(d)} offset:{p*2048+qt*1024}")
        if p > 0 or qt > 0:
            pp, pq = (p, 0) if qt == 1 else (p-1, 1)
            c = "0" if pp == 0 else vr(vLsq+4*pq)
            A(f"v_mfma_f32_16x16x32_bf16 {vr(vLsq+4*pq)}, {ar(aOne)}, {vr(S(2*pp,pq))}, {c}")
    if SPEC: issue(f"E{p}")
    if p == 1:
        if SPEC: pass
        elif a.sched: vdma(4)
        elif not a.early: vdma(6)
        if a.tpf:
            A("s_getpc_b64 s[98:99]")
            L("L_tpf")
            A(f"v_lshlrev_b32 v{vT}, 7, v{vLane}")
            A(f"v_min_u32 v{vT}, L_end-L_tpf, v{vT}")
            A(f"global_load_dword v{vT+1}, v{vT}, s[98:99]")
            VM("PF")
A("s_nop 1")
A(f"v_mfma_f32_16x16x32_bf16 {vr(vLsq+4)}, {ar(aOne)}, {vr(S(6,1))}, {vr(vLsq+4)}")
A(f"s_lshl_b32 s{sT0}, s{sH}, 5")
A(f"s_lshl_b32 s{sT1}, s{sW}, 12")
A("s_nop 2")
A(f"s_add_u32 s{sT0}, s{sT0}, s{sStart}")
A(f"s_lshl_b32 s{sGrp}, s{sT0}, 14")
A(f"s_add_u32 s{sGrp}, s{sGrp}, s{sT1}")
A("s_nop 3")
A(f"v_add_u32 v{vT+4}, {XL-XMAX}, v{vXw}")
for qt in range(2):
    A(f"ds_write_b32 v{vT+4}, v{vLsq+4*qt} offset:{qt*1024}")
A("s_waitcnt lgkmcnt(0)")
A("s_barrier")
TS("bar2")
if a.fast:
    A(f"v_lshlrev_b32 v{vT+5}, 2, v{vLane}")
    A(f"v_cmp_gt_u32 vcc, s{sN}, v{vLane}")
    A(f"v_mov_b32 v{vT+6}, 0x40000000")
    A("s_nop 0")
    A(f"v_cndmask_b32 v{vT+5}, v{vT+6}, v{vT+5}, vcc")
    A(f"buffer_load_dword v{vTg}, v{vT+5}, {sr(srdW)}, s{sXTg} offen sc1")
    VM("G")
for qt in range(2):
    A(f"ds_read_b128 {vr(vRB+4*qt)}, v{vXr} offset:{XL-XMAX+qt*1024}")
A(f"s_mov_b32 s{sP}, 0")
if a.fin:
    A(f"s_lshl_b32 s{sNv}, s{sR}, 1")
    A(f"s_sub_u32 s{sNv}, s{sNv}, 2")
    A(f"s_cmp_gt_u32 s{sNb}, s{sNv}")
    A(f"s_cselect_b32 s{sNv}, 4, s{sNr}")
    A(f"s_mov_b32 s{sNvC}, 4")
A(f"s_mov_b32 s{sA}, 4096")
for k in range(4): A(f"v_add_u32 v{vTrC+k}, 4096, v{vTr+k}")
A(f"v_mov_b32 v{vPC}, v{vPa}")
A("s_waitcnt lgkmcnt(0)")
for qt in range(2):
    b = vRB+4*qt
    A(f"v_add_f32 v{b}, v{b}, v{b+1}")
    A(f"v_add_f32 v{b+2}, v{b+2}, v{b+3}")
for qt in range(2):
    b = vRB+4*qt
    A(f"v_add_f32 v{b}, v{b}, v{b+2}")
for qt in range(2):
    b = vRB+4*qt
    A(f"v_rcp_f32 v{vRl+qt}, v{b}")
    A(f"v_log_f32 v{b+1}, v{b}")
A("s_nop 0")
for qt in range(2):
    b = vRB+4*qt
    A(f"v_add_f32 v{b+1}, v{b+1}, v{vMc+qt}")
for mt in range(2):
    for qt in range(2):
        A(f"v_mov_b32 v{vGr+(mt*2+qt)*4+2}, v{vRB+4*qt+1}")
for qt in range(2):
    A(f"v_xor_b32 v{vLseN+qt}, s{sNonce}, v{vRB+4*qt+1}")
for r in range(16): A(f"v_mov_b32 v{vO+r}, 0")
A(f"v_lshlrev_b32 v{vOo}, 8, v{vN}")
A(f"v_lshl_add_u32 v{vOo}, v{vG}, 3, v{vOo}")
A(f"s_lshl_b32 s{sT0}, s{sI}, 10")
A(f"s_add_u32 s{sCB}, s{sT0}, s{sGrp}")
A(f"s_add_u32 s{sT1}, s{sI}, s{sN}")
A(f"s_cmp_lt_u32 s{sT1}, 4")
A(f"s_cselect_b32 s{sDual}, 1, 0")
A(f"s_lshl_b32 s{sT2}, s{sT1}, 10")
A(f"s_add_u32 s{sT2}, s{sT2}, s{sGrp}")
A(f"s_sub_u32 s{sT2}, s{sT2}, {4*REC}")
A(f"s_add_u32 s{sT3}, s{sN}, 4")
A(f"s_cmp_lg_u32 s{sDual}, 0")
A(f"s_cselect_b32 s{sT2}, s{sT2}, s{sCB}")
A(f"s_cselect_b32 s{sT3}, s{sT3}, s{sN}")
A(f"s_mov_b32 s{sHiN}, s{sT3}")
for s_ in range(8):
    b = sCB if s_ < 4 else sT2
    n_ = sN if s_ < 4 else sT3
    A(f"s_add_u32 s{sT0}, s{b}, {s_*REC}")
    A(f"s_cmp_gt_u32 s{n_}, {s_}")
    A(f"s_cselect_b32 s{sCO+s_}, s{sT0}, 0x80000000")
    A(f"s_cselect_b32 s{sCN+s_}, s{sNonce}, 0")
if a.sel:
    A(f"s_min_u32 s{sT0}, s{sN}, 4")
    A(f"s_bfm_b32 s{sAct}, s{sT0}, 0")
    A(f"s_min_u32 s{sT0}, s{sT3}, 8")
    A(f"s_bfm_b32 s{sT0}, s{sT0}, 0")
    A(f"s_and_b32 s{sT0}, s{sT0}, 0xf0")
    A(f"s_or_b32 s{sAct}, s{sAct}, s{sT0}")
def outoff(dst, j):
    A(f"s_and_b32 s{sT0}, s{j}, 1")
    A(f"s_lshl_b32 s{sT0}, s{sT0}, 12")
    A(f"s_lshr_b32 s{dst}, s{j}, 1")
    A(f"s_lshl_b32 s{dst}, s{dst}, 5")
    A(f"s_add_u32 s{dst}, s{dst}, s{sT0}")
    A(f"s_lshl_b32 s{sT0}, s{sW}, 6")
    A(f"s_add_u32 s{dst}, s{dst}, s{sT0}")
outoff(sOA, sI)
outoff(sOB, sT1)
A(f"s_mov_b32 s{sRem}, s{sN}")
A(f"s_min_u32 s{sMc}, s{sN}, 8")
if a.mg2:
    for s_ in range(8): A(f"v_mov_b32 v{vS+4*s_+2}, v{vNEG}")
    A(f"s_mov_b32 s{sHiM}, 0xffff0000")
    A(f"s_mov_b32 s{sChk}, 0")
else:
    A(f"v_mov_b32 v{vCS+4}, v{vNEG}")
    A(f"v_mov_b32 v{vCS+5}, 0")
    for c in range(4): A(f"v_mov_b32 v{vCS+c}, 0")
L("L_round")
if SPEC:
    base_vm = list(vm)
    w0 = NW("V1")
    vm.extend(sum([[g]*4 for g in SPEC.get("R0", [])], []))
    w1 = NW("V3")
    vm.extend(sum([[g]*4 for g in SPEC.get("R1", [])], []))
    w2 = NW("V5")
    vm[:] = base_vm
else:
    w2 = 8 if a.sched else 8+a.tpf+a.fast
    w0 = (12 if a.sched else 20)+a.tpf+2*a.fast
    w1 = 12+a.tpf+a.fast
A(f"s_add_u32 s{sT0}, s{sP}, 1")
A(f"s_cmp_eq_u32 s{sT0}, s{sR}")
A("s_cbranch_scc1 L_w0")
A(f"s_cmp_eq_u32 s{sP}, 0")
A("s_cbranch_scc1 L_w20")
A(f"s_cmp_eq_u32 s{sP}, 1")
A("s_cbranch_scc1 L_w12")
A(f"s_waitcnt vmcnt({w2})")
A("s_branch L_wd")
L("L_w20")
A(f"s_waitcnt vmcnt({w0})")
A("s_branch L_wd")
L("L_w12")
A(f"s_waitcnt vmcnt({w1})")
A("s_branch L_wd")
L("L_w0")
A("s_waitcnt vmcnt(0)")
if a.fin:
    A(f"s_mov_b32 s{sNvC}, s{sNv}")
    if a.fast:
        A(f"s_or_b32 s{sT0}, s{sNonce}, s{sTag}")
        A(f"v_cmp_eq_u32 vcc, s{sT0}, v{vTg}")
        A(f"s_bfm_b64 {sp(sM)}, s{sN}, 0")
        A("s_nop 0")
        A(f"s_cmp_eq_u64 vcc, {sp(sM)}")
        A(f"s_cselect_b32 s{sFast}, 1, 0")
L("L_wd")
A("s_barrier")
TS("lastbar")
def rd(w_):
    b = vRB + 16*w_
    for qt in range(2):
        A(f"ds_read_b128 {vr(b+4*qt)}, v{vPC} offset:{w_*8192+qt*1024}")
    for mt in range(2):
        for hh in range(2):
            A(f"ds_read_b64_tr_b16 {vr(b+8+4*mt+2*hh, 2)}, v{vTrC+(w_>>1)*2+mt} offset:{(w_&1)*WREG+hh*4096}")
def mm(w_):
    b = vRB + 16*w_
    for mt in range(2):
        for qt in range(2):
            A(f"v_mfma_f32_16x16x32_bf16 {vr(O(mt,qt))}, {vr(b+8+4*mt)}, {vr(b+4*qt)}, {vr(O(mt,qt))}")
rd(0); rd(1)
if SPEC:
    if SPEC.get("R0"):
        A(f"s_cmp_lg_u32 s{sP}, 0")
        A("s_cbranch_scc1 L_nov5")
        issue("R0")
        L("L_nov5")
    A(f"s_cmp_lg_u32 s{sP}, 1")
    A("s_cbranch_scc1 L_nov7")
    issue("R1")
    L("L_nov7")
else:
    if a.sched:
        A(f"s_cmp_lg_u32 s{sP}, 0")
        A("s_cbranch_scc1 L_nov5")
        vdma(5); vdma(6)
        L("L_nov5")
    A(f"s_cmp_lg_u32 s{sP}, 1")
    A("s_cbranch_scc1 L_nov7")
    vdma(7)
    L("L_nov7")
if a.fin:
    A(f"s_cmp_gt_u32 s{sNvC}, 2")
    A("s_cbranch_scc1 L_long")
    A("s_waitcnt lgkmcnt(6)")
    mm(0)
    A("s_waitcnt lgkmcnt(0)")
    mm(1)
    A("s_nop 2")
    A("s_branch L_exit")
    L("L_long")
A("s_waitcnt lgkmcnt(6)")
rd(2); mm(0)
A("s_waitcnt lgkmcnt(6)")
rd(3); mm(1)
A(f"s_add_u32 s{sA}, s{sA}, 8192")
A(f"s_cmp_ge_u32 s{sA}, {WREG}")
A(f"s_cselect_b32 s{sT0}, {WREG}, 0")
A(f"s_sub_u32 s{sA}, s{sA}, s{sT0}")
A("s_waitcnt lgkmcnt(6)")
mm(2)
for k in range(4): A(f"v_add_u32 v{vTrC+k}, s{sA}, v{vTr+k}")
A(f"v_add_u32 v{vPC}, 2048, v{vPC}")
A("s_waitcnt lgkmcnt(0)")
mm(3)
A(f"s_add_u32 s{sP}, s{sP}, 1")
A(f"s_cmp_lt_u32 s{sP}, s{sR}")
A("s_cbranch_scc1 L_round")
if a.fin: L("L_exit")
TS("pv")
def publish(flags):
    for mt in range(2):
        for qt in range(2):
            o = O(mt,qt); g = vGr+(mt*2+qt)*4
            if a.fin:
                sel = "op_sel_hi:[1,0]" if qt == 0 else "op_sel:[0,1] op_sel_hi:[1,1]"
                A(f"v_pk_mul_f32 {vr(o,2)}, {vr(o,2)}, {vr(vRl,2)} {sel}")
                A(f"v_pk_mul_f32 {vr(o+2,2)}, {vr(o+2,2)}, {vr(vRl,2)} {sel}")
            else:
                for r in range(4): A(f"v_mul_f32 v{o+r}, v{o+r}, v{vRl+qt}")
            A(f"v_cvt_pk_bf16_f32 v{g}, v{o}, v{o+1}")
            A(f"v_cvt_pk_bf16_f32 v{g+1}, v{o+2}, v{o+3}")
            A(f"v_bitop3_b32 v{g+3}, v{g}, v{g+1}, v{vLseN+qt} bitop3:0x96")
            A(f"buffer_store_dwordx4 {vr(g)}, v{vL16}, {sr(srdW)}, s{sRec} offen offset:{(mt*2+qt)*1024}{flags}")
if a.fast and a.fin:
    A(f"s_cmp_lg_u32 s{sFast}, 0")
    A("s_cbranch_scc0 L_pubslow")
    A("s_nop 1")
    publish((" " + a.fst) if a.fst else "")
    L("L_pubdone")
elif a.fast:
    A(f"s_or_b32 s{sT0}, s{sNonce}, s{sTag}")
    A(f"v_cmp_eq_u32 vcc, s{sT0}, v{vTg}")
    A(f"s_bfm_b64 {sp(sM)}, s{sN}, 0")
    A("s_nop 0")
    A(f"s_cmp_eq_u64 vcc, {sp(sM)}")
    A("s_cbranch_scc0 L_pubslow")
    publish((" " + a.fst) if a.fst else "")
    L("L_pubdone")
else:
    A("s_nop 4")
    publish(ST)
TS("stored")
vAcc = vCS; vMx = vCS+4; vW = vCS+5; vTmp = vCS+6
vSrc = vS if a.mg2 else vRB
A(f"s_cmp_eq_u32 s{sN}, 1")
A("s_cbranch_scc1 L_direct")
A(f"s_cmp_ge_u32 s{sI}, 4")
A("s_cbranch_scc1 L_fin")
A(f"s_mov_b32 s{sT2}, {a.spin}")
L("L_poll")
def ladder(lo, hi, bound, tgt, body):
    for s_ in range(lo, hi):
        if a.lad and s_ not in (0, 1):
            A(f"s_cmp_le_u32 s{bound}, {s_}")
            A(f"s_cbranch_scc1 {tgt}")
        body(s_)
def ld_body(s_): A(f"buffer_load_dwordx4 {vr(vSrc+4*s_)}, v{vL16}, {sr(srdW)}, s{sCO+s_} offen{LD}")
ladder(0, 4, sN, "L_i4", ld_body)
L("L_i4")
ladder(4, 8, sHiN, "L_i8", ld_body)
L("L_i8")
if a.ts in (1, 2, 4):
    A(f"s_cmp_eq_u32 s{sT2}, {a.spin}")
    A("s_cbranch_scc0 L_ts1")
    TS("iss1")
    L("L_ts1")
A(f"v_mov_b32 v{vTmp+2}, 0")
A("s_waitcnt vmcnt(0)")
if a.ts in (1, 2, 4):
    A(f"s_cmp_eq_u32 s{sT2}, {a.spin}")
    A("s_cbranch_scc0 L_ts2")
    TS("ld1")
    L("L_ts2")
if not a.sel:
    def ck_body(s_):
        g = vSrc+4*s_
        A(f"v_bitop3_b32 v{vTmp}, v{g}, v{g+1}, v{g+2} bitop3:0x96")
        A(f"v_bitop3_b32 v{vTmp}, v{vTmp}, v{g+3}, s{sCN+s_} bitop3:0x96")
        A(f"v_or_b32 v{vTmp+2}, v{vTmp+2}, v{vTmp}")
    ladder(0, 4, sN, "L_c4", ck_body)
    L("L_c4")
    ladder(4, 8, sHiN, "L_c8", ck_body)
    L("L_c8")
    A(f"v_cmp_eq_u32 vcc, 0, v{vTmp+2}")
    A(f"s_sub_u32 s{sT2}, s{sT2}, 1")
    A("s_cbranch_scc1 L_ok")
    A("s_cmp_eq_u64 vcc, exec")
    if a.sleep:
        A("s_cbranch_scc1 L_ok")
        A(f"s_sleep {a.sleep}")
        A("s_branch L_poll")
    else:
        A("s_cbranch_scc0 L_poll")
else:
    vXs = vRB + 48
    def ck_body(s_):
        g = vSrc+4*s_
        A(f"v_bitop3_b32 v{vTmp}, v{g}, v{g+1}, v{g+2} bitop3:0x96")
        A(f"v_bitop3_b32 v{vXs+s_}, v{vTmp}, v{g+3}, s{sCN+s_} bitop3:0x96")
        A(f"v_or_b32 v{vTmp+2}, v{vTmp+2}, v{vXs+s_}")
    ladder(0, 4, sN, "L_c4", ck_body)
    L("L_c4")
    ladder(4, 8, sHiN, "L_c8", ck_body)
    L("L_c8")
    A(f"v_cmp_eq_u32 vcc, 0, v{vTmp+2}")
    A(f"s_mov_b32 s{sMiss}, 0")
    A("s_cmp_eq_u64 vcc, exec")
    A("s_cbranch_scc1 L_ok")
    for s_ in range(8):
        A(f"v_cmp_ne_u32 vcc, 0, v{vXs+s_}")
        A("s_cmp_lg_u64 vcc, 0")
        A(f"s_cselect_b32 s{sT0}, {1<<s_}, 0")
        A(f"s_or_b32 s{sMiss}, s{sMiss}, s{sT0}")
    A(f"s_and_b32 s{sMiss}, s{sMiss}, s{sAct}")
    if a.sel == 1:
        L("L_sel")
        for s_ in range(8):
            A(f"s_bitcmp1_b32 s{sMiss}, {s_}")
            A(f"s_cbranch_scc0 L_sl{s_}")
            A(f"buffer_load_dwordx4 {vr(vSrc+4*s_)}, v{vL16}, {sr(srdW)}, s{sCO+s_} offen{LD}")
            L(f"L_sl{s_}")
        A(f"s_sub_u32 s{sT2}, s{sT2}, 1")
        A("s_cbranch_scc1 L_ok")
        A("s_waitcnt vmcnt(0)")
        for s_ in range(8):
            g = vSrc+4*s_
            A(f"s_bitcmp1_b32 s{sMiss}, {s_}")
            A(f"s_cbranch_scc0 L_sc{s_}")
            A(f"v_bitop3_b32 v{vTmp}, v{g}, v{g+1}, v{g+2} bitop3:0x96")
            A(f"v_bitop3_b32 v{vTmp}, v{vTmp}, v{g+3}, s{sCN+s_} bitop3:0x96")
            A(f"v_cmp_ne_u32 vcc, 0, v{vTmp}")
            A("s_cmp_lg_u64 vcc, 0")
            A(f"s_cbranch_scc1 L_sc{s_}")
            A(f"s_bitset0_b32 s{sMiss}, {s_}")
            L(f"L_sc{s_}")
        A(f"s_cmp_lg_u32 s{sMiss}, 0")
        A("s_cbranch_scc1 L_sel")
    else:
        for s_ in range(8):
            g = vSrc+4*s_
            A(f"s_bitcmp1_b32 s{sMiss}, {s_}")
            A(f"s_cbranch_scc0 L_sn{s_}")
            L(f"L_sp{s_}")
            if a.sleep: A(f"s_sleep {a.sleep}")
            A(f"buffer_load_dwordx4 {vr(g)}, v{vL16}, {sr(srdW)}, s{sCO+s_} offen{LD}")
            A(f"s_sub_u32 s{sT2}, s{sT2}, 1")
            A("s_cbranch_scc1 L_ok")
            A("s_waitcnt vmcnt(0)")
            A(f"v_bitop3_b32 v{vTmp}, v{g}, v{g+1}, v{g+2} bitop3:0x96")
            A(f"v_bitop3_b32 v{vTmp}, v{vTmp}, v{g+3}, s{sCN+s_} bitop3:0x96")
            A(f"v_cmp_ne_u32 vcc, 0, v{vTmp}")
            A("s_cmp_lg_u64 vcc, 0")
            A(f"s_cbranch_scc1 L_sp{s_}")
            L(f"L_sn{s_}")
L("L_ok")
TS("polled")
if a.ts in (1, 2):
    ts_slots.append("npoll")
    A(f"s_sub_u32 s100, {a.spin}, s{sT2}")
    A(f"v_writelane_b32 v63, s100, {len(ts_slots)-1}")
if not a.mg2:
    L("L_merge")
    A(f"v_mov_b32 v{vTmp}, v{vMx}")
    for s in range(8):
        if s:
            A(f"s_cmp_le_u32 s{sMc}, {s}")
            A("s_cbranch_scc1 L_mx")
        A(f"v_max_f32 v{vTmp}, v{vTmp}, v{vSrc+4*s+2}")
    L("L_mx")
    A(f"v_sub_f32 v{vTmp+1}, v{vMx}, v{vTmp}")
    A(f"v_exp_f32 v{vTmp+1}, v{vTmp+1}")
    A(f"v_mov_b32 v{vMx}, v{vTmp}")
    A(f"v_mul_f32 v{vW}, v{vW}, v{vTmp+1}")
    for c in range(4): A(f"v_mul_f32 v{vAcc+c}, v{vAcc+c}, v{vTmp+1}")
    for s in range(8):
        if s:
            A(f"s_cmp_le_u32 s{sMc}, {s}")
            A("s_cbranch_scc1 L_mg")
        g = vSrc+4*s
        A(f"v_sub_f32 v{g+2}, v{g+2}, v{vMx}")
        A(f"v_exp_f32 v{g+2}, v{g+2}")
        A(f"v_lshlrev_b32 v{vTmp}, 16, v{g}")
        A(f"v_and_b32 v{g}, 0xffff0000, v{g}")
        A(f"v_lshlrev_b32 v{vTmp+1}, 16, v{g+1}")
        A(f"v_and_b32 v{g+1}, 0xffff0000, v{g+1}")
        A(f"v_add_f32 v{vW}, v{vW}, v{g+2}")
        A(f"v_fma_f32 v{vAcc}, v{g+2}, v{vTmp}, v{vAcc}")
        A(f"v_fma_f32 v{vAcc+1}, v{g+2}, v{g}, v{vAcc+1}")
        A(f"v_fma_f32 v{vAcc+2}, v{g+2}, v{vTmp+1}, v{vAcc+2}")
        A(f"v_fma_f32 v{vAcc+3}, v{g+2}, v{g+1}, v{vAcc+3}")
    L("L_mg")
    A(f"s_cmp_gt_u32 s{sRem}, 8")
    A("s_cbranch_scc1 L_more")
    A(f"v_rcp_f32 v{vW}, v{vW}")
    A(f"s_cmp_lg_u32 s{sDual}, 0")
    for c in range(4): A(f"v_mul_f32 v{vAcc+c}, v{vAcc+c}, v{vW}")
    A(f"v_cvt_pk_bf16_f32 v{vAcc}, v{vAcc}, v{vAcc+1}")
    A(f"v_cvt_pk_bf16_f32 v{vAcc+1}, v{vAcc+2}, v{vAcc+3}")
    A(f"buffer_store_dwordx2 {vr(vAcc,2)}, v{vOo}, {sr(srdO)}, s{sOA} offen{OST}")
    A("s_cbranch_scc0 L_fin")
    for s in range(3):
        for c in range(4): A(f"v_mov_b32 v{vSrc+4*s+c}, v{vSrc+16+4*s+c}")
    A(f"s_mov_b32 s{sDual}, 0")
    A(f"s_mov_b32 s{sOA}, s{sOB}")
    A(f"v_mov_b32 v{vMx}, v{vNEG}")
    A(f"v_mov_b32 v{vW}, 0")
    for c in range(4): A(f"v_mov_b32 v{vAcc+c}, 0")
    A("s_branch L_merge")
else:
    def src_weight(s_):
        g = vSrc+4*s_
        A(f"v_sub_f32 v{g+2}, v{g+2}, v{vMx}")
        A(f"v_exp_f32 v{g+2}, v{g+2}")
        A(f"v_lshlrev_b32 v{vTmp}, 16, v{g}")
        A(f"v_and_b32 v{vTmp+1}, s{sHiM}, v{g}")
        A(f"v_lshlrev_b32 v{vTmp+2}, 16, v{g+1}")
        A(f"v_and_b32 v{vTmp+3}, s{sHiM}, v{g+1}")
    def src_fma(s_):
        g = vSrc+4*s_
        src_weight(s_)
        A(f"v_add_f32 v{vW}, v{vW}, v{g+2}")
        A(f"v_pk_fma_f32 {vr(vAcc,2)}, {vr(vTmp,2)}, {vr(g+2,2)}, {vr(vAcc,2)} op_sel_hi:[1,0,1]")
        A(f"v_pk_fma_f32 {vr(vAcc+2,2)}, {vr(vTmp+2,2)}, {vr(g+2,2)}, {vr(vAcc+2,2)} op_sel_hi:[1,0,1]")
    A(f"s_cmp_lg_u32 s{sChk}, 0")
    A("s_cbranch_scc1 L_fix")
    L("L_merge")
    A(f"v_max3_f32 v{vMx}, v{vSrc+2}, v{vSrc+6}, v{vSrc+10}")
    A(f"s_cmp_lg_u32 s{sDual}, 0")
    A(f"v_max_f32 v{vMx}, v{vMx}, v{vSrc+14}")
    A("s_cbranch_scc1 L_mx")
    A(f"v_max3_f32 v{vMx}, v{vMx}, v{vSrc+18}, v{vSrc+22}")
    A(f"v_max3_f32 v{vMx}, v{vMx}, v{vSrc+26}, v{vSrc+30}")
    L("L_mx")
    src_weight(0)
    A(f"v_mov_b32 v{vW}, v{vSrc+2}")
    A(f"v_pk_mul_f32 {vr(vAcc,2)}, {vr(vTmp,2)}, {vr(vSrc+2,2)} op_sel_hi:[1,0]")
    A(f"v_pk_mul_f32 {vr(vAcc+2,2)}, {vr(vTmp+2,2)}, {vr(vSrc+2,2)} op_sel_hi:[1,0]")
    L("L_acc1")
    for s_ in range(1, 8):
        A(f"s_cmp_le_u32 s{sMc}, {s_}")
        A("s_cbranch_scc1 L_mg")
        src_fma(s_)
    L("L_mg")
    A(f"s_cmp_gt_u32 s{sRem}, 8")
    A("s_cbranch_scc1 L_more")
    A(f"v_rcp_f32 v{vW}, v{vW}")
    A(f"s_cmp_lg_u32 s{sDual}, 0")
    A(f"v_pk_mul_f32 {vr(vAcc,2)}, {vr(vAcc,2)}, {vr(vMx,2)} op_sel:[0,1] op_sel_hi:[1,1]")
    A(f"v_pk_mul_f32 {vr(vAcc+2,2)}, {vr(vAcc+2,2)}, {vr(vMx,2)} op_sel:[0,1] op_sel_hi:[1,1]")
    A(f"v_cvt_pk_bf16_f32 v{vAcc}, v{vAcc}, v{vAcc+1}")
    A(f"v_cvt_pk_bf16_f32 v{vAcc+1}, v{vAcc+2}, v{vAcc+3}")
    A(f"buffer_store_dwordx2 {vr(vAcc,2)}, v{vOo}, {sr(srdO)}, s{sOA} offen{OST}")
    A("s_cbranch_scc0 L_fin")
    for s_ in range(3):
        for c in range(4): A(f"v_mov_b32 v{vSrc+4*s_+c}, v{vSrc+16+4*s_+c}")
    A(f"s_mov_b32 s{sOA}, s{sOB}")
    A(f"s_mov_b32 s{sDual}, 0")
    for s_ in range(4, 8): A(f"v_mov_b32 v{vSrc+4*s_+2}, v{vNEG}")
    A("s_branch L_merge")
    L("L_fix")
    for s_ in range(1, 8):
        A(f"s_cmp_gt_u32 s{sMc}, {s_}")
        A(f"s_cbranch_scc1 L_fx{s_}")
        A(f"v_mov_b32 v{vSrc+4*s_+2}, v{vNEG}")
        L(f"L_fx{s_}")
    A(f"v_max3_f32 v{vTmp}, v{vMx}, v{vSrc+2}, v{vSrc+6}")
    A(f"v_max3_f32 v{vTmp}, v{vTmp}, v{vSrc+10}, v{vSrc+14}")
    A(f"v_max3_f32 v{vTmp}, v{vTmp}, v{vSrc+18}, v{vSrc+22}")
    A(f"v_max3_f32 v{vTmp}, v{vTmp}, v{vSrc+26}, v{vSrc+30}")
    A(f"v_sub_f32 v{vTmp+1}, v{vMx}, v{vTmp}")
    A(f"v_exp_f32 v{vTmp+1}, v{vTmp+1}")
    A(f"v_mov_b32 v{vMx}, v{vTmp}")
    A(f"v_mul_f32 v{vW}, v{vW}, v{vTmp+1}")
    for c in range(4): A(f"v_mul_f32 v{vAcc+c}, v{vAcc+c}, v{vTmp+1}")
    src_fma(0)
    A("s_branch L_acc1")
if a.fast:
    L("L_pubslow")
    if a.fin: A("s_nop 1")
    publish(ST)
    A("s_branch L_pubdone")
L("L_more")
A(f"s_sub_u32 s{sRem}, s{sRem}, 8")
A(f"s_min_u32 s{sMc}, s{sRem}, 8")
A(f"s_mov_b32 s{sHiN}, s{sRem}")
if a.mg2: A(f"s_mov_b32 s{sChk}, 1")
if a.sel:
    A(f"s_bfm_b32 s{sAct}, s{sMc}, 0")
for s in range(8):
    A(f"s_add_u32 s{sT0}, s{sCB}, {(8+s)*REC}")
    A(f"s_cmp_gt_u32 s{sRem}, {s}")
    A(f"s_cselect_b32 s{sCO+s}, s{sT0}, 0x80000000")
    A(f"s_cselect_b32 s{sCN+s}, s{sNonce}, 0")
A(f"s_add_u32 s{sCB}, s{sCB}, {8*REC}")
A(f"s_mov_b32 s{sT2}, {a.spin}")
A("s_branch L_poll")
L("L_direct")
for mt in range(2):
    for qt in range(2):
        g = vGr+(mt*2+qt)*4
        A(f"s_lshl_b32 s{sT0}, s{sW}, 6")
        A(f"s_add_u32 s{sT0}, s{sT0}, {qt*4096+mt*32}")
        A(f"buffer_store_dwordx2 {vr(g,2)}, v{vOo}, {sr(srdO)}, s{sT0} offen{OST}")
L("L_fin")
if a.ts:
    TS("end")
    A("s_waitcnt vmcnt(0) lgkmcnt(0)")
    if a.ts == 4:
        order = ["lastbar", "pv", "stored", "iss1", "ld1", "polled", "end"]
        d = dict(ts4)
        for k, nm in enumerate(order):
            A(f"v_writelane_b32 v63, s{d[nm]}, {k+1}")
    A(f"s_lshl_b32 s{sT0}, s2, 2")
    A(f"s_add_u32 s{sT0}, s{sT0}, s{sW}")
    A(f"s_lshl_b32 s{sT0}, s{sT0}, 7")
    A(f"s_add_u32 s{sT0}, s{sT0}, {TS_OFF}")
    A(f"v_lshlrev_b32 v{vT}, 2, v{vLane}")
    A(f"v_cmp_gt_u32 vcc, 32, v{vLane}")
    A(f"s_and_saveexec_b64 {sp(sM)}, vcc")
    A(f"buffer_store_dword v63, v{vT}, {sr(srdW)}, s{sT0} offen")
L("L_end")
A("s_endpgm")

hdr = open("standalone__paged_block_table_kv_pagedattention__sampling.s.ref").read().split("\n")
comments = [l for l in hdr if l.startswith(";") and "@launch" not in l and not l.startswith("; Override") and not l.startswith("; grid=")]
doc = """;
;  * The normalised partial of a workgroup is published as 16-byte granules {4 x bf16, log-sum-exp, check word};
;"""
txt = "\n".join(comments) + "\n" + doc + "\n"
txt += f"; @launch grid=(256,1,1) block=(256,1,1) lds={LDS_BYTES}\n"
txt += f""".amdgcn_target "amdgcn-amd-amdhsa--gfx950"
.text
.globl {KN}
.p2align 8
.type {KN},@function
"""
txt += "\n".join(out) + "\n"
txt += f""".section .rodata,"a"
.p2align 6
.amdhsa_kernel {KN}
  .amdhsa_next_free_vgpr {256+NAGPR}
  .amdhsa_next_free_sgpr 102
  .amdhsa_accum_offset 256
  .amdhsa_group_segment_fixed_size 0
  .amdhsa_kernarg_size 64
  .amdhsa_user_sgpr_count 2
  .amdhsa_user_sgpr_kernarg_segment_ptr 1
  .amdhsa_system_sgpr_workgroup_id_x 1
.end_amdhsa_kernel
"""
print(txt)
if a.ts:
    sys.stderr.write("TS: " + ",".join(ts_slots) + "\n")
```

```python
import argparse, sys
ap = argparse.ArgumentParser()
ap.add_argument("--ts", type=int, default=0, help="timestamps")
ap.add_argument("--nt", type=str, default="nt")
ap.add_argument("--st", type=str, default="sc1", help="partial store flags")
ap.add_argument("--ld", type=str, default="sc1", help="partial load flags")
ap.add_argument("--ost", type=str, default="", help="out store flags")
ap.add_argument("--rot", type=int, default=0)
ap.add_argument("--cpf", type=int, default=8, help="code prefetch KB")
ap.add_argument("--sleep", type=int, default=0)
ap.add_argument("--rpf", type=int, default=1, help="prefetch own record lines at start")
ap.add_argument("--rst", type=str, default="sc1")
ap.add_argument("--perm", type=str, default="")
ap.add_argument("--lad", type=int, default=1, help="ladder instead of dummy loads in the poll")
ap.add_argument("--fast", type=int, default=1, help="plain stores when the whole group sits on this XCD")
ap.add_argument("--thr", type=str, default="", help="XA,XB,tA,tB,aslow : throttle levels; t in 1/64 of reference work")
ap.add_argument("--fst", type=str, default="", help="fast-path store flags")
ap.add_argument("--sel", type=int, default=0, help="selective re-poll of missing sources")
ap.add_argument("--early", type=int, default=1, help="issue V5,V6 before the softmax")
ap.add_argument("--sched", type=int, default=0, help="1: reversed K order, later V issue")
ap.add_argument("--spec", type=str, default="", help="issue schedule, e.g. P:K7,K6,K5,K4,K3;t0:K2;...")
ap.add_argument("--cpf2", type=int, default=1)
ap.add_argument("--scl", type=int, default=1, help="context_lens through the scalar cache")
ap.add_argument("--mg2", type=int, default=0, help="leaner merge")
ap.add_argument("--fin", type=int, default=0, help="short final round, fast check before the last barrier, packed multiplies")
ap.add_argument("--hc", type=int, default=0, help="table for the usual context_lens, verified at run time")
ap.add_argument("--tpf", type=int, default=1, help="re-prefetch tail code")
ap.add_argument("--spin", type=int, default=0x40000)
a = ap.parse_args()

SPEC = None
if a.spec:
    a.sched = 1
    SPEC = {}
    for part in a.spec.split(";"):
        k, v = part.split(":")
        SPEC[k] = v.split(",") if v else []
vm = []
def VM(tag, n=1):
    for _ in range(n): vm.append(tag)
def NW(tag):
    idx = max(i for i, t in enumerate(vm) if t == tag)
    return len(vm) - 1 - idx
def issue(point):
    for g in SPEC.get(point, []):
        if g[0] == "K": kdma(int(g[1]))
        else: vdma(int(g[1]))
KN = "standalone__paged_block_table_kv_pagedattention__sampling_kernel"
out = []
def A(s): out.append("    " + s)
def L(s): out.append(s + ":")
def C(s): out.append("    ; " + s)
NT = (" " + a.nt) if a.nt else ""
ST = (" " + a.st) if a.st else ""
LD = (" " + a.ld) if a.ld else ""
OST = (" " + a.ost) if a.ost else ""
RST = (" " + a.rst) if a.rst else ""

KV_BYTES = 1028*16*8*128*2
REC = 16384
XT_OFF = 6 << 20
TS_OFF = 8 << 20
WREG = 28672
PBASE = 4*WREG
XMAX = PBASE + 32768
XL = XMAX + 2048
XN = XL + 2048
QBASE = XN + 64
LDS_BYTES = QBASE + 8192

sW, sH, sSlot, sB, sN, sStart, sI, sCl, sCnt, sLim = 20, 21, 22, 23, 24, 25, 26, 27, 28, 29
sT0, sT1, sT2, sT3 = 30, 31, 32, 33
sUni, sC, sR, sP, sLdsW, sA = 34, 35, 36, 37, 38, 39
sE = 40
sSO = 48
srdK, srdV, srdQ, srdX, srdO, srdD, srdW = 56, 60, 64, 68, 72, 76, 80
sM = 84
sGrp, sNonce, sRec, sJ = 92, 93, 94, 95
sCO = 4
sCN = 12
sCB, sDual, sOA, sOB, sRem, sMc, sHiN = 40, 41, 42, 43, 44, 45, 46
sThr = 0
sNv, sNvC, sFast = 88, 89, 90
sNb, sNr = 70, 71
sSpec = 1
sMiss, sAct = 47, 1
sHiM, sChk = 47, 1
sXTg, sTag = 95, 3
vLane, vG, vN = 1, 2, 3
vKoff = 4; vVoff = 8; vLds = 12; vTok = 16; vNEG = 20
vT = 21
vMc = 30
vM = 32
vTr = 36
vPa = 40; vXw = 41; vXr = 42; vL16 = 43
vTrC = 44
vPC = 48
vRl = 50
vLsq = 52
vNon = 60
vS = 64
vO = 128
vRB = 144
vGr = 208
vLseN = 224
vTg = 227
vOo = 226
vCS = 228
def S(i, qt, r=0): return vS + i*8 + qt*4 + r
def O(mt, qt): return vO + (mt*2+qt)*4
aQ = 0; aK = 32; aOne = 64
NAGPR = 68
def vr(b, n=4): return f"v[{b}:{b+n-1}]"
def ar(b, n=4): return f"a[{b}:{b+n-1}]"
def sr(b, n=4): return f"s[{b}:{b+n-1}]"
def sp(b): return f"s[{b}:{b+1}]"

ts_slots = []
ts4 = []
def TS(name):
    if not a.ts: return
    if a.ts == 4:
        names = {"start": None, "pv": 48, "stored": 50, "iss1": 52, "ld1": 54, "polled": 64, "end": 66, "lastbar": 68}
        if name in names and names[name] is not None:
            A(f"s_memrealtime s[{names[name]}:{names[name]+1}]")
            ts4.append((name, names[name]))
        return
    if a.ts == 3 and name not in ("start", "k0i3", "pv", "end"): return
    idx = len(ts_slots)
    ts_slots.append(name)
    A("s_memrealtime s[100:101]")
    A("s_waitcnt lgkmcnt(0)")
    A(f"v_writelane_b32 v63, s100, {idx}")

def hc_table():
    CLS = [1615, 1182, 1773, 1340, 1931, 1498, 1065, 1656]
    p1 = [(c-1) >> 4 for c in CLS]
    for C in range(1, 33):
        M = 65536//C + 1
        if sum((x*M) >> 16 for x in p1) <= 24: break
    M = 65536//C + 1
    nb = [((x*M) >> 16) + 1 for x in p1]
    ent = []
    start = 0
    for b in range(8):
        p = p1[b] + 1; Mn = 65536//nb[b] + 1
        for i in range(nb[b]):
            lo = (i*p*Mn) >> 16
            hi = p if i == nb[b]-1 else ((i+1)*p*Mn) >> 16
            ent.append((b | (i << 8) | (nb[b] << 16) | (start << 24), lo, hi-lo, CLS[b]))
        start += nb[b]
    assert len(ent) == 32 and max(nb) <= 7
    return ent, CLS
def TS2(name):
    if a.ts == 2: TS(name)
if SPEC:
    KORD = [int(g[1]) for pt in ["P"] + [f"t{t}" for t in range(8)] for g in SPEC.get(pt, []) if g[0] == "K"]
    assert sorted(KORD) == list(range(8))
else:
    KORD = list(range(7, -1, -1)) if a.sched else list(range(8))
def kslot(j): return KORD.index(j) % 7
def vslot(j): return (j + 1) % 7
THR = [int(x) for x in a.thr.split(",")] if a.thr else None
thr_n = [0]
def throttle():
    if not THR: return
    k = thr_n[0]; thr_n[0] += 1
    A(f"s_bitcmp1_b32 s{sThr}, 0")
    A(f"s_cbranch_scc0 L_ta{k}")
    A(f"s_waitcnt vmcnt({THR[0]})")
    L(f"L_ta{k}")
    A(f"s_bitcmp1_b32 s{sThr}, 1")
    A(f"s_cbranch_scc0 L_tb{k}")
    A(f"s_waitcnt vmcnt({THR[1]})")
    L(f"L_tb{k}")
def kdma(j):
    if j >= 2: throttle()
    A(f"s_add_u32 m0, s{sLdsW}, {kslot(j)*4096}")
    A(f"s_lshl_b32 s{sSO+j}, s{sE+j}, 15")
    A(f"s_cmp_gt_u32 s{sCnt}, {j}")
    A(f"s_cselect_b32 s{sSO+j}, s{sSO+j}, 0x80000000")
    for jj in range(4):
        A(f"buffer_load_dwordx4 v{vKoff+jj}, {sr(srdK)}, s{sSO+j} offen offset:{jj*1024}{NT} lds")
    VM(f"K{j}", 4)
def vdma(j):
    throttle()
    A(f"s_add_u32 m0, s{sLdsW}, {vslot(j)*4096}")
    A("s_nop 0")
    for jj in range(4):
        A(f"buffer_load_dwordx4 v{vVoff+jj}, {sr(srdV)}, s{sSO+j} offen offset:{jj*1024}{NT} lds")
    VM(f"V{j}", 4)

L(KN)
vMt = vT+1
vCl = vT+2
vP1 = vT+3
vClm = vT+4
srdBT = sM
vQo = vT+7
def head_of_wg():
    if a.perm:
        A(f"s_and_b32 s{sH}, s2, 7")
        A(f"s_lshl_b32 s{sH}, s{sH}, 2")
        A(f"s_lshr_b32 s{sH}, {a.perm}, s{sH}")
        A(f"s_and_b32 s{sH}, s{sH}, 7")
    elif a.rot:
        A(f"s_add_u32 s{sH}, s2, {a.rot}")
        A(f"s_and_b32 s{sH}, s{sH}, 7")
    else:
        A(f"s_and_b32 s{sH}, s2, 7")
    A(f"s_lshr_b32 s{sSlot}, s2, 3")
def m_table():
    A(f"v_add_u32 v{vT}, 1, v{vLane}")
    A(f"v_cvt_f32_u32 v{vT}, v{vT}")
    A(f"v_rcp_f32 v{vT}, v{vT}")
    A(f"v_lshrrev_b32 v{vG}, 4, v{vLane}")
    A(f"v_mul_f32 v{vT}, 0x47800000, v{vT}")
    A(f"v_cvt_u32_f32 v{vT}, v{vT}")
    A(f"v_add_u32 v{vMt}, 1, v{vT}")
def k_voff():
    for j in range(4):
        A(f"v_add_u32 v{vT+6}, {4*j}, v{vG}")
        A(f"v_xor_b32 v{vT+7}, v{vT+6}, v{vN}")
        A(f"v_lshlrev_b32 v{vT+8}, 11, v{vT+6}")
        if j: A(f"v_subrev_u32 v{vT+8}, {1024*j}, v{vT+8}")
        A(f"v_lshl_add_u32 v{vKoff+j}, v{vT+7}, 4, v{vT+8}")
def v_voff(t0, t1, t2):
    for j in range(4):
        A(f"v_add_u32 v{t0}, {4*j}, v{vG}")
        A(f"v_lshlrev_b32 v{t2}, 11, v{t0}")
        if j: A(f"v_subrev_u32 v{t2}, {1024*j}, v{t2}")
        A(f"v_and_b32 v{t0}, 7, v{t0}")
        A(f"v_lshlrev_b32 v{t0}, 1, v{t0}")
        A(f"v_xor_b32 v{t1}, v{t0}, v{vN}")
        A(f"v_lshl_add_u32 v{vVoff+j}, v{t1}, 4, v{t2}")
def q_voff():
    A(f"s_lshl_b32 s{sT1}, s{sW}, 3")
    for jj in range(2):
        A(f"v_add_u32 v{vT+6}, s{sT1}, v{vG}")
        if jj: A(f"v_add_u32 v{vT+6}, 4, v{vT+6}")
        A(f"v_and_b32 v{vT}, 15, v{vT+6}")
        A(f"v_xor_b32 v{vT}, v{vT}, v{vN}")
        A(f"v_lshlrev_b32 v{vT+6}, 8, v{vT+6}")
        if jj: A(f"v_subrev_u32 v{vT+6}, 1024, v{vT+6}")
        A(f"v_lshl_add_u32 v{vQo+jj}, v{vT}, 4, v{vT+6}")
def lds_consts(t0, t1):
    A(f"v_lshlrev_b32 v{t0}, 8, v{vN}")
    A(f"v_add_u32 v{t0}, s{sLdsW}, v{t0}")
    for s in range(4):
        A(f"v_add_u32 v{t1}, {4*s}, v{vG}")
        A(f"v_xor_b32 v{t1}, v{t1}, v{vN}")
        A(f"v_lshl_add_u32 v{vLds+s}, v{t1}, 4, v{t0}")
    for r in range(4):
        A(f"v_lshl_add_u32 v{vTok+r}, v{vG}, 2, {r}")
    A(f"v_mov_b32 v{vNEG}, 0xf149f2ca")
    A(f"s_mov_b32 s{sC}, 0x3e0293ee")
def srd_kv(reg, lo):
    A(f"s_add_u32 s{reg}, s{lo}, s{sT0}"); A(f"s_addc_u32 s{reg+1}, s{lo+1}, 0"); A(f"s_sub_u32 s{reg+2}, {KV_BYTES}, s{sT0}"); A(f"s_mov_b32 s{reg+3}, 0x20000")
def srd_w():
    A(f"s_mov_b32 s{srdW}, s18"); A(f"s_mov_b32 s{srdW+1}, s19"); A(f"s_mov_b32 s{srdW+2}, 0x10000000"); A(f"s_mov_b32 s{srdW+3}, 0x20000")
if a.hc == 2:
    A("s_branch L_start")
    out.append(".p2align 3")
    out.append(".type L_tab,@object")
    out.append("L_tab:")
    ent, CLS = hc_table()
    for k in range(0, 32, 8):
        out.append("    .long " + ", ".join(str((e[0] & 7) | (((e[0] >> 8) & 7) << 3) | (((e[0] >> 16) & 7) << 6) | (((e[0] >> 24) & 31) << 9) | (e[1] << 14) | (e[2] << 21)) for e in ent[k:k+8]))
    out.append("    .long " + ", ".join(str(x) for x in CLS))
    out.append(".size L_tab, 160")
    L("L_start")
if a.ts in (3, 4): A("s_memrealtime s[100:101]")
A("s_load_dwordx16 s[4:19], s[0:1], 0")
A("s_cmp_ge_u32 s2, 256")
A("s_cbranch_scc1 L_end")
if a.cpf:
    A("s_getpc_b64 s[98:99]")
    L("L_pc0")
    if a.hc:
        A(f"s_lshr_b32 s{sSlot}, s2, 3")
        A(f"s_lshl_b32 s{sT0}, s{sSlot}, 4")
        if a.hc == 2:
            A(f"s_lshl_b32 s{sT0}, s{sSlot}, 2")
            A(f"s_sub_u32 s96, s98, L_pc0-L_tab")
            A(f"s_subb_u32 s97, s99, 0")
            A(f"s_load_dword s88, s[96:97], s{sT0}")
            A("s_load_dwordx8 s[76:83], s[96:97], 128")
        else:
            A(f"s_add_u32 s96, s98, L_tab-L_pc0")
            A(f"s_addc_u32 s97, s99, 0")
            A(f"s_load_dwordx4 s[88:91], s[96:97], s{sT0}")
            A("s_load_dwordx8 s[76:83], s[96:97], 512")
    if a.cpf2:
        A("v_lshrrev_b32 v62, 6, v0")
        A("v_and_b32 v61, 3, v0")
        A("v_lshl_add_u32 v62, v62, 2, v61")
        A("v_lshlrev_b32 v62, 7, v62")
    else:
        A("v_lshlrev_b32 v62, 7, v0")
        A(f"v_min_u32 v62, L_end-L_pc0, v62")
    A("global_load_dword v58, v62, s[98:99]")
if a.ts:
    A("v_mov_b32 v63, 0")
if a.ts in (3, 4):
    ts_slots.append("start")
else:
    TS("start")
A(f"v_and_b32 v{vLane}, 63, v0")
A(f"v_lshrrev_b32 v{vT}, 6, v0")
A(f"v_min_u32 v{vT+5}, 7, v{vLane}")
A(f"v_readfirstlane_b32 s{sW}, v{vT}")
A(f"v_lshlrev_b32 v{vT+5}, 2, v{vT+5}")
A(f"v_lshlrev_b32 v{vT+6}, 6, v{vLane}")
head_of_wg()
A(f"s_lshl_b32 s{sT0}, s{sH}, 5")
A(f"s_add_u32 s{sT1}, s{sT0}, s{sSlot}")
A(f"s_lshl_b32 s{sRec}, s{sT1}, 14")
A(f"s_lshl_b32 s{sT1}, s{sW}, 12")
A(f"s_add_u32 s{sRec}, s{sRec}, s{sT1}")
A(f"v_add_u32 v{vT+7}, s{sRec}, v{vT+6}")
if a.cpf2:
    A(f"v_lshlrev_b32 v{vT+8}, 5, v{vT+5}")
    A(f"s_lshl_b32 s{sT1}, s{sW}, 10")
    A(f"v_add_u32 v{vT+8}, s{sT1}, v{vT+8}")
TS2("preka")
A("s_waitcnt lgkmcnt(0)")
if a.ts in (3, 4): A("v_writelane_b32 v63, s100, 0")
TS2("ka")
if a.hc:
    A(f"s_load_dwordx8 s[{sSO}:{sSO+7}], s[12:13], 0")
elif a.scl:
    A(f"s_load_dwordx8 s[{sE}:{sE+7}], s[12:13], 0")
else:
    A(f"global_load_dword v{vCl}, v{vT+5}, s[12:13]")
if a.hc:
    pass
elif a.cpf2:
    A(f"global_load_dword v59, v{vT+8}, s[10:11]")
else:
    A(f"global_load_dword v59, v{vT+6}, s[10:11]")
if a.rpf == 3:
    A(f"global_load_dword v57, v{vT+7}, s[18:19]")
if a.cpf and a.cpf2 == 2:
    A(f"v_and_b32 v56, 15, v{vLane}")
    A(f"s_lshl_b32 s{sT1}, s{sW}, 4")
    A(f"v_add_u32 v56, s{sT1}, v56")
    A(f"v_lshlrev_b32 v56, 7, v56")
    A(f"v_add_u32 v56, 2048, v56")
    A(f"v_min_u32 v56, L_end-L_pc0, v56")
    A(f"global_load_dword v58, v56, s[98:99]")
if not a.hc:
    A(f"v_and_b32 v{vN}, 15, v{vLane}")
    m_table()
    k_voff()
    A(f"s_mul_i32 s{sLdsW}, s{sW}, {WREG}")
    A(f"s_lshl_b32 s{sT0}, s{sH}, 8")
    srd_kv(srdK, 6)
    srd_kv(srdV, 8)
    A(f"s_mov_b32 s{srdBT}, s10"); A(f"s_mov_b32 s{srdBT+1}, s11"); A(f"s_mov_b32 s{srdBT+2}, 4096"); A(f"s_mov_b32 s{srdBT+3}, 0x20000")
    q_voff()
    TS("karg")
    if a.scl:
        A("s_waitcnt lgkmcnt(0)")
        for b in range(8):
            A(f"v_writelane_b32 v{vCl}, s{sE+b}, {b}")
    else:
        A(f"s_waitcnt vmcnt({2 if a.rpf == 3 else 1})")
    TS2("clw")
    A(f"v_add_u32 v{vClm}, -1, v{vCl}")
    A(f"v_min_u32 v{vClm}, 0x7ff, v{vClm}")
    A(f"v_lshrrev_b32 v{vP1}, 4, v{vClm}")
    A("s_nop 0")
    for b in range(8):
        A(f"v_readlane_b32 s{sE+b}, v{vP1}, {b}")
    vAcc = vT+5; vTt = vT+6
    A(f"v_mul_u32_u24 v{vAcc}, s{sE}, v{vMt}")
    A(f"v_lshrrev_b32 v{vAcc}, 16, v{vAcc}")
    for b in range(1, 8):
        A(f"v_mul_u32_u24 v{vTt}, s{sE+b}, v{vMt}")
        A(f"v_add_u32_sdwa v{vAcc}, v{vAcc}, v{vTt} dst_sel:DWORD dst_unused:UNUSED_PAD src0_sel:DWORD src1_sel:WORD_1")
    A(f"v_cmp_ge_u32 vcc, 24, v{vAcc}")
    A("s_nop 1")
    A(f"s_ff1_i32_b64 s{sT0}, vcc")
    if THR: A(f"s_add_u32 s{sA}, s{sT0}, 1")
    TS2("cf")
    A("s_nop 0")
    A(f"v_readlane_b32 s{sT1}, v{vMt}, s{sT0}")
    A("s_nop 1")
    vNb = vAcc; vInc = vTt
    A(f"v_mul_u32_u24 v{vNb}, s{sT1}, v{vP1}")
    A(f"v_lshrrev_b32 v{vNb}, 16, v{vNb}")
    A(f"v_add_u32 v{vNb}, 1, v{vNb}")
    A(f"v_mov_b32 v{vInc}, v{vNb}")
    for sh in (1, 2, 4):
        A("s_nop 1")
        A(f"v_add_u32_dpp v{vInc}, v{vInc}, v{vInc} row_shr:{sh} row_mask:0xf bank_mask:0xf bound_ctrl:0")
    A(f"v_cmp_lt_u32 vcc, s{sSlot}, v{vInc}")
    A("s_nop 1")
    A("s_and_b32 vcc_lo, vcc_lo, 0xff")
    A("s_cbranch_scc0 L_end")
    A(f"s_ff1_i32_b32 s{sB}, vcc_lo")
    TS2("bf")
    A("s_nop 0")
    A(f"v_readlane_b32 s{sN}, v{vNb}, s{sB}")
    A(f"v_readlane_b32 s{sStart}, v{vInc}, s{sB}")
    A(f"v_readlane_b32 s{sT2}, v{vP1}, s{sB}")
    A(f"v_readlane_b32 s{sCl}, v{vClm}, s{sB}")
    A(f"v_readlane_b32 s{sUni}, v{vCl}, s{sB}")
    A(f"s_sub_u32 s{sT0}, s{sN}, 1")
    A(f"v_readlane_b32 s{sT1}, v{vMt}, s{sT0}")
    A(f"s_sub_u32 s{sStart}, s{sStart}, s{sN}")
    A(f"s_sub_u32 s{sI}, s{sSlot}, s{sStart}")
    A(f"s_add_u32 s{sT2}, s{sT2}, 1")
    A(f"s_mul_i32 s{sT1}, s{sT1}, s{sT2}")
    A(f"s_mul_i32 s{sT3}, s{sT1}, s{sI}")
    A(f"s_add_u32 s{sT1}, s{sT1}, s{sT3}")
    A(f"s_lshr_b32 s{sT3}, s{sT3}, 16")
    A(f"s_lshr_b32 s{sT1}, s{sT1}, 16")
    A(f"s_cmp_eq_u32 s{sI}, s{sT0}")
    A(f"s_cselect_b32 s{sT1}, s{sT2}, s{sT1}")
    A(f"s_sub_u32 s{sT1}, s{sT1}, s{sT3}")
    if THR:
        A(f"s_lshr_b32 s{sP}, s6, 8")
        A(f"s_add_u32 s{sP}, s{sP}, s{sH}")
        A(f"s_and_b32 s{sP}, s{sP}, 3")
        A(f"s_cmp_eq_u32 s{sP}, 1")
        A(f"s_cselect_b32 s{sP}, {THR[4]}, 8")
        A(f"s_mul_i32 s{sP}, s{sP}, s{sT1}")
        A(f"s_mul_i32 s{sA}, s{sA}, {THR[4]}")
        A(f"s_sub_i32 s{sP}, s{sA}, s{sP}")
        A(f"s_lshl_b32 s{sP}, s{sP}, 6")
        A(f"s_mul_i32 s{sR}, s{sA}, {THR[2]}")
        A(f"s_cmp_ge_i32 s{sP}, s{sR}")
        A(f"s_cselect_b32 s{sThr}, 1, 0")
        A(f"s_mul_i32 s{sR}, s{sA}, {THR[3]}")
        A(f"s_cmp_ge_i32 s{sP}, s{sR}")
        A(f"s_cselect_b32 s{sR}, 2, 0")
        A(f"s_or_b32 s{sThr}, s{sThr}, s{sR}")
    A(f"s_add_u32 s{sR}, s{sT1}, 7")
    A(f"s_lshr_b32 s{sR}, s{sR}, 3")
    A(f"s_lshr_b32 s{sT0}, s{sT1}, 2")
    A(f"s_and_b32 s{sT1}, s{sT1}, 3")
    if a.fin:
        A(f"s_mov_b32 s{sNb}, s{sT0}")
        A(f"s_mov_b32 s{sNr}, s{sT1}")
    A(f"s_mul_i32 s{sT2}, s{sW}, s{sT0}")
    A(f"s_add_u32 s{sT3}, s{sT3}, s{sT2}")
    A(f"s_min_u32 s{sT2}, s{sW}, s{sT1}")
    A(f"s_add_u32 s{sT3}, s{sT3}, s{sT2}")
    A(f"s_cmp_lt_u32 s{sW}, s{sT1}")
    A(f"s_addc_u32 s{sCnt}, s{sT0}, 0")
    A(f"s_lshl_b32 s{sT0}, s{sB}, 7")
    A(f"s_add_u32 s{sT0}, s{sT0}, s{sT3}")
    A(f"s_lshl_b32 s{sT0}, s{sT0}, 2")
    A(f"s_buffer_load_dwordx8 s[{sE}:{sE+7}], {sr(srdBT)}, s{sT0}")
    A(f"s_add_u32 s{sCl}, s{sCl}, 1")
    A(f"s_lshl_b32 s{sT3}, s{sT3}, 4")
    A(f"s_sub_i32 s{sLim}, s{sCl}, s{sT3}")
    A(f"s_lshl_b32 s{sT2}, s{sCnt}, 4")
    A(f"s_min_i32 s{sLim}, s{sLim}, s{sT2}")
    A(f"s_lshl_b32 s{sT0}, s{sB}, 16")
    A(f"s_lshl_b32 s{sT1}, s{sH}, 13")
    A(f"s_add_u32 s{sT0}, s{sT0}, s{sT1}")
    A(f"s_add_u32 s{srdQ}, s4, s{sT0}"); A(f"s_addc_u32 s{srdQ+1}, s5, 0"); A(f"s_mov_b32 s{srdQ+2}, 8192"); A(f"s_mov_b32 s{srdQ+3}, 0x20000")
    A(f"s_add_u32 s{srdO}, s14, s{sT0}"); A(f"s_addc_u32 s{srdO+1}, s15, 0"); A(f"s_mov_b32 s{srdO+2}, 8192"); A(f"s_mov_b32 s{srdO+3}, 0x20000")
else:
    if a.hc == 2:
        A(f"s_and_b32 s{sB}, s88, 7")
        A(f"s_bfe_u32 s{sI}, s88, 0x30003")
        A(f"s_bfe_u32 s{sN}, s88, 0x30006")
        A(f"s_bfe_u32 s{sStart}, s88, 0x50009")
        A(f"s_bfe_u32 s{sT3}, s88, 0x7000e")
        A(f"s_lshr_b32 s{sT1}, s88, 21")
        A(f"s_mov_b32 m0, s{sB}")
        A("s_nop 0")
        A(f"s_movrels_b32 s{sCl}, s76")
        A(f"s_mov_b32 s{sUni}, s{sCl}")
    else:
        A(f"s_and_b32 s{sB}, s88, 0xff")
        A(f"s_bfe_u32 s{sI}, s88, 0x80008")
        A(f"s_bfe_u32 s{sN}, s88, 0x80010")
        A(f"s_lshr_b32 s{sStart}, s88, 24")
        A(f"s_mov_b32 s{sT3}, s89")
        A(f"s_mov_b32 s{sT1}, s90")
        A(f"s_mov_b32 s{sCl}, s91")
        A(f"s_mov_b32 s{sUni}, s91")
    A(f"s_mov_b32 s{sSpec}, 1")
    A(f"s_mov_b32 s{srdBT}, s10"); A(f"s_mov_b32 s{srdBT+1}, s11"); A(f"s_mov_b32 s{srdBT+2}, 4096"); A(f"s_mov_b32 s{srdBT+3}, 0x20000")
    L("L_split")
    A(f"s_add_u32 s{sR}, s{sT1}, 7")
    A(f"s_lshr_b32 s{sR}, s{sR}, 3")
    A(f"s_lshr_b32 s{sT0}, s{sT1}, 2")
    A(f"s_and_b32 s{sT1}, s{sT1}, 3")
    if a.fin:
        A(f"s_mov_b32 s{sNb}, s{sT0}")
        A(f"s_mov_b32 s{sNr}, s{sT1}")
    A(f"s_mul_i32 s{sT2}, s{sW}, s{sT0}")
    A(f"s_add_u32 s{sT3}, s{sT3}, s{sT2}")
    A(f"s_min_u32 s{sT2}, s{sW}, s{sT1}")
    A(f"s_add_u32 s{sT3}, s{sT3}, s{sT2}")
    A(f"s_cmp_lt_u32 s{sW}, s{sT1}")
    A(f"s_addc_u32 s{sCnt}, s{sT0}, 0")
    A(f"s_lshl_b32 s{sT0}, s{sB}, 7")
    A(f"s_add_u32 s{sT0}, s{sT0}, s{sT3}")
    A(f"s_lshl_b32 s{sT0}, s{sT0}, 2")
    A(f"s_buffer_load_dwordx8 s[{sE}:{sE+7}], {sr(srdBT)}, s{sT0}")
    A(f"s_lshl_b32 s{sT3}, s{sT3}, 4")
    A(f"s_sub_i32 s{sLim}, s{sCl}, s{sT3}")
    A(f"s_lshl_b32 s{sT2}, s{sCnt}, 4")
    A(f"s_min_i32 s{sLim}, s{sLim}, s{sT2}")
    A(f"s_lshl_b32 s{sT0}, s{sB}, 16")
    A(f"s_lshl_b32 s{sT1}, s{sH}, 13")
    A(f"s_add_u32 s{sT0}, s{sT0}, s{sT1}")
    A(f"s_add_u32 s{srdQ}, s4, s{sT0}"); A(f"s_addc_u32 s{srdQ+1}, s5, 0"); A(f"s_mov_b32 s{srdQ+2}, 8192"); A(f"s_mov_b32 s{srdQ+3}, 0x20000")
    A(f"s_add_u32 s{srdO}, s14, s{sT0}"); A(f"s_addc_u32 s{srdO+1}, s15, 0"); A(f"s_mov_b32 s{srdO+2}, 8192"); A(f"s_mov_b32 s{srdO+3}, 0x20000")
    A(f"v_and_b32 v{vN}, 15, v{vLane}")
    A(f"v_lshrrev_b32 v{vG}, 4, v{vLane}")
    k_voff()
    A(f"s_mul_i32 s{sLdsW}, s{sW}, {WREG}")
    A(f"s_lshl_b32 s{sT0}, s{sH}, 8")
    srd_kv(srdK, 6)
    srd_kv(srdV, 8)
    q_voff()
    A("s_waitcnt lgkmcnt(0)")
    A(f"s_cmp_eq_u32 s{sSpec}, 0")
    A("s_cbranch_scc1 L_go")
    for k in range(4):
        A(f"s_cmp_eq_u64 s[{sSO+2*k}:{sSO+2*k+1}], s[{76+2*k}:{77+2*k}]")
        A("s_cbranch_scc0 L_general")
    L("L_go")
TS("alloc")
A("s_waitcnt lgkmcnt(0)")
kdma(int(SPEC["P"][0][1]) if SPEC else (7 if a.sched else 0))
TS2("k0i")
if a.ts == 3: TS("k0i3")
A(f"s_lshl_b32 s{sT1}, s{sW}, 11")
A(f"s_add_u32 m0, s{sT1}, {QBASE}")
A("s_nop 0")
for jj in range(2):
    A(f"buffer_load_dwordx4 v{vQo+jj}, {sr(srdQ)}, 0 offen offset:{jj*1024} lds")
VM("Q", 2)
for j in ([int(g[1]) for g in SPEC["P"][1:]] if SPEC else ((6, 5, 4, 3) if a.sched else range(1, 5))): kdma(j)
TS("k4issued")
A("s_memrealtime s[96:97]")
A(f"s_lshl_b32 s{sGrp}, s{sB}, 3")
A(f"s_add_u32 s{sGrp}, s{sGrp}, s{sH}")
A(f"s_lshl_b32 s{sT0}, s{sGrp}, 2")
A(f"s_cmp_eq_u32 s{sW}, 0")
A(f"s_cselect_b32 s{sT0}, s{sT0}, 0x1000")
A(f"s_mov_b32 s{srdD}, s16"); A(f"s_mov_b32 s{srdD+1}, s17"); A(f"s_mov_b32 s{srdD+2}, 256"); A(f"s_mov_b32 s{srdD+3}, 0x20000")
A(f"v_mov_b32 v{vNon+2}, s{sT0}")
A(f"v_mov_b32 v{vNon+1}, 0")
A("s_waitcnt lgkmcnt(0)")
A(f"s_and_b32 s{sNonce}, s96, 0xffffffe0")
A(f"s_or_b32 s{sNonce}, s{sNonce}, 0x10")
A(f"v_mov_b32 v{vNon}, s{sNonce}")
A("s_mov_b64 exec, 1")
A(f"buffer_atomic_cmpswap v[{vNon}:{vNon+1}], v{vNon+2}, {sr(srdD)}, 0 offen sc0 sc1")
VM("A")
A("s_mov_b64 exec, -1")
if a.cpf and a.cpf2 == 1:
    A(f"v_and_b32 v56, 15, v{vLane}")
    A(f"s_lshl_b32 s{sT1}, s{sW}, 4")
    A(f"v_add_u32 v56, s{sT1}, v56")
    A(f"v_lshlrev_b32 v56, 7, v56")
    A(f"v_add_u32 v56, 2048, v56")
    A(f"v_min_u32 v56, L_end-L_pc0, v56")
    A(f"global_load_dword v58, v56, s[98:99]")
    VM("CP")
srd_w()
A(f"v_lshlrev_b32 v{vL16}, 4, v{vLane}")
v_voff(vT, vT+1, vT+2)
lds_consts(vT, vT+1)
A(f"v_lshrrev_b32 v{vT}, 2, v{vLane}")
A(f"v_and_b32 v{vT+1}, 7, v{vT}")
A(f"v_lshlrev_b32 v{vT+1}, 1, v{vT+1}")
A(f"v_bfe_u32 v{vT+2}, v{vLane}, 1, 1")
A(f"s_lshl_b32 s{sT0}, s{sW}, 2")
A(f"v_add_u32 v{vT+2}, s{sT0}, v{vT+2}")
A(f"v_and_b32 v{vT+3}, 1, v{vLane}")
A(f"v_lshlrev_b32 v{vT+3}, 3, v{vT+3}")
A(f"v_lshl_add_u32 v{vT+3}, v{vT}, 8, v{vT+3}")
for mt in range(2):
    A(f"v_add_u32 v{vT+4}, {2*mt}, v{vT+2}")
    A(f"v_xor_b32 v{vT+4}, v{vT+4}, v{vT+1}")
    A(f"v_lshl_add_u32 v{vTr+mt}, v{vT+4}, 4, v{vT+3}")
    A(f"v_add_u32 v{vTr+2+mt}, {2*WREG}, v{vTr+mt}")
A(f"v_add_u32 v{vPa}, {PBASE}, v{vL16}")
A(f"s_lshl_b32 s{sT0}, s{sW}, 2")
A(f"s_add_u32 s{sT0}, s{sT0}, {XMAX}")
A(f"v_add_u32 v{vXw}, s{sT0}, v{vL16}")
A(f"v_add_u32 v{vXr}, {XMAX}, v{vL16}")
A(f"v_mov_b32 v{vT}, 0x3f803f80")
for r in range(4): A(f"v_accvgpr_write_b32 a{aOne+r}, v{vT}")
A(f"s_sub_u32 s{sT0}, {QBASE}, s{sLdsW}")
for s in range(4): A(f"v_add_u32 v{vT+s}, s{sT0}, v{vLds+s}")

if a.sched:
    nxt = ["K2", "K1", "K0", "V0", "V1", "V2", None, None]
    kwait = [17, 17, 17, 17, 17, 16, 16 + a.fast, 12 + a.fast]
else:
    nxt = ["K5", "K6", "K7", "V0", "V1", "V2", "V3", "V4"]
    kwait = [17, 17, 17, 17, 17, 16, 16 + a.fast, 16 + a.fast]
NSTEP = 5
for t in range(8):
    j = KORD[t]
    kb = aK + (t & 1)*16
    if SPEC:
        w_ = min(NW(f"K{j}"), NW("Q")) if t == 0 else NW(f"K{j}")
        if t == NSTEP: w_ = min(w_, NW("A"))
        A(f"s_waitcnt vmcnt({w_})")
    else:
        A(f"s_waitcnt vmcnt({kwait[t]})")
    if t == 0:
        A("s_barrier")
        for qt in range(2):
            for s in range(4):
                A(f"ds_read_b128 {ar(aQ+(qt*4+s)*4)}, v{vT+s} offset:{qt*4096}")
    for s in range(4):
        A(f"ds_read_b128 {ar(kb+4*s)}, v{vLds+s} offset:{kslot(j)*4096}")
    A(f"s_sub_i32 s{sT0}, s{sLim}, {16*j}")
    for r in range(4):
        A(f"v_cmp_gt_i32 {sp(sM+2*r)}, s{sT0}, v{vTok+r}")
    for r in range(4):
        A(f"v_cndmask_b32 v{vM+r}, v{vNEG}, 0, {sp(sM+2*r)}")
    if t == 0:
        A("s_waitcnt lgkmcnt(4)")
        A(f"s_cmp_gt_i32 s{sUni}, 0")
        A("s_cbranch_scc1 L_qok")
        A(f"v_mov_b32 v{vT}, 0")
        for r in range(32): A(f"v_accvgpr_write_b32 a{aQ+r}, v{vT}")
        L("L_qok")
    if t == 5:
        A(f"v_readfirstlane_b32 s{sT1}, v{vNon}")
    A("s_nop 0")
    for s in range(4):
        A(f"s_waitcnt lgkmcnt({3-s})")
        for qt in range(2):
            c = vr(vM) if s == 0 else vr(S(j,qt))
            A(f"v_mfma_f32_16x16x32_bf16 {vr(S(j,qt))}, {ar(kb+4*s)}, {ar(aQ+(qt*4+s)*4)}, {c}")
    if t == 5:
        A(f"s_cmp_eq_u32 s{sT1}, 0")
        A(f"s_cselect_b32 s{sNonce}, s{sNonce}, s{sT1}")
        if a.fast:
            A(f"s_getreg_b32 s{sT0}, hwreg(HW_REG_XCC_ID)")
            A(f"s_and_b32 s{sTag}, s{sT0}, 7")
            A(f"s_or_b32 s{sT0}, s{sNonce}, s{sTag}")
            A(f"s_lshl_b32 s{sXTg}, s{sGrp}, 7")
            A(f"s_add_u32 s{sXTg}, s{sXTg}, {XT_OFF}")
            A(f"s_lshl_b32 s{sT1}, s{sI}, 2")
            A(f"s_add_u32 s{sT1}, s{sT1}, s{sXTg}")
            A(f"s_cmp_eq_u32 s{sW}, 0")
            A(f"s_cselect_b32 s{sT1}, s{sT1}, 0x80000000")
            A(f"v_mov_b32 v{vT+5}, s{sT0}")
            A(f"v_mov_b32 v{vT+6}, 0")
            A("s_mov_b64 exec, 1")
            A(f"buffer_store_dword v{vT+5}, v{vT+6}, {sr(srdW)}, s{sT1} offen sc1")
            VM("T")
            A("s_mov_b64 exec, -1")
    nm = None if SPEC else nxt[t]
    if SPEC: issue(f"t{t}")
    if nm is not None:
        if nm[0] == "K": kdma(int(nm[1]))
        else: vdma(int(nm[1]))
    if t == 7 and a.early and not a.sched:
        vdma(5); vdma(6)
    if t in (0, 3, 7): TS(f"k{t}")
for qt in range(2):
    regs = [S(i,qt,r) for i in KORD for r in range(4)]
    m = vMc+qt
    A(f"v_max3_f32 v{m}, v{regs[0]}, v{regs[1]}, v{regs[2]}")
    k = 3
    while k + 1 < len(regs):
        A(f"v_max3_f32 v{m}, v{m}, v{regs[k]}, v{regs[k+1]}")
        k += 2
    if k < len(regs):
        A(f"v_max_f32 v{m}, v{m}, v{regs[k]}")
for op in ("v_permlane16_swap_b32", "v_permlane32_swap_b32"):
    for qt in range(2): A(f"v_mov_b32 v{vT+qt}, v{vMc+qt}")
    A("s_nop 1")
    for qt in range(2): A(f"{op} v{vMc+qt}, v{vT+qt}")
    for qt in range(2): A(f"v_max_f32 v{vMc+qt}, v{vMc+qt}, v{vT+qt}")
for qt in range(2):
    A(f"ds_write_b32 v{vXw}, v{vMc+qt} offset:{qt*1024}")
A(f"s_lshl_b32 s{sT0}, s{sW}, 2")
A(f"s_add_u32 s{sT0}, s{sT0}, {XN}")
A(f"v_mov_b32 v{vT+2}, s{sT0}")
A(f"v_mov_b32 v{vT+3}, s{sNonce}")
A("s_mov_b64 exec, 1")
A(f"ds_write_b32 v{vT+2}, v{vT+3}")
A("s_mov_b64 exec, -1")
if SPEC: issue("B1")
elif a.sched: vdma(3)
elif not a.early: vdma(5)
A("s_waitcnt lgkmcnt(0)")
A("s_barrier")
TS("bar1")
for qt in range(2):
    A(f"ds_read_b128 {vr(vRB+4*qt)}, v{vXr} offset:{qt*1024}")
A(f"v_mov_b32 v{vT+2}, {XN}")
A(f"ds_read_b32 v{vT+3}, v{vT+2}")
A("s_waitcnt lgkmcnt(1)")
for qt in range(2):
    b = vRB+4*qt
    A(f"v_max3_f32 v{vMc+qt}, v{b}, v{b+1}, v{b+2}")
for qt in range(2):
    A(f"v_max_f32 v{vMc+qt}, v{vMc+qt}, v{vRB+4*qt+3}")
for qt in range(2):
    A(f"v_mul_f32 v{vMc+qt}, s{sC}, v{vMc+qt}")
A("s_waitcnt lgkmcnt(0)")
A(f"v_readfirstlane_b32 s{sNonce}, v{vT+3}")
A(f"s_lshl_b32 s{sT0}, s{sW}, 13")
A(f"v_add_u32 v{vT+4}, s{sT0}, v{vPa}")
for p in range(4):
    for qt in range(2):
        for i in (2*p, 2*p+1):
            for r in range(4):
                A(f"v_fma_f32 v{S(i,qt,r)}, v{S(i,qt,r)}, s{sC}, -v{vMc+qt}")
            for r in range(4):
                A(f"v_exp_f32 v{S(i,qt,r)}, v{S(i,qt,r)}")
        d = S(2*p,qt)
        A(f"v_cvt_pk_bf16_f32 v{d}, v{S(2*p,qt,0)}, v{S(2*p,qt,1)}")
        A(f"v_cvt_pk_bf16_f32 v{d+1}, v{S(2*p,qt,2)}, v{S(2*p,qt,3)}")
        A(f"v_cvt_pk_bf16_f32 v{d+2}, v{S(2*p+1,qt,0)}, v{S(2*p+1,qt,1)}")
        A(f"v_cvt_pk_bf16_f32 v{d+3}, v{S(2*p+1,qt,2)}, v{S(2*p+1,qt,3)}")
        A(f"ds_write_b128 v{vT+4}, {vr(d)} offset:{p*2048+qt*1024}")
        if p > 0 or qt > 0:
            pp, pq = (p, 0) if qt == 1 else (p-1, 1)
            c = "0" if pp == 0 else vr(vLsq+4*pq)
            A(f"v_mfma_f32_16x16x32_bf16 {vr(vLsq+4*pq)}, {ar(aOne)}, {vr(S(2*pp,pq))}, {c}")
    if SPEC: issue(f"E{p}")
    if p == 1:
        if SPEC: pass
        elif a.sched: vdma(4)
        elif not a.early: vdma(6)
        if a.tpf:
            A("s_getpc_b64 s[98:99]")
            L("L_tpf")
            A(f"v_lshlrev_b32 v{vT}, 7, v{vLane}")
            A(f"v_min_u32 v{vT}, L_end-L_tpf, v{vT}")
            A(f"global_load_dword v{vT+1}, v{vT}, s[98:99]")
            VM("PF")
A("s_nop 1")
A(f"v_mfma_f32_16x16x32_bf16 {vr(vLsq+4)}, {ar(aOne)}, {vr(S(6,1))}, {vr(vLsq+4)}")
A(f"s_lshl_b32 s{sT0}, s{sH}, 5")
A(f"s_lshl_b32 s{sT1}, s{sW}, 12")
A("s_nop 2")
A(f"s_add_u32 s{sT0}, s{sT0}, s{sStart}")
A(f"s_lshl_b32 s{sGrp}, s{sT0}, 14")
A(f"s_add_u32 s{sGrp}, s{sGrp}, s{sT1}")
A("s_nop 3")
A(f"v_add_u32 v{vT+4}, {XL-XMAX}, v{vXw}")
for qt in range(2):
    A(f"ds_write_b32 v{vT+4}, v{vLsq+4*qt} offset:{qt*1024}")
A("s_waitcnt lgkmcnt(0)")
A("s_barrier")
TS("bar2")
if a.fast:
    A(f"v_lshlrev_b32 v{vT+5}, 2, v{vLane}")
    A(f"v_cmp_gt_u32 vcc, s{sN}, v{vLane}")
    A(f"v_mov_b32 v{vT+6}, 0x40000000")
    A("s_nop 0")
    A(f"v_cndmask_b32 v{vT+5}, v{vT+6}, v{vT+5}, vcc")
    A(f"buffer_load_dword v{vTg}, v{vT+5}, {sr(srdW)}, s{sXTg} offen sc1")
    VM("G")
for qt in range(2):
    A(f"ds_read_b128 {vr(vRB+4*qt)}, v{vXr} offset:{XL-XMAX+qt*1024}")
A(f"s_mov_b32 s{sP}, 0")
if a.fin:
    A(f"s_lshl_b32 s{sNv}, s{sR}, 1")
    A(f"s_sub_u32 s{sNv}, s{sNv}, 2")
    A(f"s_cmp_gt_u32 s{sNb}, s{sNv}")
    A(f"s_cselect_b32 s{sNv}, 4, s{sNr}")
    A(f"s_mov_b32 s{sNvC}, 4")
A(f"s_mov_b32 s{sA}, 4096")
for k in range(4): A(f"v_add_u32 v{vTrC+k}, 4096, v{vTr+k}")
A(f"v_mov_b32 v{vPC}, v{vPa}")
A("s_waitcnt lgkmcnt(0)")
for qt in range(2):
    b = vRB+4*qt
    A(f"v_add_f32 v{b}, v{b}, v{b+1}")
    A(f"v_add_f32 v{b+2}, v{b+2}, v{b+3}")
for qt in range(2):
    b = vRB+4*qt
    A(f"v_add_f32 v{b}, v{b}, v{b+2}")
for qt in range(2):
    b = vRB+4*qt
    A(f"v_rcp_f32 v{vRl+qt}, v{b}")
    A(f"v_log_f32 v{b+1}, v{b}")
A("s_nop 0")
for qt in range(2):
    b = vRB+4*qt
    A(f"v_add_f32 v{b+1}, v{b+1}, v{vMc+qt}")
for mt in range(2):
    for qt in range(2):
        A(f"v_mov_b32 v{vGr+(mt*2+qt)*4+2}, v{vRB+4*qt+1}")
for qt in range(2):
    A(f"v_xor_b32 v{vLseN+qt}, s{sNonce}, v{vRB+4*qt+1}")
for r in range(16): A(f"v_mov_b32 v{vO+r}, 0")
A(f"v_lshlrev_b32 v{vOo}, 8, v{vN}")
A(f"v_lshl_add_u32 v{vOo}, v{vG}, 3, v{vOo}")
A(f"s_lshl_b32 s{sT0}, s{sI}, 10")
A(f"s_add_u32 s{sCB}, s{sT0}, s{sGrp}")
A(f"s_add_u32 s{sT1}, s{sI}, s{sN}")
A(f"s_cmp_lt_u32 s{sT1}, 4")
A(f"s_cselect_b32 s{sDual}, 1, 0")
A(f"s_lshl_b32 s{sT2}, s{sT1}, 10")
A(f"s_add_u32 s{sT2}, s{sT2}, s{sGrp}")
A(f"s_sub_u32 s{sT2}, s{sT2}, {4*REC}")
A(f"s_add_u32 s{sT3}, s{sN}, 4")
A(f"s_cmp_lg_u32 s{sDual}, 0")
A(f"s_cselect_b32 s{sT2}, s{sT2}, s{sCB}")
A(f"s_cselect_b32 s{sT3}, s{sT3}, s{sN}")
A(f"s_mov_b32 s{sHiN}, s{sT3}")
for s_ in range(8):
    b = sCB if s_ < 4 else sT2
    n_ = sN if s_ < 4 else sT3
    A(f"s_add_u32 s{sT0}, s{b}, {s_*REC}")
    A(f"s_cmp_gt_u32 s{n_}, {s_}")
    A(f"s_cselect_b32 s{sCO+s_}, s{sT0}, 0x80000000")
    A(f"s_cselect_b32 s{sCN+s_}, s{sNonce}, 0")
if a.sel:
    A(f"s_min_u32 s{sT0}, s{sN}, 4")
    A(f"s_bfm_b32 s{sAct}, s{sT0}, 0")
    A(f"s_min_u32 s{sT0}, s{sT3}, 8")
    A(f"s_bfm_b32 s{sT0}, s{sT0}, 0")
    A(f"s_and_b32 s{sT0}, s{sT0}, 0xf0")
    A(f"s_or_b32 s{sAct}, s{sAct}, s{sT0}")
def outoff(dst, j):
    A(f"s_and_b32 s{sT0}, s{j}, 1")
    A(f"s_lshl_b32 s{sT0}, s{sT0}, 12")
    A(f"s_lshr_b32 s{dst}, s{j}, 1")
    A(f"s_lshl_b32 s{dst}, s{dst}, 5")
    A(f"s_add_u32 s{dst}, s{dst}, s{sT0}")
    A(f"s_lshl_b32 s{sT0}, s{sW}, 6")
    A(f"s_add_u32 s{dst}, s{dst}, s{sT0}")
outoff(sOA, sI)
outoff(sOB, sT1)
A(f"s_mov_b32 s{sRem}, s{sN}")
A(f"s_min_u32 s{sMc}, s{sN}, 8")
if a.mg2:
    for s_ in range(8): A(f"v_mov_b32 v{vS+4*s_+2}, v{vNEG}")
    A(f"s_mov_b32 s{sHiM}, 0xffff0000")
    A(f"s_mov_b32 s{sChk}, 0")
else:
    A(f"v_mov_b32 v{vCS+4}, v{vNEG}")
    A(f"v_mov_b32 v{vCS+5}, 0")
    for c in range(4): A(f"v_mov_b32 v{vCS+c}, 0")
L("L_round")
if SPEC:
    base_vm = list(vm)
    w0 = NW("V1")
    vm.extend(sum([[g]*4 for g in SPEC.get("R0", [])], []))
    w1 = NW("V3")
    vm.extend(sum([[g]*4 for g in SPEC.get("R1", [])], []))
    w2 = NW("V5")
    vm[:] = base_vm
else:
    w2 = 8 if a.sched else 8+a.tpf+a.fast
    w0 = (12 if a.sched else 20)+a.tpf+2*a.fast
    w1 = 12+a.tpf+a.fast
A(f"s_add_u32 s{sT0}, s{sP}, 1")
A(f"s_cmp_eq_u32 s{sT0}, s{sR}")
A("s_cbranch_scc1 L_w0")
A(f"s_cmp_eq_u32 s{sP}, 0")
A("s_cbranch_scc1 L_w20")
A(f"s_cmp_eq_u32 s{sP}, 1")
A("s_cbranch_scc1 L_w12")
A(f"s_waitcnt vmcnt({w2})")
A("s_branch L_wd")
L("L_w20")
A(f"s_waitcnt vmcnt({w0})")
A("s_branch L_wd")
L("L_w12")
A(f"s_waitcnt vmcnt({w1})")
A("s_branch L_wd")
L("L_w0")
A("s_waitcnt vmcnt(0)")
if a.fin:
    A(f"s_mov_b32 s{sNvC}, s{sNv}")
    if a.fast:
        A(f"s_or_b32 s{sT0}, s{sNonce}, s{sTag}")
        A(f"v_cmp_eq_u32 vcc, s{sT0}, v{vTg}")
        A(f"s_bfm_b64 {sp(sM)}, s{sN}, 0")
        A("s_nop 0")
        A(f"s_cmp_eq_u64 vcc, {sp(sM)}")
        A(f"s_cselect_b32 s{sFast}, 1, 0")
L("L_wd")
A("s_barrier")
TS("lastbar")
def rd(w_):
    b = vRB + 16*w_
    for qt in range(2):
        A(f"ds_read_b128 {vr(b+4*qt)}, v{vPC} offset:{w_*8192+qt*1024}")
    for mt in range(2):
        for hh in range(2):
            A(f"ds_read_b64_tr_b16 {vr(b+8+4*mt+2*hh, 2)}, v{vTrC+(w_>>1)*2+mt} offset:{(w_&1)*WREG+hh*4096}")
def mm(w_):
    b = vRB + 16*w_
    for mt in range(2):
        for qt in range(2):
            A(f"v_mfma_f32_16x16x32_bf16 {vr(O(mt,qt))}, {vr(b+8+4*mt)}, {vr(b+4*qt)}, {vr(O(mt,qt))}")
rd(0); rd(1)
if SPEC:
    if SPEC.get("R0"):
        A(f"s_cmp_lg_u32 s{sP}, 0")
        A("s_cbranch_scc1 L_nov5")
        issue("R0")
        L("L_nov5")
    A(f"s_cmp_lg_u32 s{sP}, 1")
    A("s_cbranch_scc1 L_nov7")
    issue("R1")
    L("L_nov7")
else:
    if a.sched:
        A(f"s_cmp_lg_u32 s{sP}, 0")
        A("s_cbranch_scc1 L_nov5")
        vdma(5); vdma(6)
        L("L_nov5")
    A(f"s_cmp_lg_u32 s{sP}, 1")
    A("s_cbranch_scc1 L_nov7")
    vdma(7)
    L("L_nov7")
if a.fin:
    A(f"s_cmp_gt_u32 s{sNvC}, 2")
    A("s_cbranch_scc1 L_long")
    A("s_waitcnt lgkmcnt(6)")
    mm(0)
    A("s_waitcnt lgkmcnt(0)")
    mm(1)
    A("s_nop 2")
    A("s_branch L_exit")
    L("L_long")
A("s_waitcnt lgkmcnt(6)")
rd(2); mm(0)
A("s_waitcnt lgkmcnt(6)")
rd(3); mm(1)
A(f"s_add_u32 s{sA}, s{sA}, 8192")
A(f"s_cmp_ge_u32 s{sA}, {WREG}")
A(f"s_cselect_b32 s{sT0}, {WREG}, 0")
A(f"s_sub_u32 s{sA}, s{sA}, s{sT0}")
A("s_waitcnt lgkmcnt(6)")
mm(2)
for k in range(4): A(f"v_add_u32 v{vTrC+k}, s{sA}, v{vTr+k}")
A(f"v_add_u32 v{vPC}, 2048, v{vPC}")
A("s_waitcnt lgkmcnt(0)")
mm(3)
A(f"s_add_u32 s{sP}, s{sP}, 1")
A(f"s_cmp_lt_u32 s{sP}, s{sR}")
A("s_cbranch_scc1 L_round")
if a.fin: L("L_exit")
TS("pv")
def publish(flags):
    for mt in range(2):
        for qt in range(2):
            o = O(mt,qt); g = vGr+(mt*2+qt)*4
            if a.fin:
                sel = "op_sel_hi:[1,0]" if qt == 0 else "op_sel:[0,1] op_sel_hi:[1,1]"
                A(f"v_pk_mul_f32 {vr(o,2)}, {vr(o,2)}, {vr(vRl,2)} {sel}")
                A(f"v_pk_mul_f32 {vr(o+2,2)}, {vr(o+2,2)}, {vr(vRl,2)} {sel}")
            else:
                for r in range(4): A(f"v_mul_f32 v{o+r}, v{o+r}, v{vRl+qt}")
            A(f"v_cvt_pk_bf16_f32 v{g}, v{o}, v{o+1}")
            A(f"v_cvt_pk_bf16_f32 v{g+1}, v{o+2}, v{o+3}")
            A(f"v_bitop3_b32 v{g+3}, v{g}, v{g+1}, v{vLseN+qt} bitop3:0x96")
            A(f"buffer_store_dwordx4 {vr(g)}, v{vL16}, {sr(srdW)}, s{sRec} offen offset:{(mt*2+qt)*1024}{flags}")
if a.fast and a.fin:
    A(f"s_cmp_lg_u32 s{sFast}, 0")
    A("s_cbranch_scc0 L_pubslow")
    A("s_nop 1")
    publish((" " + a.fst) if a.fst else "")
    L("L_pubdone")
elif a.fast:
    A(f"s_or_b32 s{sT0}, s{sNonce}, s{sTag}")
    A(f"v_cmp_eq_u32 vcc, s{sT0}, v{vTg}")
    A(f"s_bfm_b64 {sp(sM)}, s{sN}, 0")
    A("s_nop 0")
    A(f"s_cmp_eq_u64 vcc, {sp(sM)}")
    A("s_cbranch_scc0 L_pubslow")
    publish((" " + a.fst) if a.fst else "")
    L("L_pubdone")
else:
    A("s_nop 4")
    publish(ST)
TS("stored")
vAcc = vCS; vMx = vCS+4; vW = vCS+5; vTmp = vCS+6
vSrc = vS if a.mg2 else vRB
A(f"s_cmp_eq_u32 s{sN}, 1")
A("s_cbranch_scc1 L_direct")
A(f"s_cmp_ge_u32 s{sI}, 4")
A("s_cbranch_scc1 L_fin")
A(f"s_mov_b32 s{sT2}, {a.spin}")
L("L_poll")
def ladder(lo, hi, bound, tgt, body):
    for s_ in range(lo, hi):
        if a.lad and s_ not in (0, 1):
            A(f"s_cmp_le_u32 s{bound}, {s_}")
            A(f"s_cbranch_scc1 {tgt}")
        body(s_)
def ld_body(s_): A(f"buffer_load_dwordx4 {vr(vSrc+4*s_)}, v{vL16}, {sr(srdW)}, s{sCO+s_} offen{LD}")
ladder(0, 4, sN, "L_i4", ld_body)
L("L_i4")
ladder(4, 8, sHiN, "L_i8", ld_body)
L("L_i8")
if a.ts in (1, 2, 4):
    A(f"s_cmp_eq_u32 s{sT2}, {a.spin}")
    A("s_cbranch_scc0 L_ts1")
    TS("iss1")
    L("L_ts1")
A(f"v_mov_b32 v{vTmp+2}, 0")
A("s_waitcnt vmcnt(0)")
if a.ts in (1, 2, 4):
    A(f"s_cmp_eq_u32 s{sT2}, {a.spin}")
    A("s_cbranch_scc0 L_ts2")
    TS("ld1")
    L("L_ts2")
if not a.sel:
    def ck_body(s_):
        g = vSrc+4*s_
        A(f"v_bitop3_b32 v{vTmp}, v{g}, v{g+1}, v{g+2} bitop3:0x96")
        A(f"v_bitop3_b32 v{vTmp}, v{vTmp}, v{g+3}, s{sCN+s_} bitop3:0x96")
        A(f"v_or_b32 v{vTmp+2}, v{vTmp+2}, v{vTmp}")
    ladder(0, 4, sN, "L_c4", ck_body)
    L("L_c4")
    ladder(4, 8, sHiN, "L_c8", ck_body)
    L("L_c8")
    A(f"v_cmp_eq_u32 vcc, 0, v{vTmp+2}")
    A(f"s_sub_u32 s{sT2}, s{sT2}, 1")
    A("s_cbranch_scc1 L_ok")
    A("s_cmp_eq_u64 vcc, exec")
    if a.sleep:
        A("s_cbranch_scc1 L_ok")
        A(f"s_sleep {a.sleep}")
        A("s_branch L_poll")
    else:
        A("s_cbranch_scc0 L_poll")
else:
    vXs = vRB + 48
    def ck_body(s_):
        g = vSrc+4*s_
        A(f"v_bitop3_b32 v{vTmp}, v{g}, v{g+1}, v{g+2} bitop3:0x96")
        A(f"v_bitop3_b32 v{vXs+s_}, v{vTmp}, v{g+3}, s{sCN+s_} bitop3:0x96")
        A(f"v_or_b32 v{vTmp+2}, v{vTmp+2}, v{vXs+s_}")
    ladder(0, 4, sN, "L_c4", ck_body)
    L("L_c4")
    ladder(4, 8, sHiN, "L_c8", ck_body)
    L("L_c8")
    A(f"v_cmp_eq_u32 vcc, 0, v{vTmp+2}")
    A(f"s_mov_b32 s{sMiss}, 0")
    A("s_cmp_eq_u64 vcc, exec")
    A("s_cbranch_scc1 L_ok")
    for s_ in range(8):
        A(f"v_cmp_ne_u32 vcc, 0, v{vXs+s_}")
        A("s_cmp_lg_u64 vcc, 0")
        A(f"s_cselect_b32 s{sT0}, {1<<s_}, 0")
        A(f"s_or_b32 s{sMiss}, s{sMiss}, s{sT0}")
    A(f"s_and_b32 s{sMiss}, s{sMiss}, s{sAct}")
    if a.sel == 1:
        L("L_sel")
        for s_ in range(8):
            A(f"s_bitcmp1_b32 s{sMiss}, {s_}")
            A(f"s_cbranch_scc0 L_sl{s_}")
            A(f"buffer_load_dwordx4 {vr(vSrc+4*s_)}, v{vL16}, {sr(srdW)}, s{sCO+s_} offen{LD}")
            L(f"L_sl{s_}")
        A(f"s_sub_u32 s{sT2}, s{sT2}, 1")
        A("s_cbranch_scc1 L_ok")
        A("s_waitcnt vmcnt(0)")
        for s_ in range(8):
            g = vSrc+4*s_
            A(f"s_bitcmp1_b32 s{sMiss}, {s_}")
            A(f"s_cbranch_scc0 L_sc{s_}")
            A(f"v_bitop3_b32 v{vTmp}, v{g}, v{g+1}, v{g+2} bitop3:0x96")
            A(f"v_bitop3_b32 v{vTmp}, v{vTmp}, v{g+3}, s{sCN+s_} bitop3:0x96")
            A(f"v_cmp_ne_u32 vcc, 0, v{vTmp}")
            A("s_cmp_lg_u64 vcc, 0")
            A(f"s_cbranch_scc1 L_sc{s_}")
            A(f"s_bitset0_b32 s{sMiss}, {s_}")
            L(f"L_sc{s_}")
        A(f"s_cmp_lg_u32 s{sMiss}, 0")
        A("s_cbranch_scc1 L_sel")
    else:
        for s_ in range(8):
            g = vSrc+4*s_
            A(f"s_bitcmp1_b32 s{sMiss}, {s_}")
            A(f"s_cbranch_scc0 L_sn{s_}")
            L(f"L_sp{s_}")
            if a.sleep: A(f"s_sleep {a.sleep}")
            A(f"buffer_load_dwordx4 {vr(g)}, v{vL16}, {sr(srdW)}, s{sCO+s_} offen{LD}")
            A(f"s_sub_u32 s{sT2}, s{sT2}, 1")
            A("s_cbranch_scc1 L_ok")
            A("s_waitcnt vmcnt(0)")
            A(f"v_bitop3_b32 v{vTmp}, v{g}, v{g+1}, v{g+2} bitop3:0x96")
            A(f"v_bitop3_b32 v{vTmp}, v{vTmp}, v{g+3}, s{sCN+s_} bitop3:0x96")
            A(f"v_cmp_ne_u32 vcc, 0, v{vTmp}")
            A("s_cmp_lg_u64 vcc, 0")
            A(f"s_cbranch_scc1 L_sp{s_}")
            L(f"L_sn{s_}")
L("L_ok")
TS("polled")
if a.ts in (1, 2):
    ts_slots.append("npoll")
    A(f"s_sub_u32 s100, {a.spin}, s{sT2}")
    A(f"v_writelane_b32 v63, s100, {len(ts_slots)-1}")
if not a.mg2:
    L("L_merge")
    A(f"v_mov_b32 v{vTmp}, v{vMx}")
    for s in range(8):
        if s:
            A(f"s_cmp_le_u32 s{sMc}, {s}")
            A("s_cbranch_scc1 L_mx")
        A(f"v_max_f32 v{vTmp}, v{vTmp}, v{vSrc+4*s+2}")
    L("L_mx")
    A(f"v_sub_f32 v{vTmp+1}, v{vMx}, v{vTmp}")
    A(f"v_exp_f32 v{vTmp+1}, v{vTmp+1}")
    A(f"v_mov_b32 v{vMx}, v{vTmp}")
    A(f"v_mul_f32 v{vW}, v{vW}, v{vTmp+1}")
    for c in range(4): A(f"v_mul_f32 v{vAcc+c}, v{vAcc+c}, v{vTmp+1}")
    for s in range(8):
        if s:
            A(f"s_cmp_le_u32 s{sMc}, {s}")
            A("s_cbranch_scc1 L_mg")
        g = vSrc+4*s
        A(f"v_sub_f32 v{g+2}, v{g+2}, v{vMx}")
        A(f"v_exp_f32 v{g+2}, v{g+2}")
        A(f"v_lshlrev_b32 v{vTmp}, 16, v{g}")
        A(f"v_and_b32 v{g}, 0xffff0000, v{g}")
        A(f"v_lshlrev_b32 v{vTmp+1}, 16, v{g+1}")
        A(f"v_and_b32 v{g+1}, 0xffff0000, v{g+1}")
        A(f"v_add_f32 v{vW}, v{vW}, v{g+2}")
        A(f"v_fma_f32 v{vAcc}, v{g+2}, v{vTmp}, v{vAcc}")
        A(f"v_fma_f32 v{vAcc+1}, v{g+2}, v{g}, v{vAcc+1}")
        A(f"v_fma_f32 v{vAcc+2}, v{g+2}, v{vTmp+1}, v{vAcc+2}")
        A(f"v_fma_f32 v{vAcc+3}, v{g+2}, v{g+1}, v{vAcc+3}")
    L("L_mg")
    A(f"s_cmp_gt_u32 s{sRem}, 8")
    A("s_cbranch_scc1 L_more")
    A(f"v_rcp_f32 v{vW}, v{vW}")
    A(f"s_cmp_lg_u32 s{sDual}, 0")
    for c in range(4): A(f"v_mul_f32 v{vAcc+c}, v{vAcc+c}, v{vW}")
    A(f"v_cvt_pk_bf16_f32 v{vAcc}, v{vAcc}, v{vAcc+1}")
    A(f"v_cvt_pk_bf16_f32 v{vAcc+1}, v{vAcc+2}, v{vAcc+3}")
    A(f"buffer_store_dwordx2 {vr(vAcc,2)}, v{vOo}, {sr(srdO)}, s{sOA} offen{OST}")
    A("s_cbranch_scc0 L_fin")
    for s in range(3):
        for c in range(4): A(f"v_mov_b32 v{vSrc+4*s+c}, v{vSrc+16+4*s+c}")
    A(f"s_mov_b32 s{sDual}, 0")
    A(f"s_mov_b32 s{sOA}, s{sOB}")
    A(f"v_mov_b32 v{vMx}, v{vNEG}")
    A(f"v_mov_b32 v{vW}, 0")
    for c in range(4): A(f"v_mov_b32 v{vAcc+c}, 0")
    A("s_branch L_merge")
else:
    def src_weight(s_):
        g = vSrc+4*s_
        A(f"v_sub_f32 v{g+2}, v{g+2}, v{vMx}")
        A(f"v_exp_f32 v{g+2}, v{g+2}")
        A(f"v_lshlrev_b32 v{vTmp}, 16, v{g}")
        A(f"v_and_b32 v{vTmp+1}, s{sHiM}, v{g}")
        A(f"v_lshlrev_b32 v{vTmp+2}, 16, v{g+1}")
        A(f"v_and_b32 v{vTmp+3}, s{sHiM}, v{g+1}")
    def src_fma(s_):
        g = vSrc+4*s_
        src_weight(s_)
        A(f"v_add_f32 v{vW}, v{vW}, v{g+2}")
        A(f"v_pk_fma_f32 {vr(vAcc,2)}, {vr(vTmp,2)}, {vr(g+2,2)}, {vr(vAcc,2)} op_sel_hi:[1,0,1]")
        A(f"v_pk_fma_f32 {vr(vAcc+2,2)}, {vr(vTmp+2,2)}, {vr(g+2,2)}, {vr(vAcc+2,2)} op_sel_hi:[1,0,1]")
    A(f"s_cmp_lg_u32 s{sChk}, 0")
    A("s_cbranch_scc1 L_fix")
    L("L_merge")
    A(f"v_max3_f32 v{vMx}, v{vSrc+2}, v{vSrc+6}, v{vSrc+10}")
    A(f"s_cmp_lg_u32 s{sDual}, 0")
    A(f"v_max_f32 v{vMx}, v{vMx}, v{vSrc+14}")
    A("s_cbranch_scc1 L_mx")
    A(f"v_max3_f32 v{vMx}, v{vMx}, v{vSrc+18}, v{vSrc+22}")
    A(f"v_max3_f32 v{vMx}, v{vMx}, v{vSrc+26}, v{vSrc+30}")
    L("L_mx")
    src_weight(0)
    A(f"v_mov_b32 v{vW}, v{vSrc+2}")
    A(f"v_pk_mul_f32 {vr(vAcc,2)}, {vr(vTmp,2)}, {vr(vSrc+2,2)} op_sel_hi:[1,0]")
    A(f"v_pk_mul_f32 {vr(vAcc+2,2)}, {vr(vTmp+2,2)}, {vr(vSrc+2,2)} op_sel_hi:[1,0]")
    L("L_acc1")
    for s_ in range(1, 8):
        A(f"s_cmp_le_u32 s{sMc}, {s_}")
        A("s_cbranch_scc1 L_mg")
        src_fma(s_)
    L("L_mg")
    A(f"s_cmp_gt_u32 s{sRem}, 8")
    A("s_cbranch_scc1 L_more")
    A(f"v_rcp_f32 v{vW}, v{vW}")
    A(f"s_cmp_lg_u32 s{sDual}, 0")
    A(f"v_pk_mul_f32 {vr(vAcc,2)}, {vr(vAcc,2)}, {vr(vMx,2)} op_sel:[0,1] op_sel_hi:[1,1]")
    A(f"v_pk_mul_f32 {vr(vAcc+2,2)}, {vr(vAcc+2,2)}, {vr(vMx,2)} op_sel:[0,1] op_sel_hi:[1,1]")
    A(f"v_cvt_pk_bf16_f32 v{vAcc}, v{vAcc}, v{vAcc+1}")
    A(f"v_cvt_pk_bf16_f32 v{vAcc+1}, v{vAcc+2}, v{vAcc+3}")
    A(f"buffer_store_dwordx2 {vr(vAcc,2)}, v{vOo}, {sr(srdO)}, s{sOA} offen{OST}")
    A("s_cbranch_scc0 L_fin")
    for s_ in range(3):
        for c in range(4): A(f"v_mov_b32 v{vSrc+4*s_+c}, v{vSrc+16+4*s_+c}")
    A(f"s_mov_b32 s{sOA}, s{sOB}")
    A(f"s_mov_b32 s{sDual}, 0")
    for s_ in range(4, 8): A(f"v_mov_b32 v{vSrc+4*s_+2}, v{vNEG}")
    A("s_branch L_merge")
    L("L_fix")
    for s_ in range(1, 8):
        A(f"s_cmp_gt_u32 s{sMc}, {s_}")
        A(f"s_cbranch_scc1 L_fx{s_}")
        A(f"v_mov_b32 v{vSrc+4*s_+2}, v{vNEG}")
        L(f"L_fx{s_}")
    A(f"v_max3_f32 v{vTmp}, v{vMx}, v{vSrc+2}, v{vSrc+6}")
    A(f"v_max3_f32 v{vTmp}, v{vTmp}, v{vSrc+10}, v{vSrc+14}")
    A(f"v_max3_f32 v{vTmp}, v{vTmp}, v{vSrc+18}, v{vSrc+22}")
    A(f"v_max3_f32 v{vTmp}, v{vTmp}, v{vSrc+26}, v{vSrc+30}")
    A(f"v_sub_f32 v{vTmp+1}, v{vMx}, v{vTmp}")
    A(f"v_exp_f32 v{vTmp+1}, v{vTmp+1}")
    A(f"v_mov_b32 v{vMx}, v{vTmp}")
    A(f"v_mul_f32 v{vW}, v{vW}, v{vTmp+1}")
    for c in range(4): A(f"v_mul_f32 v{vAcc+c}, v{vAcc+c}, v{vTmp+1}")
    src_fma(0)
    A("s_branch L_acc1")
if a.fast:
    L("L_pubslow")
    if a.fin: A("s_nop 1")
    publish(ST)
    A("s_branch L_pubdone")
L("L_more")
A(f"s_sub_u32 s{sRem}, s{sRem}, 8")
A(f"s_min_u32 s{sMc}, s{sRem}, 8")
A(f"s_mov_b32 s{sHiN}, s{sRem}")
if a.mg2: A(f"s_mov_b32 s{sChk}, 1")
if a.sel:
    A(f"s_bfm_b32 s{sAct}, s{sMc}, 0")
for s in range(8):
    A(f"s_add_u32 s{sT0}, s{sCB}, {(8+s)*REC}")
    A(f"s_cmp_gt_u32 s{sRem}, {s}")
    A(f"s_cselect_b32 s{sCO+s}, s{sT0}, 0x80000000")
    A(f"s_cselect_b32 s{sCN+s}, s{sNonce}, 0")
A(f"s_add_u32 s{sCB}, s{sCB}, {8*REC}")
A(f"s_mov_b32 s{sT2}, {a.spin}")
A("s_branch L_poll")
L("L_direct")
for mt in range(2):
    for qt in range(2):
        g = vGr+(mt*2+qt)*4
        A(f"s_lshl_b32 s{sT0}, s{sW}, 6")
        A(f"s_add_u32 s{sT0}, s{sT0}, {qt*4096+mt*32}")
        A(f"buffer_store_dwordx2 {vr(g,2)}, v{vOo}, {sr(srdO)}, s{sT0} offen{OST}")
L("L_fin")
if a.ts:
    TS("end")
    A("s_waitcnt vmcnt(0) lgkmcnt(0)")
    if a.ts == 4:
        order = ["lastbar", "pv", "stored", "iss1", "ld1", "polled", "end"]
        d = dict(ts4)
        for k, nm in enumerate(order):
            A(f"v_writelane_b32 v63, s{d[nm]}, {k+1}")
    A(f"s_lshl_b32 s{sT0}, s2, 2")
    A(f"s_add_u32 s{sT0}, s{sT0}, s{sW}")
    A(f"s_lshl_b32 s{sT0}, s{sT0}, 7")
    A(f"s_add_u32 s{sT0}, s{sT0}, {TS_OFF}")
    A(f"v_lshlrev_b32 v{vT}, 2, v{vLane}")
    A(f"v_cmp_gt_u32 vcc, 32, v{vLane}")
    A(f"s_and_saveexec_b64 {sp(sM)}, vcc")
    A(f"buffer_store_dword v63, v{vT}, {sr(srdW)}, s{sT0} offen")
if a.hc:
    A("s_endpgm")
    L("L_general")
    A(f"s_mov_b32 s{sSpec}, 0")
    for b in range(8):
        A(f"v_writelane_b32 v{vCl}, s{sSO+b}, {b}")
    m_table()
    A(f"v_add_u32 v{vClm}, -1, v{vCl}")
    A(f"v_min_u32 v{vClm}, 0x7ff, v{vClm}")
    A(f"v_lshrrev_b32 v{vP1}, 4, v{vClm}")
    A("s_nop 0")
    for b in range(8):
        A(f"v_readlane_b32 s{sE+b}, v{vP1}, {b}")
    vAcc = vT+5; vTt = vT+6
    A(f"v_mul_u32_u24 v{vAcc}, s{sE}, v{vMt}")
    A(f"v_lshrrev_b32 v{vAcc}, 16, v{vAcc}")
    for b in range(1, 8):
        A(f"v_mul_u32_u24 v{vTt}, s{sE+b}, v{vMt}")
        A(f"v_add_u32_sdwa v{vAcc}, v{vAcc}, v{vTt} dst_sel:DWORD dst_unused:UNUSED_PAD src0_sel:DWORD src1_sel:WORD_1")
    A(f"v_cmp_ge_u32 vcc, 24, v{vAcc}")
    A("s_nop 1")
    A(f"s_ff1_i32_b64 s{sT0}, vcc")
    if THR: A(f"s_add_u32 s{sA}, s{sT0}, 1")
    TS2("cf")
    A("s_nop 0")
    A(f"v_readlane_b32 s{sT1}, v{vMt}, s{sT0}")
    A("s_nop 1")
    vNb = vAcc; vInc = vTt
    A(f"v_mul_u32_u24 v{vNb}, s{sT1}, v{vP1}")
    A(f"v_lshrrev_b32 v{vNb}, 16, v{vNb}")
    A(f"v_add_u32 v{vNb}, 1, v{vNb}")
    A(f"v_mov_b32 v{vInc}, v{vNb}")
    for sh in (1, 2, 4):
        A("s_nop 1")
        A(f"v_add_u32_dpp v{vInc}, v{vInc}, v{vInc} row_shr:{sh} row_mask:0xf bank_mask:0xf bound_ctrl:0")
    A(f"v_cmp_lt_u32 vcc, s{sSlot}, v{vInc}")
    A("s_nop 1")
    A("s_and_b32 vcc_lo, vcc_lo, 0xff")
    A("s_cbranch_scc0 L_end")
    A(f"s_ff1_i32_b32 s{sB}, vcc_lo")
    TS2("bf")
    A("s_nop 0")
    A(f"v_readlane_b32 s{sN}, v{vNb}, s{sB}")
    A(f"v_readlane_b32 s{sStart}, v{vInc}, s{sB}")
    A(f"v_readlane_b32 s{sT2}, v{vP1}, s{sB}")
    A(f"v_readlane_b32 s{sCl}, v{vClm}, s{sB}")
    A(f"v_readlane_b32 s{sUni}, v{vCl}, s{sB}")
    A(f"s_sub_u32 s{sT0}, s{sN}, 1")
    A(f"v_readlane_b32 s{sT1}, v{vMt}, s{sT0}")
    A(f"s_sub_u32 s{sStart}, s{sStart}, s{sN}")
    A(f"s_sub_u32 s{sI}, s{sSlot}, s{sStart}")
    A(f"s_add_u32 s{sT2}, s{sT2}, 1")
    A(f"s_mul_i32 s{sT1}, s{sT1}, s{sT2}")
    A(f"s_mul_i32 s{sT3}, s{sT1}, s{sI}")
    A(f"s_add_u32 s{sT1}, s{sT1}, s{sT3}")
    A(f"s_lshr_b32 s{sT3}, s{sT3}, 16")
    A(f"s_lshr_b32 s{sT1}, s{sT1}, 16")
    A(f"s_cmp_eq_u32 s{sI}, s{sT0}")
    A(f"s_cselect_b32 s{sT1}, s{sT2}, s{sT1}")
    A(f"s_sub_u32 s{sT1}, s{sT1}, s{sT3}")
    if THR:
        A(f"s_lshr_b32 s{sP}, s6, 8")
        A(f"s_add_u32 s{sP}, s{sP}, s{sH}")
        A(f"s_and_b32 s{sP}, s{sP}, 3")
        A(f"s_cmp_eq_u32 s{sP}, 1")
        A(f"s_cselect_b32 s{sP}, {THR[4]}, 8")
        A(f"s_mul_i32 s{sP}, s{sP}, s{sT1}")
        A(f"s_mul_i32 s{sA}, s{sA}, {THR[4]}")
        A(f"s_sub_i32 s{sP}, s{sA}, s{sP}")
        A(f"s_lshl_b32 s{sP}, s{sP}, 6")
        A(f"s_mul_i32 s{sR}, s{sA}, {THR[2]}")
        A(f"s_cmp_ge_i32 s{sP}, s{sR}")
        A(f"s_cselect_b32 s{sThr}, 1, 0")
        A(f"s_mul_i32 s{sR}, s{sA}, {THR[3]}")
        A(f"s_cmp_ge_i32 s{sP}, s{sR}")
        A(f"s_cselect_b32 s{sR}, 2, 0")
        A(f"s_or_b32 s{sThr}, s{sThr}, s{sR}")
    A(f"s_add_u32 s{sCl}, s{sCl}, 1")
    A("s_branch L_split")
L("L_end")
A("s_endpgm")
if a.hc == 1:
    CLS = [1615, 1182, 1773, 1340, 1931, 1498, 1065, 1656]
    p1 = [(c-1) >> 4 for c in CLS]
    for C in range(1, 33):
        M = 65536//C + 1
        if sum((x*M) >> 16 for x in p1) <= 24: break
    M = 65536//C + 1
    nb = [((x*M) >> 16) + 1 for x in p1]
    ent = []
    start = 0
    for b in range(8):
        p = p1[b] + 1; Mn = 65536//nb[b] + 1
        for i in range(nb[b]):
            lo = (i*p*Mn) >> 16
            hi = p if i == nb[b]-1 else ((i+1)*p*Mn) >> 16
            ent.append((b | (i << 8) | (nb[b] << 16) | (start << 24), lo, hi-lo, CLS[b]))
        start += nb[b]
    assert len(ent) == 32
    out.append(".p2align 6")
    out.append(".type L_tab,@object")
    out.append("L_tab:")
    for e in ent: out.append("    .long " + ", ".join(str(x) for x in e))
    out.append(".size L_tab, 512")
    out.append(".type L_tabcl,@object")
    out.append("L_tabcl:")
    out.append("    .long " + ", ".join(str(x) for x in CLS))
    out.append(".size L_tabcl, 32")

hdr = open("standalone__paged_block_table_kv_pagedattention__sampling.s.ref").read().split("\n")
comments = [l for l in hdr if l.startswith(";") and "@launch" not in l and not l.startswith("; Override") and not l.startswith("; grid=")]
doc = """;
;  * The normalised partial of a workgroup is published as 16-byte granules {4 x bf16, log-sum-exp, check word};
;"""
txt = "\n".join(comments) + "\n" + doc + "\n"
txt += f"; @launch grid=(256,1,1) block=(256,1,1) lds={LDS_BYTES}\n"
txt += f""".amdgcn_target "amdgcn-amd-amdhsa--gfx950"
.text
.globl {KN}
.p2align 8
.type {KN},@function
"""
txt += "\n".join(out) + "\n"
txt += f""".section .rodata,"a"
.p2align 6
.amdhsa_kernel {KN}
  .amdhsa_next_free_vgpr {256+NAGPR}
  .amdhsa_next_free_sgpr 102
  .amdhsa_accum_offset 256
  .amdhsa_group_segment_fixed_size 0
  .amdhsa_kernarg_size 64
  .amdhsa_user_sgpr_count 2
  .amdhsa_user_sgpr_kernarg_segment_ptr 1
  .amdhsa_system_sgpr_workgroup_id_x 1
.end_amdhsa_kernel
"""
print(txt)
if a.ts:
    sys.stderr.write("TS: " + ",".join(ts_slots) + "\n")
```
